```python
import torch

def _softmax(x, axis=-1):
    return torch.softmax(x, dim=axis)
def _gelu(x):
    return torch.nn.functional.gelu(x, approximate="tanh")
def _silu(x):
    return torch.nn.functional.silu(x)
def _sigmoid(x):
    return torch.sigmoid(x)
def _layernorm(x, axis=-1, eps=1e-5):
    m = x.mean(dim=axis, keepdim=True)
    v = x.var(dim=axis, keepdim=True, unbiased=False)
    return (x - m) / torch.sqrt(v + eps)
def _scatter_add(tgt, idx, src, axis=0):
    return tgt.clone().index_add_(axis, idx, src)
def _segment_sum(src, seg, n):
    out = torch.zeros((n,) + src.shape[1:], dtype=src.dtype)
    return out.index_add_(0, seg, src)
def _pad(x, pw):
    flat = tuple(v for pair in reversed(pw) for v in pair)
    return torch.nn.functional.pad(x, flat)

kernel_name = 'parallel_sum__sliding_block_cached__glu_gated_geglu__decode'

def setup_inputs():

    _w = (lambda a: (lambda t: t.to(torch.bfloat16) if t.is_floating_point() else t)(torch.as_tensor(a)))
    def _A_setup():
        B, Sq, D = 2, 1, 448
        Hq, Hkv, Sk, Dh = 16, 8, 32768, 256
        assert Hq % Hkv == 0, (Hq, Hkv)
        return {
            "x": _w((lambda *s: torch.randn(*s, dtype=torch.bfloat16) * 0.05)(B, Sq, D)),
            "k_cache": _w((lambda *s: torch.randn(*s, dtype=torch.bfloat16) * 1.6)(B, Hkv, Sk, Dh)),
            "v_cache": _w((lambda *s: torch.randn(*s, dtype=torch.bfloat16) * 0.8)(B, Hkv, Sk, Dh)),
            "wq": _w((lambda *s: torch.randn(*s, dtype=torch.bfloat16) * 1.6)(D, Hq * Dh) * (D ** -0.5)),
            "wo": _w((lambda *s: torch.randn(*s, dtype=torch.bfloat16) * 0.8)(Hq * Dh, D) * ((Hq * Dh) ** -0.5)),
        }
    _A_in = _A_setup()

    def _B_setup():
        B, S, Dm, Df = 2, 1, 448, 1792
        return {
            "x": _w((lambda *s: torch.randn(*s, dtype=torch.bfloat16) * 0.05)(B, S, Dm)),
            "w_gate": _w((lambda *s: torch.randn(*s, dtype=torch.bfloat16) * 0.4)(Dm, Df) * (Dm ** -0.5)),
            "w_up": _w((lambda *s: torch.randn(*s, dtype=torch.bfloat16) * 0.4)(Dm, Df) * (Dm ** -0.5)),
            "w_down": _w((lambda *s: torch.randn(*s, dtype=torch.bfloat16) * 0.4)(Df, Dm) * (Df ** -0.5)),
        }
    _B_in = _B_setup()

    return {
        "A_x": _A_in["x"],
        "A_k_cache": _A_in["k_cache"],
        "A_v_cache": _A_in["v_cache"],
        "A_wq": _A_in["wq"],
        "A_wo": _A_in["wo"],
        "B_x": _B_in["x"],
        "B_w_gate": _B_in["w_gate"],
        "B_w_up": _B_in["w_up"],
        "B_w_down": _B_in["w_down"],
    }

def reference(A_x, A_k_cache, A_v_cache, A_wq, A_wo, B_x, B_w_gate, B_w_up, B_w_down):
    def _A_ref(x, k_cache, v_cache, wq, wo):
        B, Sq, D = x.shape
        Hq, Dh = 16, 256
        Hkv, Sk = k_cache.shape[1], k_cache.shape[2]
        W = min(4096, max(256, Sk // 4))
        rep = Hq // Hkv
        q = (lambda x, *d: x.permute(*d))((x @ wq).reshape(B, Sq, Hq, Dh), 0, 2, 1, 3)
        k = (lambda x, n, axis: torch.repeat_interleave(x, n, dim=axis))(k_cache[:, :, Sk - W:, :], rep, axis=1)
        v = (lambda x, n, axis: torch.repeat_interleave(x, n, dim=axis))(v_cache[:, :, Sk - W:, :], rep, axis=1)
        scores = torch.einsum("bhqd,bhkd->bhqk", q, k) * (Dh ** -0.5)
        p = _softmax(scores, axis=-1)
        o = torch.einsum("bhqk,bhkd->bhqd", p, v)
        return (lambda x, *d: x.permute(*d))(o, 0, 2, 1, 3).reshape(B, Sq, Hq * Dh) @ wo

    def _B_ref(x, w_gate, w_up, w_down):
        g = torch.einsum("bsd,df->bsf", x, w_gate)
        u = torch.einsum("bsd,df->bsf", x, w_up)
        h = _gelu(g) * u
        return torch.einsum("bsf,fd->bsd", h, w_down)

    x = A_x
    xn = _layernorm(x, axis=-1)
    return x + _A_ref(xn, A_k_cache, A_v_cache, A_wq, A_wo) + _B_ref(xn, B_w_gate, B_w_up, B_w_down)
```

```python
import re

def regs_of(tok):
    tok = tok.strip().lstrip('-')
    if tok.startswith('abs(') or tok.startswith('|'):
        tok = tok.replace('abs(', '').replace(')', '').replace('|', '')
    m = re.fullmatch(r'([vsa])(\d+)', tok)
    if m: return {(m.group(1), int(m.group(2)))}
    m = re.fullmatch(r'([vsa])\[(\d+):(\d+)\]', tok)
    if m: return {(m.group(1), i) for i in range(int(m.group(2)), int(m.group(3)) + 1)}
    if tok == 'vcc': return {('s', 106), ('s', 107)}
    if tok == 'exec': return {('s', 126), ('s', 127)}
    return set()

TRANS = ('v_exp_f32', 'v_log_f32', 'v_rcp_f32', 'v_rsq_f32', 'v_sqrt_f32', 'v_sin_f32', 'v_cos_f32')

class Ins:
    def __init__(self, text):
        self.text = text
        t = text.split(';')[0].strip()
        self.label = t.endswith(':')
        self.dirv = t.startswith('.')
        self.op = t.split()[0] if t else ''
        rest = t[len(self.op):].strip()
        ops = [o.strip() for o in rest.split(',')] if rest else []
        self.mods = ''
        if ops:
            parts = ops[-1].split()
            ops[-1] = parts[0] if parts else ''
            self.mods = ' '.join(parts[1:])
        self.ops = ops
        op = self.op
        self.mfma = op.startswith('v_mfma')
        self.valu = op.startswith('v_') and not self.mfma
        self.vmem = op.startswith(('buffer_', 'global_', 'flat_'))
        self.ds = op.startswith('ds_')
        self.salu = op.startswith('s_')
        self.dpp = any(k in self.mods for k in ('row_', 'quad_perm', 'wave_')) and self.valu
        self.perml = op.startswith('v_permlane')
        self.trans = any(op.startswith(x) for x in TRANS)
        self.rdlane = op.startswith(('v_readfirstlane', 'v_readlane'))
        self.w = set(); self.r = set()
        R = [regs_of(o) for o in ops]
        if self.mfma:
            self.w = R[0]; self.ra = R[1] | R[2]; self.rc = R[3]; self.r = self.ra | self.rc
            self.passes = 2 if '4x4x4' in op else (8 if ('32x32' in op or '16x16x4_f32' in op) else 4)
        elif self.valu:
            if self.perml:
                self.w = R[0] | R[1]; self.r = R[0] | R[1]
            elif op.startswith('v_cmp'):
                self.w = R[0]; self.r = set().union(*R[1:])
            elif op.startswith(('v_add_co', 'v_sub_co', 'v_addc_co', 'v_subb_co')):
                self.w = R[0] | R[1]; self.r = set().union(*R[2:])
            else:
                self.w = R[0]; self.r = set().union(*R[1:]) if len(R) > 1 else set()
                if op.startswith(('v_fmac', 'v_dot2c', 'v_writelane')) or self.dpp: self.r |= R[0]
        elif self.vmem:
            if '_load' in op and 'lds' not in self.mods and '_lds_' not in op:
                self.w = R[0]; self.r = set().union(*R[1:])
            else:
                self.r = set().union(*R) if R else set()
            self.store = '_store' in op
        elif self.ds:
            if op.startswith(('ds_read', 'ds_bpermute', 'ds_swizzle')) or '_rtn' in op:
                self.w = R[0]; self.r = set().union(*R[1:])
            else:
                self.r = set().union(*R) if R else set()
        elif self.salu:
            if op.startswith(('s_cmp', 's_cbranch', 's_branch', 's_waitcnt', 's_nop', 's_barrier', 's_sleep', 's_setprio', 's_endpgm')):
                self.r = set().union(*R) if R else set()
            else:
                self.w = R[0] if R else set(); self.r = set().union(*R[1:]) if len(R) > 1 else set()
                if 'saveexec' in op: self.w |= regs_of('exec')
    def states(self):
        if self.label or self.dirv or not self.op: return 0
        if self.op == 's_nop': return int(self.ops[0], 0) + 1
        return 1

def need(p, c):
    n = 0
    vw = {x for x in p.w if x[0] in 'va'}
    sw = {x for x in p.w if x[0] == 's'}
    if p.valu:
        if c.dpp and vw & c.r: n = max(n, 2)
        if c.perml and vw & c.r: n = max(n, 2)
        if c.mfma and vw & c.r: n = max(n, 2)
        if c.rdlane and vw & c.r: n = max(n, 1)
        if p.trans and c.valu and vw & c.r: n = max(n, 1)
        if sw:
            if c.vmem and sw & c.r: n = max(n, 5)
            if c.valu and sw & c.r: n = max(n, 4 if (c.rdlane or c.op.startswith('v_writelane')) else 2)
            if (('s', 126) in sw) and (c.dpp): n = max(n, 5)
            if (('s', 126) in sw) and (c.mfma or c.perml or c.rdlane): n = max(n, 4)
        if 'sdwa' in p.op and c.valu and vw & (c.r | c.w): n = max(n, 1)
    if p.mfma:
        t = {2: 0, 4: 1, 8: 2, 16: 3}[p.passes]
        sg = '_f32 ' in (p.op + ' ') and p.op.endswith('_f32') and ('x4_f32' in p.op or 'x2_f32' in p.op)
        if c.mfma:
            if p.w & c.ra: n = max(n, [5, 8, 12, 20][t])
            if p.w & c.rc:
                if p.w == c.rc and p.passes == c.passes: n = max(n, [2, 0, 0, 0][t])
                else: n = max(n, [4, 6, 10, 18][t])
            elif p.w & c.w: n = max(n, [5, 8, 12, 20][t])
        elif c.valu or c.vmem or c.ds:
            if p.w & (c.r | c.w): n = max(n, [5, 8, 12, 20][t])
            if c.valu and p.rc & c.w: n = max(n, [1, 3, 7, 15][t])
    if p.vmem and getattr(p, 'store', False) and ('x3' in p.op or 'x4' in p.op):
        data = regs_of(p.ops[0]) if p.op.startswith('buffer') else regs_of(p.ops[1])
        if data & c.w: n = max(n, 2)
    return n

class Asm:
    def __init__(self):
        self.L = []
    def __call__(self, text):
        for line in text.split('\n'):
            line = line.strip()
            if line: self.L.append(line)
    def finish(self):
        out = []
        for line in self.L:
            c = Ins(line)
            if c.states() and not c.op == 's_nop':
                dist = 0; req = 0
                for p in reversed(out):
                    if dist >= 20: break
                    if p.states():
                        req = max(req, need(p, c) - dist)
                    dist += p.states()
                while req > 0:
                    k = min(req, 16)
                    out.append(Ins(f's_nop {k-1}')); req -= k
            out.append(c)
        return '\n'.join(('' if (i.label or i.dirv) else '    ') + i.text for i in out)
```

```python
import sys
from asmgen import Asm
NAME = "parallel_sum__sliding_block_cached__glu_gated_geglu__decode"

QP = 0x10000; FPB = 0x30000; ST = 0x70000; OP = 0x80000; YP = 0x100000; WS_SIZE = 0x120000
F_Q, F_P, F_M, F_F = 0x00, 0x04, 0x08, 0x0c
L_MAX, L_FAC = 0x10, 0x18
L_ZERO = 0x100
L_Q, L_P, L_H, L_Y = 0x400, 0x800, 0xc00, 0x1000
LDS_SIZE = 0x1800
CEXP = 0x3db8aa3b
SPIN = 0x100000

def gen(stamps=False):
    A = Asm()
    uid = [0]
    def lab(p):
        uid[0] += 1
        return f"L_{p}{uid[0]}"
    def stamp(k):
        if stamps: A(f"s_memrealtime s[{64+2*k}:{65+2*k}]")
    def flush(slots, cond_sub0=True):
        if not stamps: return
        skip = lab("fl")
        if cond_sub0:
            A("s_cmp_lg_u32 s8, 0"); A(f"s_cbranch_scc1 {skip}")
        A("s_waitcnt lgkmcnt(0)")
        A("s_mov_b64 exec, 1")
        A("s_lshl_b32 s14, s2, 7")
        A("s_add_u32 s62, s38, s14"); A("s_addc_u32 s63, s39, 0")
        A("s_add_u32 s62, s62, 0x20000000"); A("s_addc_u32 s63, s63, 0")
        A("v_mov_b32 v1, 0")
        for k, slot in slots:
            A(f"v_mov_b32 v2, s{64+2*k}"); A(f"v_mov_b32 v3, s{65+2*k}")
            A(f"global_store_dwordx2 v1, v[2:3], s[62:63] offset:{slot*8}")
        A(f"{skip}:")
    def srd(s, lo, hi, size, off=None):
        if off is None:
            A(f"s_mov_b32 s{s}, s{lo}"); A(f"s_mov_b32 s{s+1}, s{hi}")
        else:
            A(f"s_add_u32 s{s}, s{lo}, {off}"); A(f"s_addc_u32 s{s+1}, s{hi}, 0")
        A(f"s_mov_b32 s{s+2}, {size}"); A(f"s_mov_b32 s{s+3}, 0x20000")
    def spin_lds(flag, n, vz, vt):
        l = lab("sp"); d = lab("sd")
        A(f"{l}:")
        A(f"ds_read_b32 v{vt}, v{vz} offset:{flag}")
        A("s_waitcnt lgkmcnt(0)")
        A(f"v_readfirstlane_b32 s14, v{vt}")
        A(f"s_cmp_ge_u32 s14, {n}")
        A(f"s_cbranch_scc1 {d}")
        A("s_sleep 1")
        A("s_sub_u32 s15, s15, 1")
        A(f"s_cbranch_scc0 {l}")
        A("s_endpgm")
        A(f"{d}:")
    def tagcheck(regs, vT, c0, c1, lretry):
        A(f"v_xor_b32 v{c0}, v{regs[0]}, v{vT}")
        A(f"v_xor_b32 v{c1}, v{regs[1]}, v{vT}")
        for k, r in enumerate(regs[2:]):
            c = c0 if k % 2 == 0 else c1
            A(f"v_bitop3_b32 v{c}, v{c}, v{r}, v{vT} bitop3:0xf6")
        A(f"v_or_b32 v{c0}, v{c0}, v{c1}")
        A(f"v_and_b32 v{c0}, 0xff, v{c0}")
        A(f"v_cmp_ne_u32 vcc, 0, v{c0}")
        A("s_cmp_lg_u64 vcc, 0")
        A(f"s_cbranch_scc1 {lretry}")
    def retry_block(lretry, lpoll, sleep=1):
        A(f"{lretry}:")
        if sleep: A(f"s_sleep {sleep}")
        A("s_sub_u32 s15, s15, 1")
        A(f"s_cbranch_scc0 {lpoll}")
        A("s_endpgm")
    def tag(r, vT):
        A(f"v_and_or_b32 v{r}, v{r}, s58, v{vT}")
    def mktag(vT):
        A("s_add_u32 s12, s13, 1"); A("s_and_b32 s12, s12, 0xff")
        A(f"v_mov_b32 v{vT}, s12")
    def rnd(r):
        A(f"v_cvt_pk_bf16_f32 v{r}, v{r}, v{r}"); A(f"v_and_b32 v{r}, 0xffff0000, v{r}")
    def allred16(op, r, steps):
        for st in steps: A(f"{op}_dpp v{r}, v{r}, v{r} {st} row_mask:0xf bank_mask:0xf")
    def allred_swap(op, r, t, which):
        A(f"v_mov_b32 v{t}, v{r}")
        A(f"v_permlane{which}_swap_b32 v{t}, v{r}")
        A(f"{op} v{r}, v{t}, v{r}")

    stamp(0)
    A("s_cmp_ge_u32 s2, 256"); A("s_cbranch_scc1 L_end")
    A("v_lshrrev_b32 v1, 6, v0")
    A("v_and_b32 v0, 63, v0")
    A("v_readfirstlane_b32 s3, v1")
    A("s_cmp_eq_u32 s3, 11"); A("s_cbranch_scc0 L_noinit")
    A("v_lshlrev_b32 v1, 4, v0")
    for r in range(2, 6): A(f"v_mov_b32 v{r}, 0")
    A("ds_write_b128 v1, v[2:5]")
    A("v_mov_b32 v6, 0xff800000"); A("v_mov_b32 v7, 0xff800000")
    A(f"ds_write_b64 v2, v[6:7] offset:{L_MAX}")
    A("s_waitcnt lgkmcnt(0)")
    A("L_noinit:")
    A("s_load_dwordx16 s[16:31], s[0:1], 0")
    A("s_load_dwordx8 s[32:39], s[0:1], 64")
    A("s_and_b32 s4, s2, 7")
    A("s_lshr_b32 s5, s2, 3")
    A("s_lshr_b32 s6, s5, 4")
    A("s_and_b32 s7, s5, 15")
    A("s_and_b32 s8, s3, 3")
    A("s_lshl_b32 s9, s4, 2"); A("s_xor_b32 s9, s9, s5")
    A("s_mul_i32 s10, s5, 37"); A("s_lshr_b32 s10, s10, 8")
    A("s_mul_i32 s11, s10, 7"); A("s_sub_u32 s11, s5, s11")
    A("s_lshl_b32 s14, s4, 2"); A("s_add_u32 s10, s10, s14")
    A(f"s_mov_b32 s15, {SPIN}")
    A("s_mov_b32 s56, 0x05040100"); A("s_mov_b32 s57, 0x07060302"); A("s_mov_b32 s58, 0xffffff00")
    A(f"s_mov_b32 s59, {CEXP}")
    A("s_lshl_b32 s60, s6, 3"); A("s_add_u32 s60, s60, s4"); A("s_lshl_b32 s60, s60, 24")
    A("s_lshl_b32 s14, s7, 17"); A("s_add_u32 s60, s60, s14"); A(f"s_add_u32 s60, s60, {28672*512}")
    A("s_barrier")
    A("s_waitcnt lgkmcnt(0)")
    A("s_load_dword s13, s[38:39], 0")
    srd(40, 38, 39, WS_SIZE)
    A("s_cmp_ge_u32 s3, 8"); A("s_cbranch_scc1 L_V")
    A("s_cmp_lt_u32 s3, 4"); A("s_cbranch_scc1 L_AUX")

    A("s_setprio 2")
    srd(44, 18, 19, 131072, "s60")
    A("v_and_b32 v2, 3, v0"); A("v_lshlrev_b32 v1, 9, v2")
    A("v_lshrrev_b32 v2, 2, v0"); A("v_lshl_add_u32 v1, v2, 4, v1")
    A("s_lshl_b32 s14, s8, 15"); A("v_add_u32 v1, s14, v1")
    A("s_lshr_b32 s61, s9, 1"); A("s_lshl_b32 s14, s8, 2"); A("s_xor_b32 s61, s61, s14")
    A("s_lshl_b32 s62, s61, 11")
    KD = 32
    for t in range(16):
        A(f"s_xor_b32 s14, s62, {t*2048}")
        r = KD + 8*t
        A(f"buffer_load_dwordx4 v[{r}:{r+3}], v1, s[44:47], s14 offen nt")
        A(f"buffer_load_dwordx4 v[{r+4}:{r+7}], v1, s[44:47], s14 offen offset:256 nt")
    stamp(1)
    A("v_and_b32 v2, 1, v0"); A("v_lshlrev_b32 v2, 9, v2")
    A("v_lshrrev_b32 v3, 2, v0"); A("v_lshl_add_u32 v2, v3, 4, v2")
    A("s_lshl_b32 s14, s61, 2"); A("s_lshl_b32 s62, s8, 6"); A("s_or_b32 s14, s14, s62")
    A("s_lshr_b32 s62, s9, 3"); A("s_lshl_b32 s62, s62, 6"); A("s_xor_b32 s14, s14, s62")
    A("s_and_b32 s62, s9, 7"); A("s_xor_b32 s14, s14, s62")
    A("v_xor_b32 v4, s14, v0"); A("v_lshlrev_b32 v4, 1, v4")
    A("v_mov_b32 v5, 0")
    spin_lds(F_Q, 1, 5, 6)
    A(f"ds_read_b128 v[8:11], v2 offset:{L_Q}")
    A(f"ds_read_b128 v[12:15], v2 offset:{L_Q+256}")
    mktag(7)
    A("s_waitcnt lgkmcnt(0)")
    def acc(t):
        B = t // 4
        return (16 if B == 0 else KD + 32*(B-1)) + 4*(t % 4)
    for B in range(4):
        A(f"s_waitcnt vmcnt({32-8*(B+1)})")
        for step in range(4):
            for tt in range(4):
                t = 4*B + tt
                a = acc(t); kd = KD + 8*t + 2*step; q = 8 + 2*step
                c = "0" if step == 0 else f"v[{a}:{a+3}]"
                A(f"v_mfma_f32_4x4x4_16b_bf16 v[{a}:{a+3}], v[{q}:{q+1}], v[{kd}:{kd+1}], {c}")
    val = {(t, h): acc(t) + h for t in range(16) for h in range(2)}
    for t in range(8):
        for h in range(2): A(f"v_permlane32_swap_b32 v{val[t,h]}, v{val[t+8,h]}")
    for t in range(8):
        for h in range(2): A(f"v_add_f32 v{val[t,h]}, v{val[t,h]}, v{val[t+8,h]}")
    for t in range(4):
        for h in range(2): A(f"v_permlane16_swap_b32 v{val[t,h]}, v{val[t+4,h]}")
    for t in range(4):
        for h in range(2): A(f"v_add_f32 v{val[t,h]}, v{val[t,h]}, v{val[t+4,h]}")
    for t in range(2):
        for h in range(2):
            o = 160 + 2*t + h
            A(f"v_add_f32_dpp v{o}, v{val[t,h]}, v{val[t,h]} row_ror:8 row_mask:0xf bank_mask:0x3")
    for t in range(2):
        for h in range(2):
            o = 160 + 2*t + h
            A(f"v_add_f32_dpp v{o}, v{val[t+2,h]}, v{val[t+2,h]} row_ror:8 row_mask:0xf bank_mask:0xc")
    for h in range(2): A(f"v_add_f32_dpp v{164+h}, v{160+h}, v{160+h} row_shl:4 row_mask:0xf bank_mask:0x5")
    for h in range(2): A(f"v_add_f32_dpp v{164+h}, v{162+h}, v{162+h} row_shr:4 row_mask:0xf bank_mask:0xa")
    A("v_cvt_pk_bf16_f32 v166, v164, v165")
    A("v_lshlrev_b32 v164, 16, v166"); A("v_and_b32 v165, 0xffff0000, v166")
    stamp(2)
    A("v_mov_b32 v16, v164"); A("v_mov_b32 v17, v165")
    A("v_permlane32_swap_b32 v16, v17"); A("v_max_f32 v16, v16, v17")
    allred_swap("v_max_f32", 16, 17, 16)
    allred16("v_max_f32", 16, ["row_ror:8", "row_ror:4", "row_ror:2", "row_ror:1"])
    A("v_lshrrev_b32 v18, 5, v0"); A("v_lshlrev_b32 v18, 2, v18")
    A("v_mov_b32 v19, 1")
    A("s_mov_b32 exec_lo, 1"); A("s_mov_b32 exec_hi, 1")
    A(f"ds_max_f32 v18, v16 offset:{L_MAX}")
    A("s_mov_b32 exec_hi, 0")
    A(f"ds_add_u32 v5, v19 offset:{F_M}")
    A("s_mov_b64 exec, -1")
    spin_lds(F_M, 4, 5, 6)
    A(f"ds_read_b64 v[20:21], v5 offset:{L_MAX}")
    A("s_waitcnt lgkmcnt(0)")
    A("v_sub_f32 v22, v164, v20"); A("v_sub_f32 v23, v165, v21")
    A("v_mul_f32 v22, s59, v22"); A("v_mul_f32 v23, s59, v23")
    A("v_exp_f32 v22, v22"); A("v_exp_f32 v23, v23")
    A("v_cvt_pk_bf16_f32 v24, v22, v23")
    A(f"ds_write_b16 v4, v24 offset:{L_P}")
    A(f"ds_write_b16_d16_hi v4, v24 offset:{L_P+512}")
    A("s_mov_b64 exec, 1")
    A(f"ds_add_u32 v5, v19 offset:{F_P}")
    A("s_mov_b64 exec, -1")
    stamp(3)
    A("v_permlane32_swap_b32 v22, v23"); A("v_add_f32 v27, v22, v23")
    allred_swap("v_add_f32", 27, 17, 16)
    allred16("v_add_f32", 27, ["row_ror:8", "row_ror:4", "row_ror:2", "row_ror:1"])
    A("v_cmp_lt_u32 vcc, 31, v0")
    A("v_cndmask_b32 v26, v20, v21, vcc")
    tag(26, 7); tag(27, 7)
    A("s_lshl_b32 s14, s4, 1"); A("s_add_u32 s14, s14, s6"); A("s_lshl_b32 s14, s14, 4"); A("s_add_u32 s14, s14, s7")
    A("s_lshl_b32 s14, s14, 2"); A("s_add_u32 s14, s14, s8"); A("s_lshl_b32 s14, s14, 4"); A(f"s_add_u32 s14, s14, {ST}")
    A("v_lshlrev_b32 v18, 1, v18")
    A("s_mov_b32 exec_lo, 1"); A("s_mov_b32 exec_hi, 1")
    A("buffer_store_dwordx2 v[26:27], v18, s[40:43], s14 offen sc1")
    A("s_mov_b64 exec, -1")
    A("s_cmp_ge_u32 s5, 28"); A("s_cbranch_scc1 L_Kend")
    A("s_setprio 0")
    srd(44, 24, 25, 4096*896); srd(48, 32, 33, 1792*896)
    A("v_lshrrev_b32 v2, 3, v0"); A("v_and_b32 v3, 7, v0"); A("v_lshlrev_b32 v3, 4, v3")
    A("v_mul_u32_u24 v1, 3584, v2"); A("v_add_u32 v1, v1, v3")
    A("v_mul_u32_u24 v4, 1792, v2"); A("v_add_u32 v4, v4, v3")
    A("s_lshl_b32 s14, s10, 2"); A("s_add_u32 s14, s14, s8")
    A("s_lshl_b32 s62, s11, 7")
    A("s_mul_i32 s61, s14, 28672"); A("s_add_u32 s61, s61, s62")
    A("s_mul_i32 s63, s14, 12544"); A("s_add_u32 s63, s63, s62")
    for j in range(4): A(f"buffer_load_dwordx4 v[{32+4*j}:{35+4*j}], v1, s[44:47], s61 offen offset:{896*j} nt")
    for r in range(48, 56): A(f"v_mov_b32 v{r}, 0")
    A("s_mov_b32 exec_hi, 0x00ffffff")
    for j in range(2): A(f"buffer_load_dwordx4 v[{48+4*j}:{51+4*j}], v4, s[48:51], s63 offen offset:{896*j} nt")
    A("s_mov_b64 exec, -1")
    BO = 64; PO = 96; AV = 112
    for d in range(8): A(f"v_mov_b32 v{BO+4*d+3}, 0")
    for r in range(AV, AV+16): A(f"v_mov_b32 v{r}, 0")
    A("v_and_b32 v2, 1, v0"); A("v_lshrrev_b32 v3, 4, v0"); A("v_lshl_add_u32 v2, v3, 1, v2")
    A("v_bfe_u32 v3, v0, 1, 1")
    A("v_bfe_u32 v6, v0, 2, 2")
    A("v_lshlrev_b32 v1, 4, v2"); A("v_lshl_add_u32 v1, v3, 13, v1"); A("v_lshl_add_u32 v1, v6, 9, v1")
    A("s_lshl_b32 s61, s10, 14"); A("s_lshl_b32 s14, s8, 7"); A("s_add_u32 s61, s61, s14"); A(f"s_add_u32 s61, s61, {OP}")
    A("s_add_u32 s63, s61, 4096")
    A("v_lshlrev_b32 v4, 2, v2"); A("v_lshl_add_u32 v4, v3, 7, v4")
    A("s_mul_i32 s14, s8, 28"); A(f"s_add_u32 s14, s14, {L_H}"); A("v_add_u32 v4, s14, v4")
    A("v_cmp_eq_u32 vcc, 7, v2"); A(f"v_mov_b32 v6, {L_ZERO}"); A("v_cndmask_b32 v4, v4, v6, vcc")
    A("v_and_b32 v2, 15, v0"); A("v_lshlrev_b32 v2, 5, v2"); A("v_lshrrev_b32 v3, 4, v0"); A("v_lshl_add_u32 v2, v3, 3, v2")
    A("s_lshl_b32 s14, s8, 9"); A("v_add_u32 v2, s14, v2")
    A("s_waitcnt vmcnt(0)")
    for c in range(4):
        for e in range(2):
            d = 2*c + e
            for q, (lo, hi) in enumerate([(32, 36), (40, 44), (48, 52)]):
                A(f"v_perm_b32 v{BO+4*d+q}, v{hi+c}, v{lo+c}, s{56+e}")
    A("s_setprio 3")
    A("s_barrier")
    lp = lab("pa"); lr = lab("ra"); ld = lab("da")
    A("ds_read_b32 v6, v4")
    A(f"{lp}:")
    for u in range(4):
        A(f"buffer_load_dwordx4 v[{PO+4*u}:{PO+4*u+3}], v1, s[40:43], s{61 if u < 2 else 63} offen offset:{2048*(u%2)} sc1")
    A("s_waitcnt lgkmcnt(0)")
    for rg in range(4): A(f"v_mov_b32_dpp v{AV+4*rg+2}, v6 quad_perm:[0,1,2,3] row_mask:0xf bank_mask:{1<<rg}")
    A("s_waitcnt vmcnt(0)")
    tagcheck(list(range(PO, PO+16)), 7, 8, 9, lr)
    stamp(4)
    for k in range(4): A(f"v_add_f32 v{PO+k}, v{PO+k}, v{PO+4+k}")
    for k in range(4): A(f"v_add_f32 v{PO+8+k}, v{PO+8+k}, v{PO+12+k}")
    for k in range(4): A(f"v_add_f32 v{PO+k}, v{PO+k}, v{PO+8+k}")
    for st in ("row_ror:4", "row_ror:8"):
        for k in range(4): A(f"v_add_f32_dpp v{PO+k}, v{PO+k}, v{PO+k} {st} row_mask:0xf bank_mask:0xf")
    A(f"v_cvt_pk_bf16_f32 v8, v{PO}, v{PO+1}"); A(f"v_cvt_pk_bf16_f32 v9, v{PO+2}, v{PO+3}")
    for rg in range(4):
        for k in range(2): A(f"v_mov_b32_dpp v{AV+4*rg+k}, v{8+k} quad_perm:[0,1,2,3] row_mask:0xf bank_mask:{1<<rg}")
    for rg in range(4):
        for e in range(2):
            d = 2*rg + e; a = 16 + 4*e
            c = "0" if rg == 0 else f"v[{a}:{a+3}]"
            A(f"v_mfma_f32_16x16x32_bf16 v[{a}:{a+3}], v[{AV+4*rg}:{AV+4*rg+3}], v[{BO+4*d}:{BO+4*d+3}], {c}")
    for e in range(2):
        a = 16 + 4*e
        A(f"v_add_f32_dpp v{10+e}, v{a+1}, v{a} row_ror:8 row_mask:0xf bank_mask:0x3")
        A(f"v_add_f32_dpp v{10+e}, v{a+2}, v{a+3} row_ror:8 row_mask:0xf bank_mask:0xc")
    A(f"ds_write_b64 v2, v[10:11] offset:{L_Y}")
    A("s_waitcnt lgkmcnt(0)")
    A("s_barrier")
    A("s_cmp_lg_u32 s8, 0"); A("s_cbranch_scc1 L_end")
    A("s_mov_b32 exec_hi, 0")
    A("v_lshlrev_b32 v1, 4, v0")
    for k in range(4): A(f"ds_read_b128 v[{PO+4*k}:{PO+4*k+3}], v1 offset:{L_Y+512*k}")
    A("s_lshl_b32 s14, s11, 5"); A("s_add_u32 s14, s14, s10"); A("s_lshl_b32 s14, s14, 9"); A(f"s_add_u32 s14, s14, {YP}")
    A("s_waitcnt lgkmcnt(2)")
    for k in range(4): A(f"v_add_f32 v{PO+k}, v{PO+k}, v{PO+4+k}")
    A("s_waitcnt lgkmcnt(0)")
    for k in range(4): A(f"v_add_f32 v{PO+8+k}, v{PO+8+k}, v{PO+12+k}")
    for k in range(4): A(f"v_add_f32 v{PO+k}, v{PO+k}, v{PO+8+k}")
    for k in range(4): tag(PO+k, 7)
    A(f"buffer_store_dwordx4 v[{PO}:{PO+3}], v1, s[40:43], s14 offen sc1")
    stamp(5)
    flush([(1, 3), (2, 4), (3, 5), (4, 9), (5, 10)])
    A("s_endpgm")
    retry_block(lr, lp, sleep=0)
    A("L_Kend:")
    flush([(1, 3), (2, 4), (3, 5)])
    A("s_endpgm")

    A("L_V:")
    A("s_setprio 1")
    srd(44, 20, 21, 131072, "s60")
    A("v_lshrrev_b32 v2, 3, v0"); A("v_lshlrev_b32 v1, 12, v2")
    A("v_and_b32 v2, 7, v0"); A("v_lshl_add_u32 v1, v2, 4, v1")
    A("s_lshl_b32 s14, s8, 7"); A("v_add_u32 v1, s14, v1")
    A("s_and_b32 s62, s9, 7"); A("s_lshl_b32 s62, s62, 9"); A("s_lshr_b32 s14, s9, 3"); A("s_lshl_b32 s14, s14, 15"); A("s_or_b32 s62, s62, s14")
    VD = 40
    for t in range(32):
        A(f"s_xor_b32 s14, s62, {(t>>3)*32768 + (t&7)*512}")
        r = VD + 4*t
        A(f"buffer_load_dwordx4 v[{r}:{r+3}], v1, s[44:47], s14 offen nt")
    stamp(1)
    A("v_and_b32 v6, 1, v0"); A("v_lshrrev_b32 v7, 4, v0"); A("v_lshl_add_u32 v6, v7, 1, v6"); A("v_lshlrev_b32 v6, 4, v6")
    A("v_bfe_u32 v7, v0, 1, 1"); A("v_lshl_add_u32 v6, v7, 9, v6"); A(f"v_add_u32 v6, {L_P}, v6")
    for rg in range(4): A(f"v_mov_b32 v{2+rg}, {L_ZERO}")
    for rg in range(4): A(f"v_mov_b32_dpp v{2+rg}, v6 quad_perm:[0,1,2,3] row_mask:0xf bank_mask:{1<<rg}")
    A("v_mov_b32 v6, 0")
    spin_lds(F_P, 4, 6, 7)
    A("s_setprio 3")
    def rdA(g4, base):
        for rg in range(4): A(f"ds_read_b128 v[{base+4*rg}:{base+4*rg+3}], v{2+rg} offset:{128*g4}")
    Abase = {0: 24, 1: VD, 2: VD+16, 3: 24}
    rdA(0, 24)
    for g4 in range(3):
        ab = Abase[g4]; D = VD + 32*g4
        A(f"s_waitcnt vmcnt({24-8*g4}) lgkmcnt(0)")
        for c in range(4):
            for e in range(2):
                for q in range(4):
                    A(f"v_perm_b32 v{16+4*e+q}, v{D+8*q+4+c}, v{D+8*q+c}, s{56+e}")
            for e in range(2):
                a = 8 + 4*e
                cc = "0" if (g4 == 0 and c == 0) else f"v[{a}:{a+3}]"
                A(f"v_mfma_f32_16x16x32_bf16 v[{a}:{a+3}], v[{ab+4*c}:{ab+4*c+3}], v[{16+4*e}:{19+4*e}], {cc}")
        if g4 == 0:
            rdA(1, VD); rdA(2, VD+16); rdA(3, 24)
    spin_lds(F_F, 1, 6, 7)
    A("v_bfe_u32 v7, v0, 3, 1"); A("v_lshlrev_b32 v1, 2, v7")
    A(f"ds_read_b32 v2, v1 offset:{L_FAC}")
    mktag(3)
    A("v_and_b32 v1, 7, v0"); A("v_lshlrev_b32 v1, 5, v1"); A("v_lshl_add_u32 v1, v7, 15, v1")
    A("v_lshrrev_b32 v7, 4, v0"); A("v_lshl_add_u32 v1, v7, 3, v1")
    A("s_lshl_b32 s61, s4, 16"); A("s_lshr_b32 s14, s8, 1"); A("s_lshl_b32 s14, s14, 14"); A("s_add_u32 s61, s61, s14")
    A("s_lshl_b32 s14, s5, 9"); A("s_add_u32 s61, s61, s14")
    A("s_and_b32 s14, s8, 1"); A("s_lshl_b32 s14, s14, 8"); A("s_add_u32 s61, s61, s14"); A(f"s_add_u32 s61, s61, {OP}")
    TT = VD + 32
    D = VD + 96
    for q in range(4):
        A(f"s_waitcnt vmcnt({6-2*q})")
        if q == 3: stamp(2)
        for c in range(4):
            for e in range(2):
                A(f"v_perm_b32 v{TT+4*(2*c+e)+q}, v{D+8*q+4+c}, v{D+8*q+c}, s{56+e}")
    A("s_waitcnt lgkmcnt(0)")
    for c in range(4):
        for e in range(2):
            a = 8 + 4*e; d = 2*c + e
            A(f"v_mfma_f32_16x16x32_bf16 v[{a}:{a+3}], v[{24+4*c}:{27+4*c}], v[{TT+4*d}:{TT+4*d+3}], v[{a}:{a+3}]")
    for e in range(2):
        a = 8 + 4*e
        A(f"v_add_f32_dpp v{4+e}, v{a+1}, v{a} row_ror:8 row_mask:0xf bank_mask:0x3")
        A(f"v_add_f32_dpp v{4+e}, v{a+2}, v{a+3} row_ror:8 row_mask:0xf bank_mask:0xc")
    A("v_mul_f32 v4, v2, v4"); A("v_mul_f32 v5, v2, v5")
    tag(4, 3); tag(5, 3)
    A("buffer_store_dwordx2 v[4:5], v1, s[40:43], s61 offen sc1")
    stamp(3)
    A("s_barrier")
    flush([(1, 6), (2, 7), (3, 8)])
    A("s_endpgm")

    A("L_AUX:")
    A("s_setprio 3")
    A("s_cmp_eq_u32 s3, 3"); A("s_cbranch_scc1 L_A3")
    A("s_cmp_eq_u32 s3, 2"); A("s_cbranch_scc1 L_A2")
    srd(44, 16, 17, 1792)
    A("s_cmp_eq_u32 s3, 1"); A("s_cbranch_scc1 L_A1pre")
    A("s_lshr_b32 s61, s5, 3")
    A("s_mul_i32 s14, s61, 112")
    A("v_lshrrev_b32 v2, 3, v0"); A("v_mul_u32_u24 v2, 14, v2"); A("v_add_u32 v2, s14, v2"); A("v_lshlrev_b32 v2, 13, v2")
    A("v_and_b32 v3, 7, v0"); A("v_lshl_add_u32 v2, v3, 4, v2")
    A("s_and_b32 s62, s5, 7"); A("s_lshl_b32 s63, s4, 3"); A("s_add_u32 s62, s62, s63"); A("s_lshl_b32 s62, s62, 7")
    A("v_add_u32 v2, s62, v2"); A("v_mov_b32 v3, 0")
    A("v_lshl_add_u64 v[2:3], v[2:3], 0, s[22:23]")
    A("s_mov_b32 s62, 8192")
    A("v_and_b32 v4, 1, v0"); A("v_lshrrev_b32 v5, 4, v0"); A("v_lshl_add_u32 v4, v5, 1, v4")
    A("s_branch L_S1")
    A("L_A1pre:")
    A("s_cmp_ge_u32 s5, 28"); A("s_cbranch_scc1 L_end")
    A("s_mul_i32 s14, s4, 56")
    A("v_lshrrev_b32 v4, 4, v0")
    A("v_mul_u32_u24 v2, 14, v4"); A("v_add_u32 v2, s14, v2"); A("v_mul_u32_u24 v2, 3584, v2")
    A("v_and_b32 v3, 7, v0"); A("v_lshl_add_u32 v2, v3, 4, v2")
    A("s_lshl_b32 s62, s5, 7"); A("v_add_u32 v2, s62, v2"); A("v_mov_b32 v3, 0")
    A("v_lshl_add_u64 v[6:7], v[2:3], 0, s[30:31]")
    A("v_lshl_add_u64 v[2:3], v[2:3], 0, s[28:29]")
    A("v_mov_b32_dpp v2, v6 quad_perm:[0,1,2,3] row_mask:0xf bank_mask:0xc")
    A("v_mov_b32_dpp v3, v7 quad_perm:[0,1,2,3] row_mask:0xf bank_mask:0xc")
    A("s_mov_b32 s62, 3584")
    A("L_S1:")
    A("s_mov_b32 s63, 0")
    A("v_mul_u32_u24 v4, 28, v4"); A("s_lshl_b32 s14, s14, 1"); A("v_add_u32 v4, s14, v4")
    A("v_bfe_u32 v5, v0, 1, 1"); A("v_mul_u32_u24 v5, 896, v5"); A("v_add_u32 v4, v4, v5")
    A("v_lshrrev_b32 v6, 2, v0"); A("v_and_b32 v7, 1, v0"); A("v_lshl_add_u32 v6, v6, 1, v7")
    A("v_lshl_add_u32 v5, v6, 5, v5")
    A("v_cmp_gt_u32 vcc, 28, v6"); A("v_mov_b32 v7, 0x10000"); A("v_cndmask_b32 v5, v7, v5, vcc")
    A("buffer_load_dwordx4 v[8:11], v5, s[44:47], 0 offen")
    A("buffer_load_dwordx4 v[12:15], v5, s[44:47], 0 offen offset:16")
    A("buffer_load_dwordx4 v[16:19], v4, s[44:47], 0 offen")
    A("buffer_load_dwordx3 v[20:22], v4, s[44:47], 0 offen offset:16")
    WD = 32
    for j in range(14):
        A(f"global_load_dwordx4 v[{WD+4*j}:{WD+4*j+3}], v[2:3], off nt")
        if j < 13: A("v_lshl_add_u64 v[2:3], v[2:3], 0, s[62:63]")
    A("s_waitcnt vmcnt(16)")
    X = 96
    for k in range(8):
        A(f"v_lshlrev_b32 v{X+2*k}, 16, v{8+k}"); A(f"v_and_b32 v{X+2*k+1}, 0xffff0000, v{8+k}")
    for k in range(8): A(f"v_add_f32 v{8+k}, v{X+2*k}, v{X+2*k+1}")
    for k in range(4): A(f"v_add_f32 v{8+k}, v{8+k}, v{12+k}")
    A("v_add_f32 v8, v8, v10"); A("v_add_f32 v9, v9, v11"); A("v_add_f32 v8, v8, v9")
    def red_b(r, t):
        allred16("v_add_f32", r, ["quad_perm:[1,0,3,2]", "row_ror:4", "row_ror:8"])
        allred_swap("v_add_f32", r, t, 16); allred_swap("v_add_f32", r, t, 32)
    red_b(8, 9)
    A("v_mul_f32 v8, 0x3b124925, v8")
    for k in range(16): A(f"v_sub_f32 v{X+k}, v{X+k}, v8")
    A(f"v_mul_f32 v10, v{X}, v{X}"); A(f"v_mul_f32 v11, v{X+1}, v{X+1}")
    for k in range(2, 16): A(f"v_fmac_f32 v{10+k%2}, v{X+k}, v{X+k}")
    A("v_add_f32 v10, v10, v11")
    A("v_cndmask_b32 v10, 0, v10, vcc")
    red_b(10, 9)
    A("v_mul_f32 v10, 0x3b124925, v10")
    rnd(8); rnd(10)
    A("v_add_f32 v10, 0x3727c5ac, v10"); rnd(10)
    A("v_sqrt_f32 v10, v10"); rnd(10)
    A("v_rcp_f32 v11, v10")
    A("v_fma_f32 v12, -v10, v11, 1.0"); A("v_fma_f32 v11, v12, v11, v11")
    A("s_waitcnt vmcnt(14)")
    for k in range(7):
        A(f"v_lshlrev_b32 v{X+2*k}, 16, v{16+k}"); A(f"v_and_b32 v{X+2*k+1}, 0xffff0000, v{16+k}")
    for k in range(14): A(f"v_sub_f32 v{X+k}, v{X+k}, v8")
    for k in range(7): A(f"v_cvt_pk_bf16_f32 v{16+k}, v{X+2*k}, v{X+2*k+1}")
    for k in range(7):
        A(f"v_lshlrev_b32 v{X+2*k}, 16, v{16+k}"); A(f"v_and_b32 v{X+2*k+1}, 0xffff0000, v{16+k}")
    for k in range(14): A(f"v_mul_f32 v{X+k}, v{X+k}, v11")
    for k in range(7): A(f"v_cvt_pk_bf16_f32 v{16+k}, v{X+2*k}, v{X+2*k+1}")
    A("v_mov_b32 v23, 0")
    TB = 88
    A("v_mov_b32 v95, 0"); A("v_mov_b32 v31, 0")
    AC = 112
    A("s_waitcnt vmcnt(0) lgkmcnt(0)")
    mktag(1)
    for d in range(8):
        c = d >> 1; e = d & 1; T = TB if e == 0 else 24
        for q in range(7): A(f"v_perm_b32 v{T+q}, v{WD+8*q+4+c}, v{WD+8*q+c}, s{56+e}")
        a = AC + 4*d
        A(f"v_mfma_f32_16x16x32_bf16 v[{a}:{a+3}], v[16:19], v[{T}:{T+3}], 0")
        A(f"v_mfma_f32_16x16x32_bf16 v[{a}:{a+3}], v[20:23], v[{T+4}:{T+7}], v[{a}:{a+3}]")
    A("v_and_b32 v5, 7, v0"); A("v_lshlrev_b32 v5, 5, v5"); A("v_lshrrev_b32 v6, 4, v0"); A("v_lshl_add_u32 v5, v6, 3, v5")
    A("v_bfe_u32 v6, v0, 3, 1")
    A("s_cmp_eq_u32 s3, 1"); A("s_cbranch_scc1 L_A1post")
    for rg in range(4):
        for e in range(2):
            a = AC + 4*(2*rg+e)
            A(f"v_add_f32_dpp v{8+e}, v{a+1}, v{a} row_ror:8 row_mask:{1<<rg} bank_mask:0x3")
            A(f"v_add_f32_dpp v{8+e}, v{a+2}, v{a+3} row_ror:8 row_mask:{1<<rg} bank_mask:0xc")
    tag(8, 1); tag(9, 1)
    A("v_lshl_add_u32 v5, v6, 13, v5")
    A("s_lshl_b32 s14, s4, 14"); A("s_lshl_b32 s62, s61, 11"); A("s_add_u32 s14, s14, s62")
    A("s_and_b32 s62, s5, 7"); A("s_lshl_b32 s62, s62, 8"); A("s_add_u32 s14, s14, s62"); A(f"s_add_u32 s14, s14, {QP}")
    A("buffer_store_dwordx2 v[8:9], v5, s[40:43], s14 offen sc1")
    stamp(1)
    A("s_lshl_b32 s61, s4, 14"); A("s_lshl_b32 s14, s6, 13"); A("s_add_u32 s61, s61, s14"); A(f"s_add_u32 s61, s61, {QP}")
    A("s_add_u32 s62, s61, 4096")
    A("v_lshlrev_b32 v5, 4, v0")
    A("s_waitcnt vmcnt(0)")
    lp = lab("pq"); lr = lab("rq")
    A(f"{lp}:")
    for k in range(8):
        A(f"buffer_load_dwordx4 v[{WD+4*k}:{WD+4*k+3}], v5, s[40:43], s{61 if k < 4 else 62} offen offset:{1024*(k%4)} sc1")
    A("s_waitcnt vmcnt(0)")
    tagcheck(list(range(WD, WD+32)), 1, 8, 9, lr)
    for k in range(8): A(f"v_add_f32 v{WD+k}, v{WD+k}, v{WD+8+k}")
    for k in range(8): A(f"v_add_f32 v{WD+16+k}, v{WD+16+k}, v{WD+24+k}")
    for k in range(8): A(f"v_add_f32 v{WD+k}, v{WD+k}, v{WD+16+k}")
    for k in range(4): A(f"v_cvt_pk_bf16_f32 v{8+k}, v{WD+2*k}, v{WD+2*k+1}")
    A("v_lshlrev_b32 v5, 3, v0")
    A(f"ds_write_b64 v5, v[8:9] offset:{L_Q}")
    A(f"ds_write_b64 v5, v[10:11] offset:{L_Q+512}")
    A("v_mov_b32 v6, 0"); A("v_mov_b32 v7, 1")
    A(f"ds_write_b32 v6, v7 offset:{F_Q}")
    A("s_waitcnt lgkmcnt(0)")
    stamp(2)
    flush([(0, 0), (1, 1), (2, 2)])
    A("s_endpgm")
    retry_block(lr, lp, sleep=4)
    A("L_A1post:")
    A("s_nop 7")
    for rg in range(4):
        for b in range(2):
            for e in range(2):
                a = AC + 4*(2*rg+e) + 2*b
                A(f"v_mov_b32_dpp v{8+2*b+e}, v{a} quad_perm:[0,1,2,3] row_mask:{1<<rg} bank_mask:0xf")
    for k in range(4): tag(8+k, 1)
    A("v_mul_u32_u24 v6, 14336, v6"); A("v_add_u32 v5, v5, v6")
    A("s_mul_i32 s14, s4, 28672"); A("s_lshl_b32 s62, s5, 8"); A("s_add_u32 s14, s14, s62"); A(f"s_add_u32 s14, s14, {FPB}")
    A("s_add_u32 s62, s14, 7168")
    A("buffer_store_dwordx2 v[8:9], v5, s[40:43], s14 offen sc1")
    A("buffer_store_dwordx2 v[10:11], v5, s[40:43], s62 offen sc1")
    A("v_lshrrev_b32 v6, 4, v0"); A("v_mul_u32_u24 v5, 7168, v6"); A("v_and_b32 v7, 15, v0"); A("v_lshl_add_u32 v5, v7, 4, v5")
    A("s_mul_i32 s61, s10, 224"); A(f"s_add_u32 s61, s61, {FPB}")
    A("s_mov_b32 exec_lo, 0x3fff3fff"); A("s_mov_b32 exec_hi, 0x3fff3fff")
    A("s_waitcnt vmcnt(0)")
    lp = lab("pf"); lr = lab("rf")
    A(f"{lp}:")
    A("s_mov_b32 s62, s61")
    for k in range(8):
        A(f"buffer_load_dwordx4 v[{WD+4*k}:{WD+4*k+3}], v5, s[40:43], s62 offen sc1")
        if k < 7: A("s_add_u32 s62, s62, 28672")
    A("s_waitcnt vmcnt(0)")
    tagcheck(list(range(WD, WD+32)), 1, 8, 9, lr)
    for k in range(16): A(f"v_add_f32 v{WD+k}, v{WD+k}, v{WD+16+k}")
    for k in range(8): A(f"v_add_f32 v{WD+k}, v{WD+k}, v{WD+8+k}")
    for k in range(4): A(f"v_add_f32 v{WD+k}, v{WD+k}, v{WD+4+k}")
    for k in range(4): rnd(WD+k)
    A("s_mov_b64 exec, -1")
    for k in range(4): A(f"v_mov_b32 v{WD+4+k}, v{WD+k}")
    for k in range(4): A(f"v_permlane32_swap_b32 v{WD+k}, v{WD+4+k}")
    for k in range(4): A(f"v_mul_f32 v{8+k}, v{WD+k}, v{WD+k}")
    A("s_mov_b32 s14, 0x3d372713")
    for k in range(4): A(f"v_fma_f32 v{8+k}, v{8+k}, s14, 1.0")
    for k in range(4): A(f"v_mul_f32 v{8+k}, v{8+k}, v{WD+k}")
    for k in range(4): A(f"v_mul_f32 v{8+k}, 0xc0135761, v{8+k}")
    for k in range(4): A(f"v_exp_f32 v{8+k}, v{8+k}")
    for k in range(4): A(f"v_add_f32 v{8+k}, 1.0, v{8+k}")
    for k in range(4): A(f"v_rcp_f32 v{8+k}, v{8+k}")
    for k in range(4): A(f"v_mul_f32 v{8+k}, v{8+k}, v{WD+k}")
    for k in range(4): rnd(8+k)
    for k in range(4): A(f"v_mul_f32 v{8+k}, v{8+k}, v{WD+4+k}")
    A("v_cvt_pk_bf16_f32 v12, v8, v9"); A("v_cvt_pk_bf16_f32 v13, v10, v11")
    A("v_lshlrev_b32 v5, 3, v0")
    A("s_mov_b32 exec_lo, 0x3fff3fff"); A("s_mov_b32 exec_hi, 0")
    A(f"ds_write_b64 v5, v[12:13] offset:{L_H}")
    A("s_waitcnt lgkmcnt(0)")
    stamp(1)
    flush([(1, 13)], cond_sub0=False)
    A("s_endpgm")
    retry_block(lr, lp, sleep=8)

    A("L_A2:")
    A("s_getpc_b64 s[60:61]")
    A("L_pc:")
    A(f"s_sub_u32 s60, s60, L_pc-{NAME}_kernel"); A("s_subb_u32 s61, s61, 0")
    A("v_lshlrev_b32 v1, 7, v0")
    A("global_load_dword v2, v1, s[60:61]")
    A("v_add_u32 v1, 8192, v1")
    A(f"v_cmp_gt_u32 vcc, L_end-{NAME}_kernel, v1")
    A("s_and_saveexec_b64 s[62:63], vcc")
    A("global_load_dword v3, v1, s[60:61]")
    A("s_endpgm")

    A("L_A3:")
    A("v_mov_b32 v6, 0")
    A("v_lshlrev_b32 v5, 4, v0")
    A("s_lshl_b32 s61, s4, 1"); A("s_add_u32 s61, s61, s6"); A("s_lshl_b32 s61, s61, 10"); A(f"s_add_u32 s61, s61, {ST}")
    A("v_lshrrev_b32 v4, 5, v0"); A("v_lshlrev_b32 v4, 2, v4")
    A("s_lshl_b32 s60, s4, 2"); A("s_add_u32 s60, s60, s5"); A("s_sub_u32 s60, s60, 28")
    srd(44, 16, 17, 1792); srd(48, 34, 35, 1792)
    A("v_and_b32 v2, 7, v0"); A("v_lshlrev_b32 v2, 2, v2"); A("v_bfe_u32 v3, v0, 4, 1"); A("v_lshl_add_u32 v2, v3, 1, v2")
    A("v_lshrrev_b32 v3, 5, v0"); A("v_add_u32 v2, v2, v3")
    A("s_lshr_b32 s14, s60, 2"); A("s_lshl_b32 s14, s14, 6")
    A("s_and_b32 s62, s60, 1"); A("s_lshl_b32 s62, s62, 5"); A("s_add_u32 s14, s14, s62")
    A("s_bfe_u32 s62, s60, 0x10001"); A("s_mul_i32 s62, s62, 448"); A("s_add_u32 s14, s14, s62")
    A("v_add_u32 v2, s14, v2"); A("v_lshlrev_b32 v2, 1, v2")
    A("buffer_load_ushort v3, v2, s[44:47], 0 offen")
    spin_lds(F_P, 4, 6, 7)
    mktag(1)
    A(f"ds_read_b32 v16, v4 offset:{L_MAX}")
    lp = lab("ps"); lr = lab("rs")
    A(f"{lp}:")
    A("buffer_load_dwordx4 v[8:11], v5, s[40:43], s61 offen sc1")
    A("s_waitcnt vmcnt(0)")
    tagcheck([8, 9, 10, 11], 1, 12, 13, lr)
    A("v_and_b32 v8, 0xffff0000, v8"); A("v_and_b32 v10, 0xffff0000, v10")
    A("v_mov_b32 v12, v8"); A("v_mov_b32 v13, v10")
    A("v_permlane32_swap_b32 v12, v13"); A("v_max_f32 v12, v12, v13")
    allred_swap("v_max_f32", 12, 13, 16)
    allred16("v_max_f32", 12, ["row_ror:8", "row_ror:4", "row_ror:2", "row_ror:1"])
    A("v_readlane_b32 s62, v12, 0"); A("v_readlane_b32 s63, v12, 32")
    A("v_subrev_f32 v8, s62, v8"); A("v_subrev_f32 v10, s63, v10")
    A("v_mul_f32 v8, s59, v8"); A("v_mul_f32 v10, s59, v10")
    A("v_exp_f32 v8, v8"); A("v_exp_f32 v10, v10")
    A("v_mul_f32 v8, v8, v9"); A("v_mul_f32 v10, v10, v11")
    A("v_permlane32_swap_b32 v8, v10"); A("v_add_f32 v8, v8, v10")
    allred_swap("v_add_f32", 8, 13, 16)
    allred16("v_add_f32", 8, ["row_ror:8", "row_ror:4", "row_ror:2", "row_ror:1"])
    A("s_waitcnt lgkmcnt(0)")
    A("v_sub_f32 v16, v16, v12"); A("v_mul_f32 v16, s59, v16"); A("v_exp_f32 v16, v16")
    A("v_rcp_f32 v9, v8")
    A("v_fma_f32 v10, -v8, v9, 1.0"); A("v_fma_f32 v9, v10, v9, v9")
    A("v_mul_f32 v16, v16, v9")
    A(f"ds_write_b32 v4, v16 offset:{L_FAC}")
    A("v_mov_b32 v7, 1")
    A(f"ds_write_b32 v6, v7 offset:{F_F}")
    A("s_waitcnt lgkmcnt(0)")
    stamp(1)
    A("s_cmp_lt_u32 s5, 28"); A("s_cbranch_scc1 L_A3end")
    A("s_cmp_ge_u32 s60, 28"); A("s_cbranch_scc1 L_A3end")
    A("v_lshrrev_b32 v5, 3, v0"); A("v_lshlrev_b32 v5, 9, v5"); A("v_and_b32 v7, 7, v0"); A("v_lshl_add_u32 v5, v7, 4, v5")
    A("s_lshr_b32 s61, s60, 2"); A("s_lshl_b32 s61, s61, 14"); A("s_and_b32 s14, s60, 3"); A("s_lshl_b32 s14, s14, 7")
    A("s_add_u32 s61, s61, s14"); A(f"s_add_u32 s52, s61, {YP}")
    A("s_add_u32 s53, s52, 4096"); A("s_add_u32 s54, s52, 8192"); A("s_add_u32 s55, s52, 12288")
    A("v_lshlrev_b32 v3, 16, v3")
    A("s_barrier")
    lp2 = lab("py"); lr2 = lab("ry")
    A(f"{lp2}:")
    for j in range(4): A(f"buffer_load_dwordx4 v[{16+4*j}:{19+4*j}], v5, s[40:43], s{52+j} offen sc1")
    A("s_waitcnt vmcnt(0)")
    tagcheck(list(range(16, 32)), 1, 12, 13, lr2)
    stamp(2)
    for k in range(4): A(f"v_add_f32 v{16+k}, v{16+k}, v{20+k}")
    for k in range(4): A(f"v_add_f32 v{24+k}, v{24+k}, v{28+k}")
    for k in range(4): A(f"v_add_f32 v{16+k}, v{16+k}, v{24+k}")
    A("v_permlane32_swap_b32 v16, v17"); A("v_permlane32_swap_b32 v18, v19")
    A("v_add_f32 v16, v16, v17"); A("v_add_f32 v18, v18, v19")
    A("v_permlane16_swap_b32 v16, v18"); A("v_add_f32 v16, v16, v18")
    A("v_add_f32_dpp v16, v16, v16 row_ror:8 row_mask:0xf bank_mask:0xf")
    A("v_add_f32 v16, v16, v3")
    A("v_cvt_pk_bf16_f32 v16, v16, v16")
    A("s_mov_b32 exec_lo, 0x00ff00ff"); A("s_mov_b32 exec_hi, 0x00ff00ff")
    A("buffer_store_short v16, v2, s[48:51], 0 offen")
    A("s_cmp_lg_u32 s60, 0"); A("s_cbranch_scc1 L_noep")
    A("s_mov_b64 exec, 1")
    A("s_add_u32 s14, s13, 1"); A("v_mov_b32 v7, s14")
    A("buffer_store_dword v7, v6, s[40:43], 0 offen")
    A("L_noep:")
    stamp(3)
    flush([(1, 14), (2, 11), (3, 12)], cond_sub0=False)
    A("s_endpgm")
    retry_block(lr, lp, sleep=4)
    retry_block(lr2, lp2, sleep=0)
    A("L_A3end:")
    flush([(1, 14)], cond_sub0=False)
    A("L_end:")
    A("s_endpgm")
    return A.finish()

HEADER = open("cdna_kernels/%s.s.ref" % NAME).read().split("; Override launch")[0]
def full(stamps=False):
    body = gen(stamps)
    return HEADER + f"""; @launch grid=(256,1,1) block=(768,1,1) lds={LDS_SIZE}
.amdgcn_target "amdgcn-amd-amdhsa--gfx950"
.text
.globl {NAME}_kernel
.p2align 8
.type {NAME}_kernel,@function
{NAME}_kernel:
{body}
.section .rodata,"a"
.p2align 6
.amdhsa_kernel {NAME}_kernel
  .amdhsa_next_free_vgpr 168
  .amdhsa_next_free_sgpr 96
  .amdhsa_accum_offset 168
  .amdhsa_group_segment_fixed_size 0
  .amdhsa_kernarg_size 96
  .amdhsa_user_sgpr_count 2
  .amdhsa_user_sgpr_kernarg_segment_ptr 1
  .amdhsa_system_sgpr_workgroup_id_x 1
.end_amdhsa_kernel
"""
if __name__ == "__main__":
    out = sys.argv[1] if len(sys.argv) > 1 else "cdna_kernels/%s.s" % NAME
    open(out, "w").write(full(stamps=(len(sys.argv) > 2)))
```

```python
import sys
from asmgen import Asm
NAME = "parallel_sum__sliding_block_cached__glu_gated_geglu__decode"

QP = 0x10000; FPB = 0x30000; ST = 0x70000; OP = 0x80000; YP = 0x100000; WS_SIZE = 0x120000
F_Q, F_P, F_M, F_X, F_V = 0x00, 0x04, 0x08, 0x0c, 0x20
L_MAX, L_TAG = 0x10, 0x18
L_W = 0x80
L_ZERO = 0x100
L_Q, L_P, L_H, L_Y = 0x400, 0x800, 0xc00, 0x1000
LDS_SIZE = 0x1800
CEXP = 0x3db8aa3b
SPIN = 0x100000

def gen(stamps=False, opt=()):
    A = Asm()
    uid = [0]
    def lab(p):
        uid[0] += 1
        return f"L_{p}{uid[0]}"
    def stamp(k):
        if stamps: A(f"s_memrealtime s[{64+2*k}:{65+2*k}]")
    def flush(slots, cond_sub0=True):
        if not stamps: return
        skip = lab("fl")
        if cond_sub0:
            A("s_cmp_lg_u32 s8, 0"); A(f"s_cbranch_scc1 {skip}")
        A("s_waitcnt lgkmcnt(0)")
        A("s_mov_b64 exec, 1")
        A("s_lshl_b32 s14, s2, 8")
        A("s_add_u32 s62, s38, s14"); A("s_addc_u32 s63, s39, 0")
        A("s_add_u32 s62, s62, 0x20000000"); A("s_addc_u32 s63, s63, 0")
        A("v_mov_b32 v1, 0")
        for k, slot in slots:
            A(f"v_mov_b32 v2, s{64+2*k}"); A(f"v_mov_b32 v3, s{65+2*k}")
            A(f"global_store_dwordx2 v1, v[2:3], s[62:63] offset:{slot*8}")
        A(f"{skip}:")
    def srd(s, lo, hi, size, off=None):
        if off is None:
            A(f"s_mov_b32 s{s}, s{lo}"); A(f"s_mov_b32 s{s+1}, s{hi}")
        else:
            A(f"s_add_u32 s{s}, s{lo}, {off}"); A(f"s_addc_u32 s{s+1}, s{hi}, 0")
        A(f"s_mov_b32 s{s+2}, {size}"); A(f"s_mov_b32 s{s+3}, 0x20000")
    def spin_lds(flag, n, vz, vt, sleep=1):
        l = lab("sp"); d = lab("sd")
        A(f"{l}:")
        A(f"ds_read_b32 v{vt}, v{vz} offset:{flag}")
        A("s_waitcnt lgkmcnt(0)")
        A(f"v_readfirstlane_b32 s14, v{vt}")
        A(f"s_cmp_ge_u32 s14, {n}")
        A(f"s_cbranch_scc1 {d}")
        if sleep: A(f"s_sleep {sleep}")
        A("s_sub_u32 s15, s15, 1")
        A(f"s_cbranch_scc0 {l}")
        A("s_endpgm")
        A(f"{d}:")
    def tagcheck(regs, vT, c0, c1, lretry):
        A(f"v_xor_b32 v{c0}, v{regs[0]}, v{vT}")
        A(f"v_xor_b32 v{c1}, v{regs[1]}, v{vT}")
        for k, r in enumerate(regs[2:]):
            c = c0 if k % 2 == 0 else c1
            A(f"v_bitop3_b32 v{c}, v{c}, v{r}, v{vT} bitop3:0xf6")
        A(f"v_or_b32 v{c0}, v{c0}, v{c1}")
        A(f"v_and_b32 v{c0}, 0xff, v{c0}")
        A(f"v_cmp_ne_u32 vcc, 0, v{c0}")
        A("s_cmp_lg_u64 vcc, 0")
        A(f"s_cbranch_scc1 {lretry}")
    def retry_block(lretry, lpoll, sleep=1):
        A(f"{lretry}:")
        if sleep: A(f"s_sleep {sleep}")
        A("s_sub_u32 s15, s15, 1")
        A(f"s_cbranch_scc0 {lpoll}")
        A("s_endpgm")
    def tag(r, vT):
        A(f"v_and_or_b32 v{r}, v{r}, s58, v{vT}")
    def mktag(vT):
        A("s_add_u32 s12, s13, 1"); A("s_and_b32 s12, s12, 0xff")
        A(f"v_mov_b32 v{vT}, s12")
    def rnd(r):
        A(f"v_cvt_pk_bf16_f32 v{r}, v{r}, v{r}"); A(f"v_and_b32 v{r}, 0xffff0000, v{r}")
    def allred16(op, r, steps):
        for st in steps: A(f"{op}_dpp v{r}, v{r}, v{r} {st} row_mask:0xf bank_mask:0xf")
    def allred_swap(op, r, t, which):
        A(f"v_mov_b32 v{t}, v{r}")
        A(f"v_permlane{which}_swap_b32 v{t}, v{r}")
        A(f"{op} v{r}, v{t}, v{r}")
    def ldsinc(flag, vz, vone):
        A("s_mov_b64 exec, 1")
        A(f"ds_add_u32 v{vz}, v{vone} offset:{flag}")
        A("s_mov_b64 exec, -1")
    def common_srd():
        A("s_load_dword s13, s[38:39], 0")
        srd(40, 38, 39, WS_SIZE)

    stamp(0)
    A("s_cmp_ge_u32 s2, 256"); A("s_cbranch_scc1 L_end")
    A("s_load_dwordx16 s[16:31], s[0:1], 0")
    A("s_load_dwordx8 s[32:39], s[0:1], 64")
    A("v_lshrrev_b32 v1, 6, v0")
    A("v_and_b32 v0, 63, v0")
    A("v_readfirstlane_b32 s3, v1")
    A("s_and_b32 s4, s2, 7")
    A("s_lshr_b32 s5, s2, 3")
    A("s_lshr_b32 s6, s5, 4")
    A("s_and_b32 s7, s5, 15")
    A("s_and_b32 s8, s3, 3")
    A("s_lshl_b32 s9, s4, 2"); A("s_xor_b32 s9, s9, s5")
    A("s_mul_i32 s10, s5, 37"); A("s_lshr_b32 s10, s10, 8")
    A("s_mul_i32 s11, s10, 7"); A("s_sub_u32 s11, s5, s11")
    A("s_lshl_b32 s14, s4, 2"); A("s_add_u32 s10, s10, s14")
    A(f"s_mov_b32 s15, {SPIN}")
    A("s_mov_b32 s56, 0x05040100"); A("s_mov_b32 s57, 0x07060302"); A("s_mov_b32 s58, 0xffffff00")
    A(f"s_mov_b32 s59, {CEXP}")
    A("s_cmp_ge_u32 s3, 2"); A("s_cbranch_scc1 L_KV")

    A("s_setprio 3")
    A("s_cmp_eq_u32 s3, 1"); A("s_cbranch_scc1 L_A1pre")
    A("s_lshr_b32 s61, s5, 3")
    A("s_mul_i32 s14, s61, 112")
    A("v_lshrrev_b32 v2, 3, v0"); A("v_mul_u32_u24 v2, 14, v2"); A("v_add_u32 v2, s14, v2"); A("v_lshlrev_b32 v2, 13, v2")
    A("v_and_b32 v3, 7, v0"); A("v_lshl_add_u32 v2, v3, 4, v2")
    A("s_and_b32 s62, s5, 7"); A("s_lshl_b32 s63, s4, 3"); A("s_add_u32 s62, s62, s63"); A("s_lshl_b32 s62, s62, 7")
    A("v_add_u32 v2, s62, v2"); A("v_mov_b32 v3, 0")
    A("s_mov_b32 s62, 8192")
    A("v_and_b32 v4, 1, v0"); A("v_lshrrev_b32 v5, 4, v0"); A("v_lshl_add_u32 v4, v5, 1, v4")
    A("L_S1:")
    A("s_mov_b32 s63, 0")
    A("v_mul_u32_u24 v4, 28, v4"); A("s_lshl_b32 s14, s14, 1"); A("v_add_u32 v4, s14, v4")
    A("v_bfe_u32 v5, v0, 1, 1"); A("v_mul_u32_u24 v5, 896, v5"); A("v_add_u32 v4, v4, v5")
    A("v_lshrrev_b32 v6, 2, v0"); A("v_and_b32 v7, 1, v0"); A("v_lshl_add_u32 v6, v6, 1, v7")
    A("v_lshl_add_u32 v5, v6, 5, v5")
    A("v_cmp_gt_u32 vcc, 28, v6"); A("v_mov_b32 v7, 0x10000"); A("v_cndmask_b32 v5, v7, v5, vcc")
    A("s_cmp_eq_u32 s3, 1"); A("s_cbranch_scc1 L_S1b")
    A("s_waitcnt lgkmcnt(0)")
    A("v_lshl_add_u64 v[2:3], v[2:3], 0, s[22:23]")
    A("L_S1b:")
    srd(44, 16, 17, 1792)
    A("buffer_load_dwordx4 v[8:11], v5, s[44:47], 0 offen")
    A("buffer_load_dwordx4 v[12:15], v5, s[44:47], 0 offen offset:16")
    A("buffer_load_dwordx4 v[16:19], v4, s[44:47], 0 offen")
    A("buffer_load_dwordx3 v[20:22], v4, s[44:47], 0 offen offset:16")
    WD = 32
    for j in range(14):
        A(f"global_load_dwordx4 v[{WD+4*j}:{WD+4*j+3}], v[2:3], off nt")
        if j < 13: A("v_lshl_add_u64 v[2:3], v[2:3], 0, s[62:63]")
    A("s_cmp_eq_u32 s3, 1"); A("s_cbranch_scc1 L_S1c")
    A("s_barrier")
    A("L_S1c:")
    stamp(5)
    common_srd()
    A("s_branch L_S2")

    A("L_A1pre:")
    A("s_barrier")
    A("s_cmp_ge_u32 s5, 28"); A("s_cbranch_scc1 L_end")
    A("s_mul_i32 s14, s4, 56")
    A("v_lshrrev_b32 v4, 4, v0")
    A("v_mul_u32_u24 v2, 14, v4"); A("v_add_u32 v2, s14, v2"); A("v_mul_u32_u24 v2, 3584, v2")
    A("v_and_b32 v3, 7, v0"); A("v_lshl_add_u32 v2, v3, 4, v2")
    A("s_lshl_b32 s62, s5, 7"); A("v_add_u32 v2, s62, v2"); A("v_mov_b32 v3, 0")
    A("s_waitcnt lgkmcnt(0)")
    A("v_lshl_add_u64 v[6:7], v[2:3], 0, s[30:31]")
    A("v_lshl_add_u64 v[2:3], v[2:3], 0, s[28:29]")
    A("v_mov_b32_dpp v2, v6 quad_perm:[0,1,2,3] row_mask:0xf bank_mask:0xc")
    A("v_mov_b32_dpp v3, v7 quad_perm:[0,1,2,3] row_mask:0xf bank_mask:0xc")
    A("s_mov_b32 s62, 3584")
    A("s_branch L_S1")

    A("L_KV:")
    A("s_lshl_b32 s60, s6, 3"); A("s_add_u32 s60, s60, s4"); A("s_lshl_b32 s60, s60, 24")
    A("s_lshl_b32 s14, s7, 17"); A("s_add_u32 s60, s60, s14"); A(f"s_add_u32 s60, s60, {28672*512}")
    A("s_cmp_lt_u32 s3, 8"); A("s_cbranch_scc1 L_notV")
    A("s_barrier")
    A("s_branch L_V")
    A("L_notV:")
    A("s_cmp_lg_u32 s3, 3"); A("s_cbranch_scc1 L_K")
    A("v_lshlrev_b32 v1, 4, v0")
    for r in range(2, 6): A(f"v_mov_b32 v{r}, 0")
    A("ds_write_b128 v1, v[2:5]")
    A("v_mov_b32 v6, 0xff800000"); A("v_mov_b32 v7, 0xff800000")
    A(f"ds_write_b64 v2, v[6:7] offset:{L_MAX}")
    A("s_waitcnt lgkmcnt(0)")
    A("s_barrier")
    A("s_branch L_A3")
    A("L_K:")

    A("s_setprio 2")
    A("v_and_b32 v2, 3, v0"); A("v_lshlrev_b32 v1, 9, v2")
    A("v_lshrrev_b32 v2, 2, v0"); A("v_lshl_add_u32 v1, v2, 4, v1")
    A("s_lshl_b32 s14, s8, 15"); A("v_add_u32 v1, s14, v1")
    A("s_lshr_b32 s61, s9, 1"); A("s_lshl_b32 s14, s8, 2"); A("s_xor_b32 s61, s61, s14")
    A("s_lshl_b32 s62, s61, 11")
    A("v_and_b32 v3, 31, v0"); A("v_lshlrev_b32 v3, 4, v3"); A("v_lshrrev_b32 v2, 5, v0"); A("v_lshl_add_u32 v3, v2, 11, v3")
    A("s_lshl_b32 s52, s4, 14"); A("s_lshl_b32 s14, s6, 13"); A("s_add_u32 s52, s52, s14")
    A("s_lshl_b32 s14, s8, 9"); A("s_add_u32 s52, s52, s14"); A(f"s_add_u32 s52, s52, {QP}")
    A("s_add_u32 s53, s52, 4096")
    A("s_waitcnt lgkmcnt(0)")
    srd(44, 18, 19, 131072, "s60")
    common_srd()
    A("s_barrier")
    KD = 32
    QAT = 12
    for t in range(16):
        if t == QAT:
            A("buffer_load_dwordx4 v[16:19], v3, s[40:43], s52 offen sc1")
            A("buffer_load_dwordx4 v[20:23], v3, s[40:43], s53 offen sc1")
            stamp(6)
        A(f"s_xor_b32 s14, s62, {t*2048}")
        r = KD + 8*t
        A(f"buffer_load_dwordx4 v[{r}:{r+3}], v1, s[44:47], s14 offen nt")
        A(f"buffer_load_dwordx4 v[{r+4}:{r+7}], v1, s[44:47], s14 offen offset:256 nt")
    stamp(1)
    A("v_and_b32 v2, 1, v0"); A("v_lshlrev_b32 v2, 9, v2")
    A("v_lshrrev_b32 v6, 2, v0"); A("v_lshl_add_u32 v2, v6, 4, v2")
    A("s_lshl_b32 s14, s61, 2"); A("s_lshl_b32 s62, s8, 6"); A("s_or_b32 s14, s14, s62")
    A("s_lshr_b32 s62, s9, 3"); A("s_lshl_b32 s62, s62, 6"); A("s_xor_b32 s14, s14, s62")
    A("s_and_b32 s62, s9, 7"); A("s_xor_b32 s14, s14, s62")
    A("v_xor_b32 v4, s14, v0"); A("v_lshlrev_b32 v4, 1, v4")
    A("v_mov_b32 v5, 0"); A("v_mov_b32 v167, 1")
    A("s_lshl_b32 s14, s8, 8"); A("v_lshlrev_b32 v1, 3, v0"); A("v_add_u32 v1, s14, v1")
    A("s_waitcnt lgkmcnt(0)")
    mktag(7)
    A(f"s_waitcnt vmcnt({2*(16-QAT)})")
    lq = lab("cq"); lrq = lab("rq")
    A(f"{lq}:")
    tagcheck(list(range(16, 24)), 7, 8, 9, lrq)
    stamp(7)
    for k in range(4): A(f"v_add_f32 v{16+k}, v{16+k}, v{20+k}")
    A("v_permlane32_swap_b32 v16, v18"); A("v_permlane32_swap_b32 v17, v19")
    A("v_add_f32 v16, v16, v18"); A("v_add_f32 v17, v17, v19")
    A("v_cvt_pk_bf16_f32 v16, v16, v17")
    A("v_and_b32 v8, 31, v0"); A("v_lshlrev_b32 v8, 3, v8"); A("v_lshrrev_b32 v9, 5, v0"); A("v_lshl_add_u32 v8, v9, 2, v8")
    A("s_lshl_b32 s14, s8, 8"); A("v_add_u32 v8, s14, v8")
    A(f"ds_write_b32 v8, v16 offset:{L_Q}")
    ldsinc(F_Q, 5, 167)
    spin_lds(F_Q, 4, 5, 6)
    A(f"ds_read_b128 v[8:11], v2 offset:{L_Q}")
    A(f"ds_read_b128 v[12:15], v2 offset:{L_Q+256}")
    A("s_waitcnt lgkmcnt(0)")
    def acc(t):
        B = t // 4
        return (16 if B == 0 else KD + 32*(B-1)) + 4*(t % 4)
    for B in range(4):
        if B == 3: A("s_waitcnt vmcnt(0)")
        for step in range(4):
            for tt in range(4):
                t = 4*B + tt
                a = acc(t); kd = KD + 8*t + 2*step; q = 8 + 2*step
                c = "0" if step == 0 else f"v[{a}:{a+3}]"
                A(f"v_mfma_f32_4x4x4_16b_bf16 v[{a}:{a+3}], v[{q}:{q+1}], v[{kd}:{kd+1}], {c}")
    val = {(t, h): acc(t) + h for t in range(16) for h in range(2)}
    for t in range(8):
        for h in range(2): A(f"v_permlane32_swap_b32 v{val[t,h]}, v{val[t+8,h]}")
    for t in range(8):
        for h in range(2): A(f"v_add_f32 v{val[t,h]}, v{val[t,h]}, v{val[t+8,h]}")
    for t in range(4):
        for h in range(2): A(f"v_permlane16_swap_b32 v{val[t,h]}, v{val[t+4,h]}")
    for t in range(4):
        for h in range(2): A(f"v_add_f32 v{val[t,h]}, v{val[t,h]}, v{val[t+4,h]}")
    for t in range(2):
        for h in range(2):
            o = 160 + 2*t + h
            A(f"v_add_f32_dpp v{o}, v{val[t,h]}, v{val[t,h]} row_ror:8 row_mask:0xf bank_mask:0x3")
    for t in range(2):
        for h in range(2):
            o = 160 + 2*t + h
            A(f"v_add_f32_dpp v{o}, v{val[t+2,h]}, v{val[t+2,h]} row_ror:8 row_mask:0xf bank_mask:0xc")
    for h in range(2): A(f"v_add_f32_dpp v{164+h}, v{160+h}, v{160+h} row_shl:4 row_mask:0xf bank_mask:0x5")
    for h in range(2): A(f"v_add_f32_dpp v{164+h}, v{162+h}, v{162+h} row_shr:4 row_mask:0xf bank_mask:0xa")
    A("v_cvt_pk_bf16_f32 v166, v164, v165")
    A("v_lshlrev_b32 v164, 16, v166"); A("v_and_b32 v165, 0xffff0000, v166")
    stamp(2)
    A("v_mov_b32 v16, v164"); A("v_mov_b32 v17, v165")
    A("v_permlane32_swap_b32 v16, v17"); A("v_max_f32 v16, v16, v17")
    allred_swap("v_max_f32", 16, 17, 16)
    allred16("v_max_f32", 16, ["row_ror:8", "row_ror:4", "row_ror:2", "row_ror:1"])
    A("v_lshrrev_b32 v18, 5, v0"); A("v_lshlrev_b32 v18, 2, v18")
    A("s_mov_b32 exec_lo, 1"); A("s_mov_b32 exec_hi, 1")
    A(f"ds_max_f32 v18, v16 offset:{L_MAX}")
    A("s_mov_b32 exec_hi, 0")
    A(f"ds_write_b32 v5, v7 offset:{L_TAG}")
    A(f"ds_add_u32 v5, v167 offset:{F_M}")
    A("s_mov_b64 exec, -1")
    spin_lds(F_M, 4, 5, 6)
    A(f"ds_read_b64 v[20:21], v5 offset:{L_MAX}")
    A("s_waitcnt lgkmcnt(0)")
    A("v_sub_f32 v22, v164, v20"); A("v_sub_f32 v23, v165, v21")
    A("v_mul_f32 v22, s59, v22"); A("v_mul_f32 v23, s59, v23")
    A("v_exp_f32 v22, v22"); A("v_exp_f32 v23, v23")
    A("v_cvt_pk_bf16_f32 v24, v22, v23")
    A(f"ds_write_b16 v4, v24 offset:{L_P}")
    A(f"ds_write_b16_d16_hi v4, v24 offset:{L_P+512}")
    ldsinc(F_P, 5, 167)
    stamp(3)
    A("v_permlane32_swap_b32 v22, v23"); A("v_add_f32 v27, v22, v23")
    allred_swap("v_add_f32", 27, 17, 16)
    allred16("v_add_f32", 27, ["row_ror:8", "row_ror:4", "row_ror:2", "row_ror:1"])
    A("v_cmp_lt_u32 vcc, 31, v0")
    A("v_cndmask_b32 v26, v20, v21, vcc")
    tag(26, 7); tag(27, 7)
    A("s_lshl_b32 s14, s4, 8"); A("s_lshl_b32 s62, s5, 2"); A("s_add_u32 s14, s14, s62"); A("s_add_u32 s14, s14, s8")
    A("s_lshl_b32 s14, s14, 3"); A(f"s_add_u32 s14, s14, {ST}")
    A("v_lshlrev_b32 v18, 8, v18")
    A("s_mov_b32 exec_lo, 1"); A("s_mov_b32 exec_hi, 1")
    A("buffer_store_dwordx2 v[26:27], v18, s[40:43], s14 offen sc1")
    A("s_mov_b64 exec, -1")
    A("s_cmp_ge_u32 s5, 28"); A("s_cbranch_scc1 L_FIN")
    A("s_setprio 0")
    srd(44, 24, 25, 4096*896); srd(48, 32, 33, 1792*896)
    A("v_lshrrev_b32 v2, 3, v0"); A("v_and_b32 v3, 7, v0"); A("v_lshlrev_b32 v3, 4, v3")
    A("v_mul_u32_u24 v1, 3584, v2"); A("v_add_u32 v1, v1, v3")
    A("v_mul_u32_u24 v4, 1792, v2"); A("v_add_u32 v4, v4, v3")
    A("s_lshl_b32 s14, s10, 2"); A("s_add_u32 s14, s14, s8")
    A("s_lshl_b32 s62, s11, 7")
    A("s_mul_i32 s61, s14, 28672"); A("s_add_u32 s61, s61, s62")
    A("s_mul_i32 s63, s14, 12544"); A("s_add_u32 s63, s63, s62")
    for r in range(48, 56): A(f"v_mov_b32 v{r}, 0")
    for j in range(4): A(f"buffer_load_dwordx4 v[{32+4*j}:{35+4*j}], v1, s[44:47], s61 offen offset:{896*j} nt")
    A("s_mov_b32 exec_hi, 0x00ffffff")
    for j in range(2): A(f"buffer_load_dwordx4 v[{48+4*j}:{51+4*j}], v4, s[48:51], s63 offen offset:{896*j} nt")
    A("s_mov_b64 exec, -1")
    stamp(8)
    BO = 64; PO = 96; AV = 112
    for d in range(8): A(f"v_mov_b32 v{BO+4*d+3}, 0")
    for r in range(AV, AV+16): A(f"v_mov_b32 v{r}, 0")
    A("v_and_b32 v2, 1, v0"); A("v_lshrrev_b32 v3, 4, v0"); A("v_lshl_add_u32 v2, v3, 1, v2")
    A("v_bfe_u32 v3, v0, 1, 1")
    A("v_bfe_u32 v6, v0, 2, 2")
    A("v_lshlrev_b32 v1, 4, v2"); A("v_lshl_add_u32 v1, v3, 13, v1"); A("v_lshl_add_u32 v1, v6, 9, v1")
    A("v_lshlrev_b32 v12, 4, v6"); A("v_lshl_add_u32 v12, v3, 6, v12")
    A("s_lshl_b32 s61, s10, 14"); A("s_lshl_b32 s14, s8, 7"); A("s_add_u32 s61, s61, s14"); A(f"s_add_u32 s61, s61, {OP}")
    A("s_add_u32 s63, s61, 4096")
    A("v_lshlrev_b32 v4, 2, v2"); A("v_lshl_add_u32 v4, v3, 7, v4")
    A("s_mul_i32 s14, s8, 28"); A(f"s_add_u32 s14, s14, {L_H}"); A("v_add_u32 v4, s14, v4")
    A("v_cmp_eq_u32 vcc, 7, v2"); A(f"v_mov_b32 v6, {L_ZERO}"); A("v_cndmask_b32 v4, v4, v6, vcc")
    A("v_and_b32 v2, 15, v0"); A("v_lshlrev_b32 v2, 5, v2"); A("v_lshrrev_b32 v3, 4, v0"); A("v_lshl_add_u32 v2, v3, 3, v2")
    A("s_lshl_b32 s14, s8, 9"); A("v_add_u32 v2, s14, v2")
    A("s_setprio 3")
    spin_lds(F_V, 4, 5, 6)
    lp = lab("pa"); lr = lab("ra")
    def polla():
        for u in range(4):
            A(f"buffer_load_dwordx4 v[{PO+4*u}:{PO+4*u+3}], v1, s[40:43], s{61 if u < 2 else 63} offen offset:{2048*(u%2)} sc1")
    polla()
    A("s_waitcnt vmcnt(4)")
    stamp(9)
    for c in range(4):
        for e in range(2):
            d = 2*c + e
            for q, (lo, hi) in enumerate([(32, 36), (40, 44), (48, 52)]):
                A(f"v_perm_b32 v{BO+4*d+q}, v{hi+c}, v{lo+c}, s{56+e}")
    spin_lds(F_X, 2, 5, 6)
    A("ds_read_b32 v6, v4")
    A(f"ds_read_b128 v[24:27], v12 offset:{L_W}")
    A("s_waitcnt lgkmcnt(0)")
    for rg in range(4): A(f"v_mov_b32_dpp v{AV+4*rg+2}, v6 quad_perm:[0,1,2,3] row_mask:0xf bank_mask:{1<<rg}")
    A(f"{lp}:")
    A("s_waitcnt vmcnt(0)")
    tagcheck(list(range(PO, PO+16)), 7, 8, 9, lr)
    stamp(4)
    for k in range(4): A(f"v_mul_f32 v{PO+k}, v24, v{PO+k}")
    for u in range(1, 4):
        for k in range(4): A(f"v_fmac_f32 v{PO+k}, v{24+u}, v{PO+4*u+k}")
    for st in ("row_ror:4", "row_ror:8"):
        for k in range(4): A(f"v_add_f32_dpp v{PO+k}, v{PO+k}, v{PO+k} {st} row_mask:0xf bank_mask:0xf")
    A(f"v_cvt_pk_bf16_f32 v8, v{PO}, v{PO+1}"); A(f"v_cvt_pk_bf16_f32 v9, v{PO+2}, v{PO+3}")
    for rg in range(4):
        for k in range(2): A(f"v_mov_b32_dpp v{AV+4*rg+k}, v{8+k} quad_perm:[0,1,2,3] row_mask:0xf bank_mask:{1<<rg}")
    for rg in range(4):
        for e in range(2):
            d = 2*rg + e; a = 16 + 4*e
            c = "0" if rg == 0 else f"v[{a}:{a+3}]"
            A(f"v_mfma_f32_16x16x32_bf16 v[{a}:{a+3}], v[{AV+4*rg}:{AV+4*rg+3}], v[{BO+4*d}:{BO+4*d+3}], {c}")
    for e in range(2):
        A(f"v_add_f32_dpp v{10+e}, v{16+4*e+1}, v{16+4*e} row_ror:8 row_mask:0xf bank_mask:0x3")
    for e in range(2):
        A(f"v_add_f32_dpp v{10+e}, v{16+4*e+2}, v{16+4*e+3} row_ror:8 row_mask:0xf bank_mask:0xc")
    A(f"ds_write_b64 v2, v[10:11] offset:{L_Y}")
    A("s_waitcnt lgkmcnt(0)")
    A("s_barrier")
    A("s_cmp_lg_u32 s8, 0"); A("s_cbranch_scc1 L_end")
    A("s_mov_b32 exec_hi, 0")
    A("v_lshlrev_b32 v1, 4, v0")
    for k in range(4): A(f"ds_read_b128 v[{PO+4*k}:{PO+4*k+3}], v1 offset:{L_Y+512*k}")
    A("s_lshl_b32 s14, s11, 5"); A("s_add_u32 s14, s14, s10"); A("s_lshl_b32 s14, s14, 9"); A(f"s_add_u32 s14, s14, {YP}")
    A("s_waitcnt lgkmcnt(2)")
    for k in range(4): A(f"v_add_f32 v{PO+k}, v{PO+k}, v{PO+4+k}")
    A("s_waitcnt lgkmcnt(0)")
    for k in range(4): A(f"v_add_f32 v{PO+8+k}, v{PO+8+k}, v{PO+12+k}")
    for k in range(4): A(f"v_add_f32 v{PO+k}, v{PO+k}, v{PO+8+k}")
    for k in range(4): tag(PO+k, 7)
    A(f"buffer_store_dwordx4 v[{PO}:{PO+3}], v1, s[40:43], s14 offen sc1")
    stamp(5)
    flush([(1, 3), (2, 4), (3, 5), (4, 9), (5, 10), (6, 22), (7, 2), (8, 23), (9, 24)])
    A("s_endpgm")
    A(f"{lr}:")
    polla()
    A("s_sub_u32 s15, s15, 1")
    A(f"s_cbranch_scc0 {lp}")
    A("s_endpgm")
    A(f"{lrq}:")
    A("buffer_load_dwordx4 v[16:19], v3, s[40:43], s52 offen sc1")
    A("buffer_load_dwordx4 v[20:23], v3, s[40:43], s53 offen sc1")
    A("s_waitcnt vmcnt(0)")
    A("s_sub_u32 s15, s15, 1")
    A(f"s_cbranch_scc0 {lq}")
    A("s_endpgm")

    A("L_FIN:")
    A("s_lshl_b32 s60, s4, 2"); A("s_add_u32 s60, s60, s5"); A("s_sub_u32 s60, s60, 28")
    A("s_cmp_lg_u32 s8, 0"); A("s_cbranch_scc1 L_end")
    A("s_cmp_ge_u32 s60, 28"); A("s_cbranch_scc1 L_end")
    srd(44, 16, 17, 1792); srd(48, 34, 35, 1792)
    A("v_and_b32 v2, 7, v0"); A("v_lshlrev_b32 v2, 2, v2"); A("v_bfe_u32 v3, v0, 4, 1"); A("v_lshl_add_u32 v2, v3, 1, v2")
    A("v_lshrrev_b32 v3, 5, v0"); A("v_add_u32 v2, v2, v3")
    A("s_lshr_b32 s14, s60, 2"); A("s_lshl_b32 s14, s14, 6")
    A("s_and_b32 s62, s60, 1"); A("s_lshl_b32 s62, s62, 5"); A("s_add_u32 s14, s14, s62")
    A("s_bfe_u32 s62, s60, 0x10001"); A("s_mul_i32 s62, s62, 448"); A("s_add_u32 s14, s14, s62")
    A("v_add_u32 v2, s14, v2"); A("v_lshlrev_b32 v2, 1, v2")
    A("buffer_load_ushort v3, v2, s[44:47], 0 offen")
    A("v_lshrrev_b32 v4, 3, v0"); A("v_lshlrev_b32 v4, 9, v4"); A("v_and_b32 v6, 7, v0"); A("v_lshl_add_u32 v4, v6, 4, v4")
    A("s_lshr_b32 s61, s60, 2"); A("s_lshl_b32 s61, s61, 14"); A("s_and_b32 s14, s60, 3"); A("s_lshl_b32 s14, s14, 7")
    A("s_add_u32 s61, s61, s14"); A(f"s_add_u32 s52, s61, {YP}")
    A("s_add_u32 s53, s52, 4096"); A("s_add_u32 s54, s52, 8192"); A("s_add_u32 s55, s52, 12288")
    A("s_waitcnt vmcnt(0)")
    A("v_lshlrev_b32 v3, 16, v3")
    spin_lds(F_V, 4, 5, 6)
    lp2 = lab("py"); lr2 = lab("ry")
    A(f"{lp2}:")
    for j in range(4): A(f"buffer_load_dwordx4 v[{16+4*j}:{19+4*j}], v4, s[40:43], s{52+j} offen sc1")
    A("s_waitcnt vmcnt(0)")
    tagcheck(list(range(16, 32)), 7, 12, 13, lr2)
    stamp(4)
    for k in range(4): A(f"v_add_f32 v{16+k}, v{16+k}, v{20+k}")
    for k in range(4): A(f"v_add_f32 v{24+k}, v{24+k}, v{28+k}")
    for k in range(4): A(f"v_add_f32 v{16+k}, v{16+k}, v{24+k}")
    A("v_permlane32_swap_b32 v16, v17"); A("v_permlane32_swap_b32 v18, v19")
    A("v_add_f32 v16, v16, v17"); A("v_add_f32 v18, v18, v19")
    A("v_permlane16_swap_b32 v16, v18"); A("v_add_f32 v16, v16, v18")
    A("v_add_f32_dpp v16, v16, v16 row_ror:8 row_mask:0xf bank_mask:0xf")
    A("v_add_f32 v16, v16, v3")
    A("v_cvt_pk_bf16_f32 v16, v16, v16")
    A("s_mov_b32 exec_lo, 0x00ff00ff"); A("s_mov_b32 exec_hi, 0x00ff00ff")
    A("buffer_store_short v16, v2, s[48:51], 0 offen")
    A("s_cmp_lg_u32 s60, 0"); A("s_cbranch_scc1 L_noep")
    A("s_mov_b64 exec, 1")
    A("s_add_u32 s14, s13, 1"); A("v_mov_b32 v6, s14")
    A("buffer_store_dword v6, v5, s[40:43], 0 offen")
    A("L_noep:")
    stamp(5)
    flush([(1, 3), (2, 4), (3, 5), (4, 11), (5, 12), (6, 22), (7, 2)])
    A("s_endpgm")
    retry_block(lr2, lp2, sleep=0)

    A("L_V:")
    A("s_setprio 1")
    A("v_lshrrev_b32 v2, 3, v0"); A("v_lshlrev_b32 v1, 12, v2")
    A("v_and_b32 v2, 7, v0"); A("v_lshl_add_u32 v1, v2, 4, v1")
    A("s_lshl_b32 s14, s8, 7"); A("v_add_u32 v1, s14, v1")
    A("s_and_b32 s62, s9, 7"); A("s_lshl_b32 s62, s62, 9"); A("s_lshr_b32 s14, s9, 3"); A("s_lshl_b32 s14, s14, 15"); A("s_or_b32 s62, s62, s14")
    A("s_waitcnt lgkmcnt(0)")
    srd(44, 20, 21, 131072, "s60")
    common_srd()
    VD = 40
    for t in range(32):
        A(f"s_xor_b32 s14, s62, {(t>>3)*32768 + (t&7)*512}")
        r = VD + 4*t
        A(f"buffer_load_dwordx4 v[{r}:{r+3}], v1, s[44:47], s14 offen nt")
    stamp(1)
    A("v_and_b32 v6, 1, v0"); A("v_lshrrev_b32 v7, 4, v0"); A("v_lshl_add_u32 v6, v7, 1, v6"); A("v_lshlrev_b32 v6, 4, v6")
    A("v_bfe_u32 v7, v0, 1, 1"); A("v_lshl_add_u32 v6, v7, 9, v6"); A(f"v_add_u32 v6, {L_P}, v6")
    for rg in range(4): A(f"v_mov_b32 v{2+rg}, {L_ZERO}")
    for rg in range(4): A(f"v_mov_b32_dpp v{2+rg}, v6 quad_perm:[0,1,2,3] row_mask:0xf bank_mask:{1<<rg}")
    A("v_mov_b32 v6, 0")
    spin_lds(F_P, 4, 6, 7)
    A("s_setprio 3")
    def rdA(g4, base):
        for rg in range(4): A(f"ds_read_b128 v[{base+4*rg}:{base+4*rg+3}], v{2+rg} offset:{128*g4}")
    Abase = {0: 24, 1: VD, 2: VD+16, 3: 24}
    rdA(0, 24)
    for g4 in range(3):
        ab = Abase[g4]; D = VD + 32*g4
        A(f"s_waitcnt vmcnt({24-8*g4}) lgkmcnt(0)")
        for c in range(4):
            for e in range(2):
                for q in range(4):
                    A(f"v_perm_b32 v{16+4*e+q}, v{D+8*q+4+c}, v{D+8*q+c}, s{56+e}")
            for e in range(2):
                a = 8 + 4*e
                cc = "0" if (g4 == 0 and c == 0) else f"v[{a}:{a+3}]"
                A(f"v_mfma_f32_16x16x32_bf16 v[{a}:{a+3}], v[{ab+4*c}:{ab+4*c+3}], v[{16+4*e}:{19+4*e}], {cc}")
        if g4 == 0:
            rdA(1, VD); rdA(2, VD+16); rdA(3, 24)
    mktag(3)
    A("v_mov_b32 v2, 1")
    A("v_bfe_u32 v7, v0, 3, 1")
    A("v_and_b32 v1, 7, v0"); A("v_lshlrev_b32 v1, 5, v1"); A("v_lshl_add_u32 v1, v7, 15, v1")
    A("v_lshrrev_b32 v7, 4, v0"); A("v_lshl_add_u32 v1, v7, 3, v1")
    A("s_lshl_b32 s61, s4, 16"); A("s_lshr_b32 s14, s8, 1"); A("s_lshl_b32 s14, s14, 14"); A("s_add_u32 s61, s61, s14")
    A("s_lshl_b32 s14, s5, 9"); A("s_add_u32 s61, s61, s14")
    A("s_and_b32 s14, s8, 1"); A("s_lshl_b32 s14, s14, 8"); A("s_add_u32 s61, s61, s14"); A(f"s_add_u32 s61, s61, {OP}")
    TT = VD + 32
    D = VD + 96
    for q in range(4):
        A(f"s_waitcnt vmcnt({6-2*q})")
        if q == 3: stamp(2)
        for c in range(4):
            for e in range(2):
                A(f"v_perm_b32 v{TT+4*(2*c+e)+q}, v{D+8*q+4+c}, v{D+8*q+c}, s{56+e}")
    for c in range(4):
        for e in range(2):
            a = 8 + 4*e; d = 2*c + e
            A(f"v_mfma_f32_16x16x32_bf16 v[{a}:{a+3}], v[{24+4*c}:{27+4*c}], v[{TT+4*d}:{TT+4*d+3}], v[{a}:{a+3}]")
    for e in range(2): A(f"v_add_f32_dpp v{4+e}, v{8+4*e+1}, v{8+4*e} row_ror:8 row_mask:0xf bank_mask:0x3")
    for e in range(2): A(f"v_add_f32_dpp v{4+e}, v{8+4*e+2}, v{8+4*e+3} row_ror:8 row_mask:0xf bank_mask:0xc")
    tag(4, 3); tag(5, 3)
    A("buffer_store_dwordx2 v[4:5], v1, s[40:43], s61 offen sc1")
    A("s_mov_b64 exec, 1")
    A(f"ds_add_u32 v6, v2 offset:{F_V}")
    stamp(3)
    flush([(1, 6), (2, 7), (3, 8)])
    A("s_endpgm")

    A("L_S2:")
    A("s_waitcnt vmcnt(16)")
    stamp(6)
    X = 96
    for k in range(8):
        A(f"v_lshlrev_b32 v{X+2*k}, 16, v{8+k}"); A(f"v_and_b32 v{X+2*k+1}, 0xffff0000, v{8+k}")
    for k in range(8): A(f"v_add_f32 v{8+k}, v{X+2*k}, v{X+2*k+1}")
    for k in range(4): A(f"v_add_f32 v{8+k}, v{8+k}, v{12+k}")
    A("v_add_f32 v8, v8, v10"); A("v_add_f32 v9, v9, v11"); A("v_add_f32 v8, v8, v9")
    def red_b(r, t):
        allred16("v_add_f32", r, ["quad_perm:[1,0,3,2]", "row_ror:4", "row_ror:8"])
        allred_swap("v_add_f32", r, t, 16); allred_swap("v_add_f32", r, t, 32)
    red_b(8, 9)
    A("v_mul_f32 v8, 0x3b124925, v8")
    for k in range(16): A(f"v_sub_f32 v{X+k}, v{X+k}, v8")
    A(f"v_mul_f32 v10, v{X}, v{X}"); A(f"v_mul_f32 v11, v{X+1}, v{X+1}")
    for k in range(2, 16): A(f"v_fmac_f32 v{10+k%2}, v{X+k}, v{X+k}")
    A("v_add_f32 v10, v10, v11")
    A("v_cndmask_b32 v10, 0, v10, vcc")
    red_b(10, 9)
    A("v_mul_f32 v10, 0x3b124925, v10")
    rnd(8); rnd(10)
    A("v_add_f32 v10, 0x3727c5ac, v10"); rnd(10)
    A("v_sqrt_f32 v10, v10"); rnd(10)
    A("v_rcp_f32 v11, v10")
    A("v_fma_f32 v12, -v10, v11, 1.0"); A("v_fma_f32 v11, v12, v11, v11")
    A("s_waitcnt vmcnt(14)")
    for k in range(7):
        A(f"v_lshlrev_b32 v{X+2*k}, 16, v{16+k}"); A(f"v_and_b32 v{X+2*k+1}, 0xffff0000, v{16+k}")
    for k in range(14): A(f"v_sub_f32 v{X+k}, v{X+k}, v8")
    for k in range(7): A(f"v_cvt_pk_bf16_f32 v{16+k}, v{X+2*k}, v{X+2*k+1}")
    for k in range(7):
        A(f"v_lshlrev_b32 v{X+2*k}, 16, v{16+k}"); A(f"v_and_b32 v{X+2*k+1}, 0xffff0000, v{16+k}")
    for k in range(14): A(f"v_mul_f32 v{X+k}, v{X+k}, v11")
    for k in range(7): A(f"v_cvt_pk_bf16_f32 v{16+k}, v{X+2*k}, v{X+2*k+1}")
    A("v_mov_b32 v23, 0")
    TB = 88
    A("v_mov_b32 v95, 0"); A("v_mov_b32 v31, 0")
    AC = 112
    stamp(7)
    A("s_waitcnt vmcnt(0) lgkmcnt(0)")
    stamp(8)
    mktag(1)
    for d in range(8):
        c = d >> 1; e = d & 1; T = TB if e == 0 else 24
        for q in range(7): A(f"v_perm_b32 v{T+q}, v{WD+8*q+4+c}, v{WD+8*q+c}, s{56+e}")
        a = AC + 4*d
        A(f"v_mfma_f32_16x16x32_bf16 v[{a}:{a+3}], v[16:19], v[{T}:{T+3}], 0")
        A(f"v_mfma_f32_16x16x32_bf16 v[{a}:{a+3}], v[20:23], v[{T+4}:{T+7}], v[{a}:{a+3}]")
    A("v_and_b32 v5, 7, v0"); A("v_lshlrev_b32 v5, 5, v5"); A("v_lshrrev_b32 v6, 4, v0"); A("v_lshl_add_u32 v5, v6, 3, v5")
    A("v_bfe_u32 v6, v0, 3, 1")
    A("s_cmp_eq_u32 s3, 1"); A("s_cbranch_scc1 L_A1post")
    for rg in range(4):
        for half in range(2):
            for e in range(2):
                a = AC + 4*(2*rg+e)
                if half == 0: A(f"v_add_f32_dpp v{8+e}, v{a+1}, v{a} row_ror:8 row_mask:{1<<rg} bank_mask:0x3")
                else: A(f"v_add_f32_dpp v{8+e}, v{a+2}, v{a+3} row_ror:8 row_mask:{1<<rg} bank_mask:0xc")
    tag(8, 1); tag(9, 1)
    A("v_lshl_add_u32 v5, v6, 13, v5")
    A("s_lshl_b32 s14, s4, 14"); A("s_lshl_b32 s62, s61, 11"); A("s_add_u32 s14, s14, s62")
    A("s_and_b32 s62, s5, 7"); A("s_lshl_b32 s62, s62, 8"); A("s_add_u32 s14, s14, s62"); A(f"s_add_u32 s14, s14, {QP}")
    A("buffer_store_dwordx2 v[8:9], v5, s[40:43], s14 offen sc1")
    stamp(1)
    if stamps:
        A("s_waitcnt vmcnt(0)")
        stamp(9)
    flush([(0, 0), (1, 1), (5, 17), (6, 18), (7, 19), (8, 20), (9, 21)])
    A("s_endpgm")
    A("L_A1post:")
    A("s_nop 7")
    for rg in range(4):
        for b in range(2):
            for e in range(2):
                a = AC + 4*(2*rg+e) + 2*b
                A(f"v_mov_b32_dpp v{8+2*b+e}, v{a} quad_perm:[0,1,2,3] row_mask:{1<<rg} bank_mask:0xf")
    for k in range(4): tag(8+k, 1)
    A("v_mul_u32_u24 v6, 14336, v6"); A("v_add_u32 v5, v5, v6")
    A("s_mul_i32 s14, s4, 28672"); A("s_lshl_b32 s62, s5, 8"); A("s_add_u32 s14, s14, s62"); A(f"s_add_u32 s14, s14, {FPB}")
    A("s_add_u32 s62, s14, 7168")
    A("buffer_store_dwordx2 v[8:9], v5, s[40:43], s14 offen sc1")
    A("buffer_store_dwordx2 v[10:11], v5, s[40:43], s62 offen sc1")
    stamp(2)
    A("v_lshrrev_b32 v6, 4, v0"); A("v_mul_u32_u24 v5, 7168, v6"); A("v_and_b32 v7, 15, v0"); A("v_lshl_add_u32 v5, v7, 4, v5")
    A("s_mul_i32 s61, s10, 224"); A(f"s_add_u32 s61, s61, {FPB}")
    A("v_mov_b32 v6, 0")
    spin_lds(F_P, 4, 6, 7, sleep=4)
    A("s_mov_b32 exec_lo, 0x3fff3fff"); A("s_mov_b32 exec_hi, 0x3fff3fff")
    lp = lab("pf"); lr = lab("rf")
    A(f"{lp}:")
    A("s_mov_b32 s62, s61")
    for k in range(8):
        A(f"buffer_load_dwordx4 v[{WD+4*k}:{WD+4*k+3}], v5, s[40:43], s62 offen sc1")
        if k < 7: A("s_add_u32 s62, s62, 28672")
    A("s_waitcnt vmcnt(0)")
    tagcheck(list(range(WD, WD+32)), 1, 8, 9, lr)
    for k in range(16): A(f"v_add_f32 v{WD+k}, v{WD+k}, v{WD+16+k}")
    for k in range(8): A(f"v_add_f32 v{WD+k}, v{WD+k}, v{WD+8+k}")
    for k in range(4): A(f"v_add_f32 v{WD+k}, v{WD+k}, v{WD+4+k}")
    for k in range(4): rnd(WD+k)
    A("s_mov_b64 exec, -1")
    for k in range(4): A(f"v_mov_b32 v{WD+4+k}, v{WD+k}")
    for k in range(4): A(f"v_permlane32_swap_b32 v{WD+k}, v{WD+4+k}")
    for k in range(4): A(f"v_mul_f32 v{8+k}, v{WD+k}, v{WD+k}")
    A("s_mov_b32 s14, 0x3d372713")
    for k in range(4): A(f"v_fma_f32 v{8+k}, v{8+k}, s14, 1.0")
    for k in range(4): A(f"v_mul_f32 v{8+k}, v{8+k}, v{WD+k}")
    for k in range(4): A(f"v_mul_f32 v{8+k}, 0xc0135761, v{8+k}")
    for k in range(4): A(f"v_exp_f32 v{8+k}, v{8+k}")
    for k in range(4): A(f"v_add_f32 v{8+k}, 1.0, v{8+k}")
    for k in range(4): A(f"v_rcp_f32 v{8+k}, v{8+k}")
    for k in range(4): A(f"v_mul_f32 v{8+k}, v{8+k}, v{WD+k}")
    for k in range(4): rnd(8+k)
    for k in range(4): A(f"v_mul_f32 v{8+k}, v{8+k}, v{WD+4+k}")
    A("v_cvt_pk_bf16_f32 v12, v8, v9"); A("v_cvt_pk_bf16_f32 v13, v10, v11")
    A("v_lshlrev_b32 v5, 3, v0"); A("v_mov_b32 v7, 1")
    A("s_mov_b32 exec_lo, 0x3fff3fff"); A("s_mov_b32 exec_hi, 0")
    A(f"ds_write_b64 v5, v[12:13] offset:{L_H}")
    A("s_mov_b64 exec, 1")
    A(f"ds_add_u32 v6, v7 offset:{F_X}")
    A("s_waitcnt lgkmcnt(0)")
    stamp(1)
    flush([(1, 13), (2, 25)], cond_sub0=False)
    A("s_endpgm")
    retry_block(lr, lp, sleep=8)

    A("L_A3:")
    A("s_setprio 3")
    A("s_cmp_ge_u32 s5, 28"); A("s_cbranch_scc1 L_end")
    A("s_waitcnt lgkmcnt(0)")
    srd(40, 38, 39, WS_SIZE)
    A("v_mov_b32 v6, 0")
    A("v_lshlrev_b32 v5, 4, v0")
    A("s_lshr_b32 s61, s10, 1"); A("s_lshl_b32 s61, s61, 10"); A(f"s_add_u32 s61, s61, {ST}")
    A("v_bfe_u32 v2, v0, 1, 2"); A("v_lshlrev_b32 v2, 4, v2"); A("v_bfe_u32 v3, v0, 3, 2"); A("v_lshl_add_u32 v2, v3, 2, v2")
    A("v_lshrrev_b32 v3, 5, v0"); A("v_lshl_add_u32 v2, v3, 6, v2")
    spin_lds(F_P, 4, 6, 7, sleep=4)
    A(f"ds_read_b32 v1, v6 offset:{L_TAG}")
    lp = lab("ps"); lr = lab("rs")
    A(f"{lp}:")
    A("buffer_load_dwordx4 v[8:11], v5, s[40:43], s61 offen sc1")
    A("s_waitcnt vmcnt(0) lgkmcnt(0)")
    tagcheck([8, 9, 10, 11], 1, 12, 13, lr)
    A("v_and_b32 v8, 0xffff0000, v8")
    A("v_add_f32 v9, v9, v11")
    A("v_mov_b32 v12, v8")
    allred_swap("v_max_f32", 12, 13, 16)
    allred16("v_max_f32", 12, ["row_ror:8", "row_ror:4", "row_ror:2"])
    A("v_sub_f32 v8, v8, v12"); A("v_mul_f32 v8, s59, v8"); A("v_exp_f32 v8, v8")
    A("v_mul_f32 v9, v9, v8")
    allred_swap("v_add_f32", 9, 13, 16)
    allred16("v_add_f32", 9, ["row_ror:8", "row_ror:4", "row_ror:2", "row_ror:1"])
    A("v_rcp_f32 v10, v9")
    A("v_fma_f32 v11, -v9, v10, 1.0"); A("v_fma_f32 v10, v11, v10, v10")
    A("v_mul_f32 v8, v8, v10")
    A(f"ds_write_b32 v2, v8 offset:{L_W}")
    A("v_mov_b32 v7, 1")
    A("s_mov_b64 exec, 1")
    A(f"ds_add_u32 v6, v7 offset:{F_X}")
    A("s_waitcnt lgkmcnt(0)")
    stamp(1)
    flush([(1, 14)], cond_sub0=False)
    A("s_endpgm")
    retry_block(lr, lp, sleep=0)
    A("L_end:")
    A("s_endpgm")
    txt = A.finish()
    return txt

def with_prefetch(txt):
    pf = f"""    s_cmp_lg_u32 s3, 2
    s_cbranch_scc1 L_nopf
    s_getpc_b64 s[60:61]
L_pc:
    s_sub_u32 s60, s60, L_pc-{NAME}_kernel
    s_subb_u32 s61, s61, 0
    v_lshlrev_b32 v1, 7, v0
    v_add_u32 v2, 8192, v1
    global_load_dword v3, v1, s[60:61]
    v_cmp_gt_u32 vcc, L_end-{NAME}_kernel, v2
    s_and_saveexec_b64 s[62:63], vcc
    global_load_dword v4, v2, s[60:61]
    s_barrier
    s_endpgm
L_nopf:
"""
    return txt.replace("L_KV:\n", "L_KV:\n" + pf, 1)

HEADER = open("cdna_kernels/%s.s.ref" % NAME).read().split("; Override launch")[0]
def full(stamps=False, opt=()):
    body = with_prefetch(gen(stamps, opt))
    return HEADER + f"""; @launch grid=(256,1,1) block=(768,1,1) lds={LDS_SIZE}
.amdgcn_target "amdgcn-amd-amdhsa--gfx950"
.text
.globl {NAME}_kernel
.p2align 8
.type {NAME}_kernel,@function
{NAME}_kernel:
{body}
.section .rodata,"a"
.p2align 6
.amdhsa_kernel {NAME}_kernel
  .amdhsa_next_free_vgpr 168
  .amdhsa_next_free_sgpr 96
  .amdhsa_accum_offset 168
  .amdhsa_group_segment_fixed_size 0
  .amdhsa_kernarg_size 96
  .amdhsa_user_sgpr_count 2
  .amdhsa_user_sgpr_kernarg_segment_ptr 1
  .amdhsa_system_sgpr_workgroup_id_x 1
.end_amdhsa_kernel
"""
if __name__ == "__main__":
    out = sys.argv[1] if len(sys.argv) > 1 else "cdna_kernels/%s.s" % NAME
    open(out, "w").write(full(stamps=(len(sys.argv) > 2 and sys.argv[2] == "stamps"), opt=sys.argv[3:]))
```

```python
import sys
from asmgen import Asm
NAME = "parallel_sum__sliding_block_cached__glu_gated_geglu__decode"

QP = 0x10000; FPB = 0x30000; ST = 0x70000; OP = 0x80000; YP = 0x100000; WS_SIZE = 0x120000
F_Q, F_P, F_M, F_X, F_V = 0x00, 0x04, 0x08, 0x0c, 0x20
L_MAX, L_TAG = 0x10, 0x18
L_W = 0x80
L_ZERO = 0x100
L_Q, L_P, L_H, L_Y = 0x400, 0x800, 0xc00, 0x1000
LDS_SIZE = 0x1800
CEXP = 0x3db8aa3b
SPIN = 0x100000

def gen(stamps=False, opt=()):
    A = Asm()
    uid = [0]
    def lab(p):
        uid[0] += 1
        return f"L_{p}{uid[0]}"
    def stamp(k):
        if stamps: A(f"s_memrealtime s[{64+2*k}:{65+2*k}]")
    def flush(slots, cond_sub0=True):
        if not stamps: return
        skip = lab("fl")
        if cond_sub0:
            A("s_cmp_lg_u32 s8, 0"); A(f"s_cbranch_scc1 {skip}")
        A("s_waitcnt lgkmcnt(0)")
        A("s_mov_b64 exec, 1")
        A("s_lshl_b32 s14, s2, 8")
        A("s_add_u32 s62, s38, s14"); A("s_addc_u32 s63, s39, 0")
        A("s_add_u32 s62, s62, 0x20000000"); A("s_addc_u32 s63, s63, 0")
        A("v_mov_b32 v1, 0")
        for k, slot in slots:
            A(f"v_mov_b32 v2, s{64+2*k}"); A(f"v_mov_b32 v3, s{65+2*k}")
            A(f"global_store_dwordx2 v1, v[2:3], s[62:63] offset:{slot*8}")
        A(f"{skip}:")
    def srd(s, lo, hi, size, off=None):
        if off is None:
            A(f"s_mov_b32 s{s}, s{lo}"); A(f"s_mov_b32 s{s+1}, s{hi}")
        else:
            A(f"s_add_u32 s{s}, s{lo}, {off}"); A(f"s_addc_u32 s{s+1}, s{hi}, 0")
        A(f"s_mov_b32 s{s+2}, {size}"); A(f"s_mov_b32 s{s+3}, 0x20000")
    def spin_lds(flag, n, vz, vt, sleep=1):
        l = lab("sp"); d = lab("sd")
        A(f"{l}:")
        A(f"ds_read_b32 v{vt}, v{vz} offset:{flag}")
        A("s_waitcnt lgkmcnt(0)")
        A(f"v_readfirstlane_b32 s14, v{vt}")
        A(f"s_cmp_ge_u32 s14, {n}")
        A(f"s_cbranch_scc1 {d}")
        if sleep: A(f"s_sleep {sleep}")
        A("s_sub_u32 s15, s15, 1")
        A(f"s_cbranch_scc0 {l}")
        A("s_endpgm")
        A(f"{d}:")
    def tagcheck(regs, vT, c0, c1, lretry):
        A(f"v_xor_b32 v{c0}, v{regs[0]}, v{vT}")
        A(f"v_xor_b32 v{c1}, v{regs[1]}, v{vT}")
        for k, r in enumerate(regs[2:]):
            c = c0 if k % 2 == 0 else c1
            A(f"v_bitop3_b32 v{c}, v{c}, v{r}, v{vT} bitop3:0xf6")
        A(f"v_or_b32 v{c0}, v{c0}, v{c1}")
        A(f"v_and_b32 v{c0}, 0xff, v{c0}")
        A(f"v_cmp_ne_u32 vcc, 0, v{c0}")
        A("s_cmp_lg_u64 vcc, 0")
        A(f"s_cbranch_scc1 {lretry}")
    def retry_block(lretry, lpoll, sleep=1):
        A(f"{lretry}:")
        if sleep: A(f"s_sleep {sleep}")
        A("s_sub_u32 s15, s15, 1")
        A(f"s_cbranch_scc0 {lpoll}")
        A("s_endpgm")
    def tag(r, vT):
        A(f"v_and_or_b32 v{r}, v{r}, s58, v{vT}")
    def mktag(vT):
        A("s_add_u32 s12, s13, 1"); A("s_and_b32 s12, s12, 0xff")
        A(f"v_mov_b32 v{vT}, s12")
    def rnd(r):
        A(f"v_cvt_pk_bf16_f32 v{r}, v{r}, v{r}"); A(f"v_and_b32 v{r}, 0xffff0000, v{r}")
    def allred16(op, r, steps):
        for st in steps: A(f"{op}_dpp v{r}, v{r}, v{r} {st} row_mask:0xf bank_mask:0xf")
    def allred_swap(op, r, t, which):
        A(f"v_mov_b32 v{t}, v{r}")
        A(f"v_permlane{which}_swap_b32 v{t}, v{r}")
        A(f"{op} v{r}, v{t}, v{r}")
    def ldsinc(flag, vz, vone):
        A("s_mov_b64 exec, 1")
        A(f"ds_add_u32 v{vz}, v{vone} offset:{flag}")
        A("s_mov_b64 exec, -1")
    def common_srd():
        A("s_load_dword s13, s[38:39], 0")
        srd(40, 38, 39, WS_SIZE)

    if "delay" in opt: A("s_memrealtime s[90:91]")
    stamp(0)
    A("s_cmp_ge_u32 s2, 256"); A("s_cbranch_scc1 L_end")
    A("s_load_dwordx16 s[16:31], s[0:1], 0")
    A("s_load_dwordx8 s[32:39], s[0:1], 64")
    A("v_lshrrev_b32 v1, 6, v0")
    A("v_and_b32 v0, 63, v0")
    A("v_readfirstlane_b32 s3, v1")
    A("s_and_b32 s4, s2, 7")
    A("s_lshr_b32 s5, s2, 3")
    A("s_lshr_b32 s6, s5, 4")
    A("s_and_b32 s7, s5, 15")
    A("s_and_b32 s8, s3, 3")
    A("s_lshl_b32 s9, s4, 2"); A("s_xor_b32 s9, s9, s5")
    A("s_mul_i32 s10, s5, 37"); A("s_lshr_b32 s10, s10, 8")
    A("s_mul_i32 s11, s10, 7"); A("s_sub_u32 s11, s5, s11")
    A("s_lshl_b32 s14, s4, 2"); A("s_add_u32 s10, s10, s14")
    A(f"s_mov_b32 s15, {SPIN}")
    A("s_mov_b32 s56, 0x05040100"); A("s_mov_b32 s57, 0x07060302"); A("s_mov_b32 s58, 0xffffff00")
    A(f"s_mov_b32 s59, {CEXP}")
    A("s_cmp_ge_u32 s3, 2"); A("s_cbranch_scc1 L_KV")

    A("s_setprio 3")
    A("s_cmp_eq_u32 s3, 1"); A("s_cbranch_scc1 L_A1pre")
    A("s_lshr_b32 s61, s5, 3")
    A("s_mul_i32 s14, s61, 112")
    A("v_lshrrev_b32 v2, 3, v0"); A("v_mul_u32_u24 v2, 14, v2"); A("v_add_u32 v2, s14, v2"); A("v_lshlrev_b32 v2, 13, v2")
    A("v_and_b32 v3, 7, v0"); A("v_lshl_add_u32 v2, v3, 4, v2")
    A("s_and_b32 s62, s5, 7"); A("s_lshl_b32 s63, s4, 3"); A("s_add_u32 s62, s62, s63"); A("s_lshl_b32 s62, s62, 7")
    A("v_add_u32 v2, s62, v2"); A("v_mov_b32 v3, 0")
    A("s_mov_b32 s62, 8192")
    A("v_and_b32 v4, 1, v0"); A("v_lshrrev_b32 v5, 4, v0"); A("v_lshl_add_u32 v4, v5, 1, v4")
    A("L_S1:")
    A("s_mov_b32 s63, 0")
    A("v_mul_u32_u24 v4, 28, v4"); A("s_lshl_b32 s14, s14, 1"); A("v_add_u32 v4, s14, v4")
    A("v_bfe_u32 v5, v0, 1, 1"); A("v_mul_u32_u24 v5, 896, v5"); A("v_add_u32 v4, v4, v5")
    A("v_lshrrev_b32 v6, 2, v0"); A("v_and_b32 v7, 1, v0"); A("v_lshl_add_u32 v6, v6, 1, v7")
    A("v_lshl_add_u32 v5, v6, 5, v5")
    A("v_cmp_gt_u32 vcc, 28, v6"); A("v_mov_b32 v7, 0x10000"); A("v_cndmask_b32 v5, v7, v5, vcc")
    A("s_cmp_eq_u32 s3, 1"); A("s_cbranch_scc1 L_S1b")
    A("s_waitcnt lgkmcnt(0)")
    A("v_lshl_add_u64 v[2:3], v[2:3], 0, s[22:23]")
    A("L_S1b:")
    srd(44, 16, 17, 1792)
    A("buffer_load_dwordx4 v[8:11], v5, s[44:47], 0 offen")
    A("buffer_load_dwordx4 v[12:15], v5, s[44:47], 0 offen offset:16")
    A("buffer_load_dwordx4 v[16:19], v4, s[44:47], 0 offen")
    A("buffer_load_dwordx3 v[20:22], v4, s[44:47], 0 offen offset:16")
    WD = 32
    for j in range(14):
        if "nowq" not in opt or j == 0: A(f"global_load_dwordx4 v[{WD+4*j}:{WD+4*j+3}], v[2:3], off nt")
        if j < 13: A("v_lshl_add_u64 v[2:3], v[2:3], 0, s[62:63]")
    A("s_cmp_eq_u32 s3, 1"); A("s_cbranch_scc1 L_S1c")
    A("s_barrier")
    A("L_S1c:")
    stamp(5)
    common_srd()
    A("s_branch L_S2")

    A("L_A1pre:")
    A("s_barrier")
    A("s_cmp_ge_u32 s5, 28"); A("s_cbranch_scc1 L_end")
    if "noffn" in opt:
        A("v_mov_b32 v6, 0"); A("v_mov_b32 v7, 1"); A("s_mov_b64 exec, 1"); A(f"ds_add_u32 v6, v7 offset:{F_X}"); A("s_endpgm")
    if "a1lo" in opt: A("s_setprio 0")
    A("s_mul_i32 s14, s4, 56")
    A("v_lshrrev_b32 v4, 4, v0")
    A("v_mul_u32_u24 v2, 14, v4"); A("v_add_u32 v2, s14, v2"); A("v_mul_u32_u24 v2, 3584, v2")
    A("v_and_b32 v3, 7, v0"); A("v_lshl_add_u32 v2, v3, 4, v2")
    A("s_lshl_b32 s62, s5, 7"); A("v_add_u32 v2, s62, v2"); A("v_mov_b32 v3, 0")
    A("s_waitcnt lgkmcnt(0)")
    A("v_lshl_add_u64 v[6:7], v[2:3], 0, s[30:31]")
    A("v_lshl_add_u64 v[2:3], v[2:3], 0, s[28:29]")
    A("v_mov_b32_dpp v2, v6 quad_perm:[0,1,2,3] row_mask:0xf bank_mask:0xc")
    A("v_mov_b32_dpp v3, v7 quad_perm:[0,1,2,3] row_mask:0xf bank_mask:0xc")
    A("s_mov_b32 s62, 3584")
    A("s_branch L_S1")

    A("L_KV:")
    A("s_lshl_b32 s60, s6, 3"); A("s_add_u32 s60, s60, s4"); A("s_lshl_b32 s60, s60, 24")
    A("s_lshl_b32 s14, s7, 17"); A("s_add_u32 s60, s60, s14"); A(f"s_add_u32 s60, s60, {28672*512}")
    A("s_cmp_lt_u32 s3, 8"); A("s_cbranch_scc1 L_notV")
    A("s_barrier")
    A("s_branch L_V")
    A("L_notV:")
    A("s_cmp_lg_u32 s3, 3"); A("s_cbranch_scc1 L_K")
    A("v_lshlrev_b32 v1, 4, v0")
    for r in range(2, 6): A(f"v_mov_b32 v{r}, 0")
    A("ds_write_b128 v1, v[2:5]")
    A("v_mov_b32 v6, 0xff800000"); A("v_mov_b32 v7, 0xff800000")
    A(f"ds_write_b64 v2, v[6:7] offset:{L_MAX}")
    A("s_waitcnt lgkmcnt(0)")
    A("s_barrier")
    A("s_branch L_A3")
    A("L_K:")

    A("s_setprio 2")
    A("v_and_b32 v2, 3, v0"); A("v_lshlrev_b32 v1, 9, v2")
    A("v_lshrrev_b32 v2, 2, v0"); A("v_lshl_add_u32 v1, v2, 4, v1")
    A("s_lshl_b32 s14, s8, 15"); A("v_add_u32 v1, s14, v1")
    A("s_lshr_b32 s61, s9, 1"); A("s_lshl_b32 s14, s8, 2"); A("s_xor_b32 s61, s61, s14")
    A("s_lshl_b32 s62, s61, 11")
    A("v_and_b32 v3, 31, v0"); A("v_lshlrev_b32 v3, 4, v3"); A("v_lshrrev_b32 v2, 5, v0"); A("v_lshl_add_u32 v3, v2, 11, v3")
    A("s_lshl_b32 s52, s4, 14"); A("s_lshl_b32 s14, s6, 13"); A("s_add_u32 s52, s52, s14")
    A("s_lshl_b32 s14, s8, 9"); A("s_add_u32 s52, s52, s14"); A(f"s_add_u32 s52, s52, {QP}")
    A("s_add_u32 s53, s52, 4096")
    A("s_waitcnt lgkmcnt(0)")
    srd(44, 18, 19, 131072, "s60")
    common_srd()
    A("s_barrier")
    KD = 32
    QAT = 12
    for t in range(16):
        if t == QAT:
            if "noq" not in opt:
                A("buffer_load_dwordx4 v[16:19], v3, s[40:43], s52 offen sc1")
                A("buffer_load_dwordx4 v[20:23], v3, s[40:43], s53 offen sc1")
            stamp(6)
        A(f"s_xor_b32 s14, s62, {t*2048}")
        r = KD + 8*t
        A(f"buffer_load_dwordx4 v[{r}:{r+3}], v1, s[44:47], s14 offen nt")
        A(f"buffer_load_dwordx4 v[{r+4}:{r+7}], v1, s[44:47], s14 offen offset:256 nt")
    stamp(1)
    A("v_and_b32 v2, 1, v0"); A("v_lshlrev_b32 v2, 9, v2")
    A("v_lshrrev_b32 v6, 2, v0"); A("v_lshl_add_u32 v2, v6, 4, v2")
    A("s_lshl_b32 s14, s61, 2"); A("s_lshl_b32 s62, s8, 6"); A("s_or_b32 s14, s14, s62")
    A("s_lshr_b32 s62, s9, 3"); A("s_lshl_b32 s62, s62, 6"); A("s_xor_b32 s14, s14, s62")
    A("s_and_b32 s62, s9, 7"); A("s_xor_b32 s14, s14, s62")
    A("v_xor_b32 v4, s14, v0"); A("v_lshlrev_b32 v4, 1, v4")
    A("v_mov_b32 v5, 0"); A("v_mov_b32 v167, 1")
    A("s_lshl_b32 s14, s8, 8"); A("v_lshlrev_b32 v1, 3, v0"); A("v_add_u32 v1, s14, v1")
    A("s_waitcnt lgkmcnt(0)")
    mktag(7)
    A(f"s_waitcnt vmcnt({2*(16-QAT)})")
    lq = lab("cq"); lrq = lab("rq")
    A(f"{lq}:")
    if "noq" not in opt: tagcheck(list(range(16, 24)), 7, 8, 9, lrq)
    stamp(7)
    for k in range(4): A(f"v_add_f32 v{16+k}, v{16+k}, v{20+k}")
    A("v_permlane32_swap_b32 v16, v18"); A("v_permlane32_swap_b32 v17, v19")
    A("v_add_f32 v16, v16, v18"); A("v_add_f32 v17, v17, v19")
    A("v_cvt_pk_bf16_f32 v16, v16, v17")
    A("v_and_b32 v8, 31, v0"); A("v_lshlrev_b32 v8, 3, v8"); A("v_lshrrev_b32 v9, 5, v0"); A("v_lshl_add_u32 v8, v9, 2, v8")
    A("s_lshl_b32 s14, s8, 8"); A("v_add_u32 v8, s14, v8")
    A(f"ds_write_b32 v8, v16 offset:{L_Q}")
    ldsinc(F_Q, 5, 167)
    spin_lds(F_Q, 4, 5, 6)
    A(f"ds_read_b128 v[8:11], v2 offset:{L_Q}")
    A(f"ds_read_b128 v[12:15], v2 offset:{L_Q+256}")
    A("s_waitcnt lgkmcnt(0)")
    def acc(t):
        B = t // 4
        return (16 if B == 0 else KD + 32*(B-1)) + 4*(t % 4)
    for B in range(4):
        if B == 3: A("s_waitcnt vmcnt(0)")
        for step in range(4):
            for tt in range(4):
                t = 4*B + tt
                a = acc(t); kd = KD + 8*t + 2*step; q = 8 + 2*step
                c = "0" if step == 0 else f"v[{a}:{a+3}]"
                A(f"v_mfma_f32_4x4x4_16b_bf16 v[{a}:{a+3}], v[{q}:{q+1}], v[{kd}:{kd+1}], {c}")
    val = {(t, h): acc(t) + h for t in range(16) for h in range(2)}
    for t in range(8):
        for h in range(2): A(f"v_permlane32_swap_b32 v{val[t,h]}, v{val[t+8,h]}")
    for t in range(8):
        for h in range(2): A(f"v_add_f32 v{val[t,h]}, v{val[t,h]}, v{val[t+8,h]}")
    for t in range(4):
        for h in range(2): A(f"v_permlane16_swap_b32 v{val[t,h]}, v{val[t+4,h]}")
    for t in range(4):
        for h in range(2): A(f"v_add_f32 v{val[t,h]}, v{val[t,h]}, v{val[t+4,h]}")
    for t in range(2):
        for h in range(2):
            o = 160 + 2*t + h
            A(f"v_add_f32_dpp v{o}, v{val[t,h]}, v{val[t,h]} row_ror:8 row_mask:0xf bank_mask:0x3")
    for t in range(2):
        for h in range(2):
            o = 160 + 2*t + h
            A(f"v_add_f32_dpp v{o}, v{val[t+2,h]}, v{val[t+2,h]} row_ror:8 row_mask:0xf bank_mask:0xc")
    for h in range(2): A(f"v_add_f32_dpp v{164+h}, v{160+h}, v{160+h} row_shl:4 row_mask:0xf bank_mask:0x5")
    for h in range(2): A(f"v_add_f32_dpp v{164+h}, v{162+h}, v{162+h} row_shr:4 row_mask:0xf bank_mask:0xa")
    A("v_cvt_pk_bf16_f32 v166, v164, v165")
    A("v_lshlrev_b32 v164, 16, v166"); A("v_and_b32 v165, 0xffff0000, v166")
    stamp(2)
    A("v_mov_b32 v16, v164"); A("v_mov_b32 v17, v165")
    A("v_permlane32_swap_b32 v16, v17"); A("v_max_f32 v16, v16, v17")
    allred_swap("v_max_f32", 16, 17, 16)
    allred16("v_max_f32", 16, ["row_ror:8", "row_ror:4", "row_ror:2", "row_ror:1"])
    A("v_lshrrev_b32 v18, 5, v0"); A("v_lshlrev_b32 v18, 2, v18")
    A("s_mov_b32 exec_lo, 1"); A("s_mov_b32 exec_hi, 1")
    A(f"ds_max_f32 v18, v16 offset:{L_MAX}")
    A("s_mov_b32 exec_hi, 0")
    A(f"ds_write_b32 v5, v7 offset:{L_TAG}")
    A(f"ds_add_u32 v5, v167 offset:{F_M}")
    A("s_mov_b64 exec, -1")
    spin_lds(F_M, 4, 5, 6)
    A(f"ds_read_b64 v[20:21], v5 offset:{L_MAX}")
    A("s_waitcnt lgkmcnt(0)")
    A("v_sub_f32 v22, v164, v20"); A("v_sub_f32 v23, v165, v21")
    A("v_mul_f32 v22, s59, v22"); A("v_mul_f32 v23, s59, v23")
    A("v_exp_f32 v22, v22"); A("v_exp_f32 v23, v23")
    A("v_cvt_pk_bf16_f32 v24, v22, v23")
    A(f"ds_write_b16 v4, v24 offset:{L_P}")
    A(f"ds_write_b16_d16_hi v4, v24 offset:{L_P+512}")
    ldsinc(F_P, 5, 167)
    stamp(3)
    A("v_permlane32_swap_b32 v22, v23"); A("v_add_f32 v27, v22, v23")
    allred_swap("v_add_f32", 27, 17, 16)
    allred16("v_add_f32", 27, ["row_ror:8", "row_ror:4", "row_ror:2", "row_ror:1"])
    A("v_cmp_lt_u32 vcc, 31, v0")
    A("v_cndmask_b32 v26, v20, v21, vcc")
    tag(26, 7); tag(27, 7)
    A("s_lshl_b32 s14, s4, 8"); A("s_lshl_b32 s62, s5, 2"); A("s_add_u32 s14, s14, s62"); A("s_add_u32 s14, s14, s8")
    A("s_lshl_b32 s14, s14, 3"); A(f"s_add_u32 s14, s14, {ST}")
    A("v_lshlrev_b32 v18, 8, v18")
    A("s_mov_b32 exec_lo, 1"); A("s_mov_b32 exec_hi, 1")
    if "nostatst" not in opt: A("buffer_store_dwordx2 v[26:27], v18, s[40:43], s14 offen sc1")
    A("s_mov_b64 exec, -1")
    A("s_cmp_ge_u32 s5, 28"); A("s_cbranch_scc1 L_FIN")
    A("s_setprio 0")
    srd(44, 24, 25, 4096*896); srd(48, 32, 33, 1792*896)
    A("v_lshrrev_b32 v2, 3, v0"); A("v_and_b32 v3, 7, v0"); A("v_lshlrev_b32 v3, 4, v3")
    A("v_mul_u32_u24 v1, 3584, v2"); A("v_add_u32 v1, v1, v3")
    A("v_mul_u32_u24 v4, 1792, v2"); A("v_add_u32 v4, v4, v3")
    A("s_lshl_b32 s14, s10, 2"); A("s_add_u32 s14, s14, s8")
    A("s_lshl_b32 s62, s11, 7")
    A("s_mul_i32 s61, s14, 28672"); A("s_add_u32 s61, s61, s62")
    A("s_mul_i32 s63, s14, 12544"); A("s_add_u32 s63, s63, s62")
    for r in range(48, 56): A(f"v_mov_b32 v{r}, 0")
    for j in range(4): A(f"buffer_load_dwordx4 v[{32+4*j}:{35+4*j}], v1, s[44:47], s61 offen offset:{896*j} nt")
    A("s_mov_b32 exec_hi, 0x00ffffff")
    for j in range(2): A(f"buffer_load_dwordx4 v[{48+4*j}:{51+4*j}], v4, s[48:51], s63 offen offset:{896*j} nt")
    A("s_mov_b64 exec, -1")
    stamp(8)
    BO = 64; PO = 96; AV = 112
    for d in range(8): A(f"v_mov_b32 v{BO+4*d+3}, 0")
    for r in range(AV, AV+16): A(f"v_mov_b32 v{r}, 0")
    A("v_and_b32 v2, 1, v0"); A("v_lshrrev_b32 v3, 4, v0"); A("v_lshl_add_u32 v2, v3, 1, v2")
    A("v_bfe_u32 v3, v0, 1, 1")
    A("v_bfe_u32 v6, v0, 2, 2")
    A("v_lshlrev_b32 v1, 4, v2"); A("v_lshl_add_u32 v1, v3, 13, v1"); A("v_lshl_add_u32 v1, v6, 9, v1")
    A("v_lshlrev_b32 v12, 4, v6"); A("v_lshl_add_u32 v12, v3, 6, v12")
    A("s_lshl_b32 s61, s10, 14"); A("s_lshl_b32 s14, s8, 7"); A("s_add_u32 s61, s61, s14"); A(f"s_add_u32 s61, s61, {OP}")
    A("s_add_u32 s63, s61, 4096")
    A("v_lshlrev_b32 v4, 2, v2"); A("v_lshl_add_u32 v4, v3, 7, v4")
    A("s_mul_i32 s14, s8, 28"); A(f"s_add_u32 s14, s14, {L_H}"); A("v_add_u32 v4, s14, v4")
    A("v_cmp_eq_u32 vcc, 7, v2"); A(f"v_mov_b32 v6, {L_ZERO}"); A("v_cndmask_b32 v4, v4, v6, vcc")
    A("v_and_b32 v2, 15, v0"); A("v_lshlrev_b32 v2, 5, v2"); A("v_lshrrev_b32 v3, 4, v0"); A("v_lshl_add_u32 v2, v3, 3, v2")
    A("s_lshl_b32 s14, s8, 9"); A("v_add_u32 v2, s14, v2")
    A("s_setprio 3")
    spin_lds(F_V, 4, 5, 6)
    lp = lab("pa"); lr = lab("ra")
    def polla():
        for u in range(4):
            A(f"buffer_load_dwordx4 v[{PO+4*u}:{PO+4*u+3}], v1, s[40:43], s{61 if u < 2 else 63} offen offset:{2048*(u%2)} sc1")
    polla()
    A("s_waitcnt vmcnt(4)")
    stamp(9)
    for c in range(4):
        for e in range(2):
            d = 2*c + e
            for q, (lo, hi) in enumerate([(32, 36), (40, 44), (48, 52)]):
                A(f"v_perm_b32 v{BO+4*d+q}, v{hi+c}, v{lo+c}, s{56+e}")
    spin_lds(F_X, 2, 5, 6)
    A("ds_read_b32 v6, v4")
    A(f"ds_read_b128 v[24:27], v12 offset:{L_W}")
    A("s_waitcnt lgkmcnt(0)")
    for rg in range(4): A(f"v_mov_b32_dpp v{AV+4*rg+2}, v6 quad_perm:[0,1,2,3] row_mask:0xf bank_mask:{1<<rg}")
    A(f"{lp}:")
    A("s_waitcnt vmcnt(0)")
    tagcheck(list(range(PO, PO+16)), 7, 8, 9, lr)
    stamp(4)
    for k in range(4): A(f"v_mul_f32 v{PO+k}, v24, v{PO+k}")
    for u in range(1, 4):
        for k in range(4): A(f"v_fmac_f32 v{PO+k}, v{24+u}, v{PO+4*u+k}")
    for st in ("row_ror:4", "row_ror:8"):
        for k in range(4): A(f"v_add_f32_dpp v{PO+k}, v{PO+k}, v{PO+k} {st} row_mask:0xf bank_mask:0xf")
    A(f"v_cvt_pk_bf16_f32 v8, v{PO}, v{PO+1}"); A(f"v_cvt_pk_bf16_f32 v9, v{PO+2}, v{PO+3}")
    for rg in range(4):
        for k in range(2): A(f"v_mov_b32_dpp v{AV+4*rg+k}, v{8+k} quad_perm:[0,1,2,3] row_mask:0xf bank_mask:{1<<rg}")
    for rg in range(4):
        for e in range(2):
            d = 2*rg + e; a = 16 + 4*e
            c = "0" if rg == 0 else f"v[{a}:{a+3}]"
            A(f"v_mfma_f32_16x16x32_bf16 v[{a}:{a+3}], v[{AV+4*rg}:{AV+4*rg+3}], v[{BO+4*d}:{BO+4*d+3}], {c}")
    for e in range(2):
        A(f"v_add_f32_dpp v{10+e}, v{16+4*e+1}, v{16+4*e} row_ror:8 row_mask:0xf bank_mask:0x3")
    for e in range(2):
        A(f"v_add_f32_dpp v{10+e}, v{16+4*e+2}, v{16+4*e+3} row_ror:8 row_mask:0xf bank_mask:0xc")
    A(f"ds_write_b64 v2, v[10:11] offset:{L_Y}")
    A("s_waitcnt lgkmcnt(0)")
    A("s_barrier")
    A("s_cmp_lg_u32 s8, 0"); A("s_cbranch_scc1 L_end")
    A("s_mov_b32 exec_hi, 0")
    A("v_lshlrev_b32 v1, 4, v0")
    for k in range(4): A(f"ds_read_b128 v[{PO+4*k}:{PO+4*k+3}], v1 offset:{L_Y+512*k}")
    A("s_lshl_b32 s14, s11, 5"); A("s_add_u32 s14, s14, s10"); A("s_lshl_b32 s14, s14, 9"); A(f"s_add_u32 s14, s14, {YP}")
    A("s_waitcnt lgkmcnt(2)")
    for k in range(4): A(f"v_add_f32 v{PO+k}, v{PO+k}, v{PO+4+k}")
    A("s_waitcnt lgkmcnt(0)")
    for k in range(4): A(f"v_add_f32 v{PO+8+k}, v{PO+8+k}, v{PO+12+k}")
    for k in range(4): A(f"v_add_f32 v{PO+k}, v{PO+k}, v{PO+8+k}")
    for k in range(4): tag(PO+k, 7)
    A(f"buffer_store_dwordx4 v[{PO}:{PO+3}], v1, s[40:43], s14 offen sc1")
    stamp(5)
    flush([(1, 3), (2, 4), (3, 5), (4, 9), (5, 10), (6, 22), (7, 2), (8, 23), (9, 24)])
    A("s_endpgm")
    A(f"{lr}:")
    polla()
    A("s_sub_u32 s15, s15, 1")
    A(f"s_cbranch_scc0 {lp}")
    A("s_endpgm")
    A(f"{lrq}:")
    A("buffer_load_dwordx4 v[16:19], v3, s[40:43], s52 offen sc1")
    A("buffer_load_dwordx4 v[20:23], v3, s[40:43], s53 offen sc1")
    A("s_waitcnt vmcnt(0)")
    A("s_sub_u32 s15, s15, 1")
    A(f"s_cbranch_scc0 {lq}")
    A("s_endpgm")

    A("L_FIN:")
    A("s_lshl_b32 s60, s4, 2"); A("s_add_u32 s60, s60, s5"); A("s_sub_u32 s60, s60, 28")
    A("s_cmp_lg_u32 s8, 0"); A("s_cbranch_scc1 L_end")
    A("s_cmp_ge_u32 s60, 28"); A("s_cbranch_scc1 L_end")
    srd(44, 16, 17, 1792); srd(48, 34, 35, 1792)
    A("v_and_b32 v2, 7, v0"); A("v_lshlrev_b32 v2, 2, v2"); A("v_bfe_u32 v3, v0, 4, 1"); A("v_lshl_add_u32 v2, v3, 1, v2")
    A("v_lshrrev_b32 v3, 5, v0"); A("v_add_u32 v2, v2, v3")
    A("s_lshr_b32 s14, s60, 2"); A("s_lshl_b32 s14, s14, 6")
    A("s_and_b32 s62, s60, 1"); A("s_lshl_b32 s62, s62, 5"); A("s_add_u32 s14, s14, s62")
    A("s_bfe_u32 s62, s60, 0x10001"); A("s_mul_i32 s62, s62, 448"); A("s_add_u32 s14, s14, s62")
    A("v_add_u32 v2, s14, v2"); A("v_lshlrev_b32 v2, 1, v2")
    A("buffer_load_ushort v3, v2, s[44:47], 0 offen")
    A("v_lshrrev_b32 v4, 3, v0"); A("v_lshlrev_b32 v4, 9, v4"); A("v_and_b32 v6, 7, v0"); A("v_lshl_add_u32 v4, v6, 4, v4")
    A("s_lshr_b32 s61, s60, 2"); A("s_lshl_b32 s61, s61, 14"); A("s_and_b32 s14, s60, 3"); A("s_lshl_b32 s14, s14, 7")
    A("s_add_u32 s61, s61, s14"); A(f"s_add_u32 s52, s61, {YP}")
    A("s_add_u32 s53, s52, 4096"); A("s_add_u32 s54, s52, 8192"); A("s_add_u32 s55, s52, 12288")
    A("s_waitcnt vmcnt(0)")
    A("v_lshlrev_b32 v3, 16, v3")
    spin_lds(F_V, 4, 5, 6)
    lp2 = lab("py"); lr2 = lab("ry")
    A(f"{lp2}:")
    for j in range(4): A(f"buffer_load_dwordx4 v[{16+4*j}:{19+4*j}], v4, s[40:43], s{52+j} offen sc1")
    A("s_waitcnt vmcnt(0)")
    tagcheck(list(range(16, 32)), 7, 12, 13, lr2)
    stamp(4)
    for k in range(4): A(f"v_add_f32 v{16+k}, v{16+k}, v{20+k}")
    for k in range(4): A(f"v_add_f32 v{24+k}, v{24+k}, v{28+k}")
    for k in range(4): A(f"v_add_f32 v{16+k}, v{16+k}, v{24+k}")
    A("v_permlane32_swap_b32 v16, v17"); A("v_permlane32_swap_b32 v18, v19")
    A("v_add_f32 v16, v16, v17"); A("v_add_f32 v18, v18, v19")
    A("v_permlane16_swap_b32 v16, v18"); A("v_add_f32 v16, v16, v18")
    A("v_add_f32_dpp v16, v16, v16 row_ror:8 row_mask:0xf bank_mask:0xf")
    A("v_add_f32 v16, v16, v3")
    A("v_cvt_pk_bf16_f32 v16, v16, v16")
    if "delay" in opt:
        A("L_dly:"); A("s_memrealtime s[92:93]"); A("s_waitcnt lgkmcnt(0)"); A("s_sub_u32 s92, s92, s90"); A("s_cmp_lt_u32 s92, 4000"); A("s_cbranch_scc1 L_dly")
    A("s_mov_b32 exec_lo, 0x00ff00ff"); A("s_mov_b32 exec_hi, 0x00ff00ff")
    A("buffer_store_short v16, v2, s[48:51], 0 offen")
    A("s_cmp_lg_u32 s60, 0"); A("s_cbranch_scc1 L_noep")
    A("s_mov_b64 exec, 1")
    A("s_add_u32 s14, s13, 1"); A("v_mov_b32 v6, s14")
    A("buffer_store_dword v6, v5, s[40:43], 0 offen")
    A("L_noep:")
    stamp(5)
    flush([(1, 3), (2, 4), (3, 5), (4, 11), (5, 12), (6, 22), (7, 2)])
    A("s_endpgm")
    retry_block(lr2, lp2, sleep=0)

    A("L_V:")
    A("s_setprio 1")
    A("v_lshrrev_b32 v2, 3, v0"); A("v_lshlrev_b32 v1, 12, v2")
    A("v_and_b32 v2, 7, v0"); A("v_lshl_add_u32 v1, v2, 4, v1")
    A("s_lshl_b32 s14, s8, 7"); A("v_add_u32 v1, s14, v1")
    A("s_and_b32 s62, s9, 7"); A("s_lshl_b32 s62, s62, 9"); A("s_lshr_b32 s14, s9, 3"); A("s_lshl_b32 s14, s14, 15"); A("s_or_b32 s62, s62, s14")
    A("s_waitcnt lgkmcnt(0)")
    srd(44, 20, 21, 131072, "s60")
    common_srd()
    VD = 40
    for t in range(32):
        A(f"s_xor_b32 s14, s62, {(t>>3)*32768 + (t&7)*512}")
        r = VD + 4*t
        A(f"buffer_load_dwordx4 v[{r}:{r+3}], v1, s[44:47], s14 offen nt")
    stamp(1)
    A("v_and_b32 v6, 1, v0"); A("v_lshrrev_b32 v7, 4, v0"); A("v_lshl_add_u32 v6, v7, 1, v6"); A("v_lshlrev_b32 v6, 4, v6")
    A("v_bfe_u32 v7, v0, 1, 1"); A("v_lshl_add_u32 v6, v7, 9, v6"); A(f"v_add_u32 v6, {L_P}, v6")
    for rg in range(4): A(f"v_mov_b32 v{2+rg}, {L_ZERO}")
    for rg in range(4): A(f"v_mov_b32_dpp v{2+rg}, v6 quad_perm:[0,1,2,3] row_mask:0xf bank_mask:{1<<rg}")
    A("v_mov_b32 v6, 0")
    spin_lds(F_P, 4, 6, 7)
    A("s_setprio 3")
    def rdA(g4, base):
        for rg in range(4): A(f"ds_read_b128 v[{base+4*rg}:{base+4*rg+3}], v{2+rg} offset:{128*g4}")
    Abase = {0: 24, 1: VD, 2: VD+16, 3: 24}
    rdA(0, 24)
    for g4 in range(3):
        ab = Abase[g4]; D = VD + 32*g4
        A(f"s_waitcnt vmcnt({24-8*g4}) lgkmcnt(0)")
        for c in range(4):
            for e in range(2):
                for q in range(4):
                    A(f"v_perm_b32 v{16+4*e+q}, v{D+8*q+4+c}, v{D+8*q+c}, s{56+e}")
            for e in range(2):
                a = 8 + 4*e
                cc = "0" if (g4 == 0 and c == 0) else f"v[{a}:{a+3}]"
                A(f"v_mfma_f32_16x16x32_bf16 v[{a}:{a+3}], v[{ab+4*c}:{ab+4*c+3}], v[{16+4*e}:{19+4*e}], {cc}")
        if g4 == 0:
            rdA(1, VD); rdA(2, VD+16); rdA(3, 24)
    mktag(3)
    A("v_mov_b32 v2, 1")
    A("v_bfe_u32 v7, v0, 3, 1")
    A("v_and_b32 v1, 7, v0"); A("v_lshlrev_b32 v1, 5, v1"); A("v_lshl_add_u32 v1, v7, 15, v1")
    A("v_lshrrev_b32 v7, 4, v0"); A("v_lshl_add_u32 v1, v7, 3, v1")
    A("s_lshl_b32 s61, s4, 16"); A("s_lshr_b32 s14, s8, 1"); A("s_lshl_b32 s14, s14, 14"); A("s_add_u32 s61, s61, s14")
    A("s_lshl_b32 s14, s5, 9"); A("s_add_u32 s61, s61, s14")
    A("s_and_b32 s14, s8, 1"); A("s_lshl_b32 s14, s14, 8"); A("s_add_u32 s61, s61, s14"); A(f"s_add_u32 s61, s61, {OP}")
    TT = VD + 32
    D = VD + 96
    for q in range(4):
        A(f"s_waitcnt vmcnt({6-2*q})")
        if q == 3: stamp(2)
        for c in range(4):
            for e in range(2):
                A(f"v_perm_b32 v{TT+4*(2*c+e)+q}, v{D+8*q+4+c}, v{D+8*q+c}, s{56+e}")
    for c in range(4):
        for e in range(2):
            a = 8 + 4*e; d = 2*c + e
            A(f"v_mfma_f32_16x16x32_bf16 v[{a}:{a+3}], v[{24+4*c}:{27+4*c}], v[{TT+4*d}:{TT+4*d+3}], v[{a}:{a+3}]")
    for e in range(2): A(f"v_add_f32_dpp v{4+e}, v{8+4*e+1}, v{8+4*e} row_ror:8 row_mask:0xf bank_mask:0x3")
    for e in range(2): A(f"v_add_f32_dpp v{4+e}, v{8+4*e+2}, v{8+4*e+3} row_ror:8 row_mask:0xf bank_mask:0xc")
    tag(4, 3); tag(5, 3)
    A("buffer_store_dwordx2 v[4:5], v1, s[40:43], s61 offen sc1")
    A("s_mov_b64 exec, 1")
    A(f"ds_add_u32 v6, v2 offset:{F_V}")
    stamp(3)
    flush([(1, 6), (2, 7), (3, 8)])
    A("s_endpgm")

    A("L_S2:")
    A("s_waitcnt vmcnt(16)")
    stamp(6)
    X = 96
    for k in range(8):
        A(f"v_lshlrev_b32 v{X+2*k}, 16, v{8+k}"); A(f"v_and_b32 v{X+2*k+1}, 0xffff0000, v{8+k}")
    for k in range(8): A(f"v_add_f32 v{8+k}, v{X+2*k}, v{X+2*k+1}")
    for k in range(4): A(f"v_add_f32 v{8+k}, v{8+k}, v{12+k}")
    A("v_add_f32 v8, v8, v10"); A("v_add_f32 v9, v9, v11"); A("v_add_f32 v8, v8, v9")
    def red_b(r, t):
        allred16("v_add_f32", r, ["quad_perm:[1,0,3,2]", "row_ror:4", "row_ror:8"])
        allred_swap("v_add_f32", r, t, 16); allred_swap("v_add_f32", r, t, 32)
    red_b(8, 9)
    A("v_mul_f32 v8, 0x3b124925, v8")
    for k in range(16): A(f"v_sub_f32 v{X+k}, v{X+k}, v8")
    A(f"v_mul_f32 v10, v{X}, v{X}"); A(f"v_mul_f32 v11, v{X+1}, v{X+1}")
    for k in range(2, 16): A(f"v_fmac_f32 v{10+k%2}, v{X+k}, v{X+k}")
    A("v_add_f32 v10, v10, v11")
    A("v_cndmask_b32 v10, 0, v10, vcc")
    red_b(10, 9)
    A("v_mul_f32 v10, 0x3b124925, v10")
    rnd(8); rnd(10)
    A("v_add_f32 v10, 0x3727c5ac, v10"); rnd(10)
    A("v_sqrt_f32 v10, v10"); rnd(10)
    A("v_rcp_f32 v11, v10")
    A("v_fma_f32 v12, -v10, v11, 1.0"); A("v_fma_f32 v11, v12, v11, v11")
    A("s_waitcnt vmcnt(14)")
    for k in range(7):
        A(f"v_lshlrev_b32 v{X+2*k}, 16, v{16+k}"); A(f"v_and_b32 v{X+2*k+1}, 0xffff0000, v{16+k}")
    for k in range(14): A(f"v_sub_f32 v{X+k}, v{X+k}, v8")
    for k in range(7): A(f"v_cvt_pk_bf16_f32 v{16+k}, v{X+2*k}, v{X+2*k+1}")
    for k in range(7):
        A(f"v_lshlrev_b32 v{X+2*k}, 16, v{16+k}"); A(f"v_and_b32 v{X+2*k+1}, 0xffff0000, v{16+k}")
    for k in range(14): A(f"v_mul_f32 v{X+k}, v{X+k}, v11")
    for k in range(7): A(f"v_cvt_pk_bf16_f32 v{16+k}, v{X+2*k}, v{X+2*k+1}")
    A("v_mov_b32 v23, 0")
    TB = 88
    A("v_mov_b32 v95, 0"); A("v_mov_b32 v31, 0")
    AC = 112
    stamp(7)
    A("s_waitcnt vmcnt(0) lgkmcnt(0)")
    stamp(8)
    mktag(1)
    for d in range(8):
        c = d >> 1; e = d & 1; T = TB if e == 0 else 24
        for q in range(7): A(f"v_perm_b32 v{T+q}, v{WD+8*q+4+c}, v{WD+8*q+c}, s{56+e}")
        a = AC + 4*d
        A(f"v_mfma_f32_16x16x32_bf16 v[{a}:{a+3}], v[16:19], v[{T}:{T+3}], 0")
        A(f"v_mfma_f32_16x16x32_bf16 v[{a}:{a+3}], v[20:23], v[{T+4}:{T+7}], v[{a}:{a+3}]")
    A("v_and_b32 v5, 7, v0"); A("v_lshlrev_b32 v5, 5, v5"); A("v_lshrrev_b32 v6, 4, v0"); A("v_lshl_add_u32 v5, v6, 3, v5")
    A("v_bfe_u32 v6, v0, 3, 1")
    A("s_cmp_eq_u32 s3, 1"); A("s_cbranch_scc1 L_A1post")
    for rg in range(4):
        for half in range(2):
            for e in range(2):
                a = AC + 4*(2*rg+e)
                if half == 0: A(f"v_add_f32_dpp v{8+e}, v{a+1}, v{a} row_ror:8 row_mask:{1<<rg} bank_mask:0x3")
                else: A(f"v_add_f32_dpp v{8+e}, v{a+2}, v{a+3} row_ror:8 row_mask:{1<<rg} bank_mask:0xc")
    tag(8, 1); tag(9, 1)
    A("v_lshl_add_u32 v5, v6, 13, v5")
    A("s_lshl_b32 s14, s4, 14"); A("s_lshl_b32 s62, s61, 11"); A("s_add_u32 s14, s14, s62")
    A("s_and_b32 s62, s5, 7"); A("s_lshl_b32 s62, s62, 8"); A("s_add_u32 s14, s14, s62"); A(f"s_add_u32 s14, s14, {QP}")
    if "noqst" not in opt: A("buffer_store_dwordx2 v[8:9], v5, s[40:43], s14 offen sc1")
    stamp(1)
    if stamps:
        A("s_waitcnt vmcnt(0)")
        stamp(9)
    flush([(0, 0), (1, 1), (5, 17), (6, 18), (7, 19), (8, 20), (9, 21)])
    A("s_endpgm")
    A("L_A1post:")
    A("s_nop 7")
    for rg in range(4):
        for b in range(2):
            for e in range(2):
                a = AC + 4*(2*rg+e) + 2*b
                A(f"v_mov_b32_dpp v{8+2*b+e}, v{a} quad_perm:[0,1,2,3] row_mask:{1<<rg} bank_mask:0xf")
    for k in range(4): tag(8+k, 1)
    A("v_mul_u32_u24 v6, 14336, v6"); A("v_add_u32 v5, v5, v6")
    A("s_mul_i32 s14, s4, 28672"); A("s_lshl_b32 s62, s5, 8"); A("s_add_u32 s14, s14, s62"); A(f"s_add_u32 s14, s14, {FPB}")
    A("s_add_u32 s62, s14, 7168")
    A("buffer_store_dwordx2 v[8:9], v5, s[40:43], s14 offen sc1")
    A("buffer_store_dwordx2 v[10:11], v5, s[40:43], s62 offen sc1")
    stamp(2)
    A("v_lshrrev_b32 v6, 4, v0"); A("v_mul_u32_u24 v5, 7168, v6"); A("v_and_b32 v7, 15, v0"); A("v_lshl_add_u32 v5, v7, 4, v5")
    A("s_mul_i32 s61, s10, 224"); A(f"s_add_u32 s61, s61, {FPB}")
    A("v_mov_b32 v6, 0")
    if "nofpoll" in opt:
        A("v_mov_b32 v7, 1"); A("s_mov_b64 exec, 1"); A(f"ds_add_u32 v6, v7 offset:{F_X}"); A("s_endpgm")
    spin_lds(F_P, 4, 6, 7, sleep=4)
    A("s_mov_b32 exec_lo, 0x3fff3fff"); A("s_mov_b32 exec_hi, 0x3fff3fff")
    lp = lab("pf"); lr = lab("rf")
    A(f"{lp}:")
    A("s_mov_b32 s62, s61")
    for k in range(8):
        A(f"buffer_load_dwordx4 v[{WD+4*k}:{WD+4*k+3}], v5, s[40:43], s62 offen sc1")
        if k < 7: A("s_add_u32 s62, s62, 28672")
    A("s_waitcnt vmcnt(0)")
    tagcheck(list(range(WD, WD+32)), 1, 8, 9, lr)
    for k in range(16): A(f"v_add_f32 v{WD+k}, v{WD+k}, v{WD+16+k}")
    for k in range(8): A(f"v_add_f32 v{WD+k}, v{WD+k}, v{WD+8+k}")
    for k in range(4): A(f"v_add_f32 v{WD+k}, v{WD+k}, v{WD+4+k}")
    for k in range(4): rnd(WD+k)
    A("s_mov_b64 exec, -1")
    for k in range(4): A(f"v_mov_b32 v{WD+4+k}, v{WD+k}")
    for k in range(4): A(f"v_permlane32_swap_b32 v{WD+k}, v{WD+4+k}")
    for k in range(4): A(f"v_mul_f32 v{8+k}, v{WD+k}, v{WD+k}")
    A("s_mov_b32 s14, 0x3d372713")
    for k in range(4): A(f"v_fma_f32 v{8+k}, v{8+k}, s14, 1.0")
    for k in range(4): A(f"v_mul_f32 v{8+k}, v{8+k}, v{WD+k}")
    for k in range(4): A(f"v_mul_f32 v{8+k}, 0xc0135761, v{8+k}")
    for k in range(4): A(f"v_exp_f32 v{8+k}, v{8+k}")
    for k in range(4): A(f"v_add_f32 v{8+k}, 1.0, v{8+k}")
    for k in range(4): A(f"v_rcp_f32 v{8+k}, v{8+k}")
    for k in range(4): A(f"v_mul_f32 v{8+k}, v{8+k}, v{WD+k}")
    for k in range(4): rnd(8+k)
    for k in range(4): A(f"v_mul_f32 v{8+k}, v{8+k}, v{WD+4+k}")
    A("v_cvt_pk_bf16_f32 v12, v8, v9"); A("v_cvt_pk_bf16_f32 v13, v10, v11")
    A("v_lshlrev_b32 v5, 3, v0"); A("v_mov_b32 v7, 1")
    A("s_mov_b32 exec_lo, 0x3fff3fff"); A("s_mov_b32 exec_hi, 0")
    A(f"ds_write_b64 v5, v[12:13] offset:{L_H}")
    A("s_mov_b64 exec, 1")
    A(f"ds_add_u32 v6, v7 offset:{F_X}")
    A("s_waitcnt lgkmcnt(0)")
    stamp(1)
    flush([(1, 13), (2, 25)], cond_sub0=False)
    A("s_endpgm")
    retry_block(lr, lp, sleep=8)

    A("L_A3:")
    A("s_setprio 3")
    A("s_cmp_ge_u32 s5, 28"); A("s_cbranch_scc1 L_end")
    A("s_waitcnt lgkmcnt(0)")
    srd(40, 38, 39, WS_SIZE)
    A("v_mov_b32 v6, 0")
    A("v_lshlrev_b32 v5, 4, v0")
    A("s_lshr_b32 s61, s10, 1"); A("s_lshl_b32 s61, s61, 10"); A(f"s_add_u32 s61, s61, {ST}")
    A("v_bfe_u32 v2, v0, 1, 2"); A("v_lshlrev_b32 v2, 4, v2"); A("v_bfe_u32 v3, v0, 3, 2"); A("v_lshl_add_u32 v2, v3, 2, v2")
    A("v_lshrrev_b32 v3, 5, v0"); A("v_lshl_add_u32 v2, v3, 6, v2")
    if "nostat" in opt:
        A("v_mov_b32 v7, 1"); A("s_mov_b64 exec, 1"); A(f"ds_add_u32 v6, v7 offset:{F_X}"); A("s_endpgm")
    spin_lds(F_V if "latestat" in opt else F_P, 4, 6, 7, sleep=4)
    A(f"ds_read_b32 v1, v6 offset:{L_TAG}")
    lp = lab("ps"); lr = lab("rs")
    A(f"{lp}:")
    A("buffer_load_dwordx4 v[8:11], v5, s[40:43], s61 offen sc1")
    A("s_waitcnt vmcnt(0) lgkmcnt(0)")
    tagcheck([8, 9, 10, 11], 1, 12, 13, lr)
    A("v_and_b32 v8, 0xffff0000, v8")
    A("v_add_f32 v9, v9, v11")
    A("v_mov_b32 v12, v8")
    allred_swap("v_max_f32", 12, 13, 16)
    allred16("v_max_f32", 12, ["row_ror:8", "row_ror:4", "row_ror:2"])
    A("v_sub_f32 v8, v8, v12"); A("v_mul_f32 v8, s59, v8"); A("v_exp_f32 v8, v8")
    A("v_mul_f32 v9, v9, v8")
    allred_swap("v_add_f32", 9, 13, 16)
    allred16("v_add_f32", 9, ["row_ror:8", "row_ror:4", "row_ror:2", "row_ror:1"])
    A("v_rcp_f32 v10, v9")
    A("v_fma_f32 v11, -v9, v10, 1.0"); A("v_fma_f32 v10, v11, v10, v10")
    A("v_mul_f32 v8, v8, v10")
    A(f"ds_write_b32 v2, v8 offset:{L_W}")
    A("v_mov_b32 v7, 1")
    A("s_mov_b64 exec, 1")
    A(f"ds_add_u32 v6, v7 offset:{F_X}")
    A("s_waitcnt lgkmcnt(0)")
    stamp(1)
    flush([(1, 14)], cond_sub0=False)
    A("s_endpgm")
    retry_block(lr, lp, sleep=0)
    A("L_end:")
    A("s_endpgm")
    txt = A.finish()
    return txt

def with_prefetch(txt):
    pf = f"""    s_cmp_lg_u32 s3, 2
    s_cbranch_scc1 L_nopf
    s_getpc_b64 s[60:61]
L_pc:
    s_sub_u32 s60, s60, L_pc-{NAME}_kernel
    s_subb_u32 s61, s61, 0
    v_lshlrev_b32 v1, 7, v0
    v_add_u32 v2, 8192, v1
    global_load_dword v3, v1, s[60:61]
    v_cmp_gt_u32 vcc, L_end-{NAME}_kernel, v2
    s_and_saveexec_b64 s[62:63], vcc
    global_load_dword v4, v2, s[60:61]
    s_barrier
    s_endpgm
L_nopf:
"""
    return txt.replace("L_KV:\n", "L_KV:\n" + pf, 1)

HEADER = open("cdna_kernels/%s.s.ref" % NAME).read().split("; Override launch")[0]
def full(stamps=False, opt=()):
    body = with_prefetch(gen(stamps, opt))
    if "nopf" in opt: body = body.replace("global_load_dword v3, v1, s[60:61]","s_nop 0").replace("global_load_dword v4, v2, s[60:61]","s_nop 0")
    if "pfnt" in opt: body = body.replace("global_load_dword v3, v1, s[60:61]","global_load_dword v3, v1, s[60:61] nt").replace("global_load_dword v4, v2, s[60:61]","global_load_dword v4, v2, s[60:61] nt")
    if "xnt" in opt: body = body.replace("s[44:47], 0 offen offset:16","s[44:47], 0 offen offset:16 nt").replace("s[44:47], 0 offen\n","s[44:47], 0 offen nt\n")
    return HEADER + f"""; @launch grid=(256,1,1) block=(768,1,1) lds={LDS_SIZE}
.amdgcn_target "amdgcn-amd-amdhsa--gfx950"
.text
.globl {NAME}_kernel
.p2align 8
.type {NAME}_kernel,@function
{NAME}_kernel:
{body}
.section .rodata,"a"
.p2align 6
.amdhsa_kernel {NAME}_kernel
  .amdhsa_next_free_vgpr 168
  .amdhsa_next_free_sgpr 96
  .amdhsa_accum_offset 168
  .amdhsa_group_segment_fixed_size 0
  .amdhsa_kernarg_size 96
  .amdhsa_user_sgpr_count 2
  .amdhsa_user_sgpr_kernarg_segment_ptr 1
  .amdhsa_system_sgpr_workgroup_id_x 1
.end_amdhsa_kernel
"""
if __name__ == "__main__":
    out = sys.argv[1] if len(sys.argv) > 1 else "cdna_kernels/%s.s" % NAME
    open(out, "w").write(full(stamps=(len(sys.argv) > 2 and sys.argv[2] == "stamps"), opt=sys.argv[3:]))
```

```python
import sys
from asmgen import Asm
NAME = "parallel_sum__sliding_block_cached__glu_gated_geglu__decode"

IDS = 0x1000; QP = 0x10000; FPB = 0x30000; HB = 0x68000; ST = 0x70000; OP = 0x80000; YP = 0x100000
FAR = 0x120000
WS_SIZE = 0x240000
F_Q, F_P, F_M, F_X, F_V, F_VI, F_KI, F_MODE = 0x00, 0x04, 0x08, 0x0c, 0x20, 0x24, 0x28, 0x2c
L_MAX, L_TAG, L_MODE = 0x10, 0x18, 0x1c
L_W = 0x80
L_ZERO = 0x100
L_Q, L_P, L_Y = 0x400, 0x800, 0x1000
LDS_SIZE = 0x1800
CEXP = 0x3db8aa3b
SPIN = 0x100000

def gen(stamps=False, opt=()):
    A = Asm()
    uid = [0]
    pads = []
    def getopt(name, default):
        for o in opt:
            if o.startswith(name + "="): return int(o.split("=")[1])
        return default
    def lab(p):
        uid[0] += 1
        return f"L_{p}{uid[0]}"
    def pad(prio=5):
        n = len(pads) + 1
        pads.append((prio, n))
        A(f"L_pad{n}:")
        A(f"s_cbranch_execz @NEXT{n}@")
    def stamp(k):
        if stamps: A(f"s_memrealtime s[{64+2*k}:{65+2*k}]")
    def flush(slots, cond_sub0=True, persub=()):
        if not stamps: return
        A("s_waitcnt lgkmcnt(0)")
        A("s_mov_b64 exec, -1")
        A("v_mov_b32 v1, 0"); A("v_mov_b32 v2, 0"); A("v_mov_b32 v3, 0")
        A("s_lshl_b32 s14, s2, 9")
        A("s_add_u32 s62, s38, s14"); A("s_addc_u32 s63, s39, 0")
        A("s_add_u32 s62, s62, 0x20000000"); A("s_addc_u32 s63, s63, 0")
        n = 0
        for k, slot in persub:
            A("s_lshl_b32 s14, s8, 3"); A(f"s_add_u32 s14, s14, {slot*8}")
            A(f"v_writelane_b32 v1, s14, {n}"); A(f"v_writelane_b32 v2, s{64+2*k}, {n}"); A(f"v_writelane_b32 v3, s{65+2*k}, {n}")
            n += 1
        np_ = n
        for k, slot in slots:
            A(f"s_movk_i32 s14, {slot*8}")
            A(f"v_writelane_b32 v1, s14, {n}"); A(f"v_writelane_b32 v2, s{64+2*k}, {n}"); A(f"v_writelane_b32 v3, s{65+2*k}, {n}")
            n += 1
        A("s_mov_b32 exec_hi, 0")
        if cond_sub0:
            A("s_cmp_eq_u32 s8, 0"); A(f"s_cselect_b32 exec_lo, {(1<<n)-1}, {(1<<np_)-1}")
            if np_ == 0: A("s_cbranch_execz L_end")
        else:
            A(f"s_mov_b32 exec_lo, {(1<<n)-1}")
        A("global_store_dwordx2 v1, v[2:3], s[62:63]")
    def srd(s, lo, hi, size, off=None):
        if off is None:
            A(f"s_mov_b32 s{s}, s{lo}"); A(f"s_mov_b32 s{s+1}, s{hi}")
        else:
            A(f"s_add_u32 s{s}, s{lo}, {off}"); A(f"s_addc_u32 s{s+1}, s{hi}, 0")
        A(f"s_mov_b32 s{s+2}, {size}"); A(f"s_mov_b32 s{s+3}, 0x20000")
    def spin_lds(flag, n, vz, vt, sleep=1):
        l = lab("sp"); d = lab("sd")
        A(f"{l}:")
        A(f"ds_read_b32 v{vt}, v{vz} offset:{flag}")
        A("s_waitcnt lgkmcnt(0)")
        A(f"v_readfirstlane_b32 s14, v{vt}")
        A(f"s_cmp_ge_u32 s14, {n}")
        A(f"s_cbranch_scc1 {d}")
        if sleep: A(f"s_sleep {sleep}")
        A("s_sub_u32 s15, s15, 1")
        A(f"s_cbranch_scc0 {l}")
        A("s_endpgm")
        A(f"{d}:")
    def tagcheck(regs, vT, c0, c1, lretry):
        A(f"v_xor_b32 v{c0}, v{regs[0]}, v{vT}")
        A(f"v_xor_b32 v{c1}, v{regs[1]}, v{vT}")
        for k, r in enumerate(regs[2:]):
            c = c0 if k % 2 == 0 else c1
            A(f"v_bitop3_b32 v{c}, v{c}, v{r}, v{vT} bitop3:0xf6")
        A(f"v_bitop3_b32 v{c0}, v{c0}, v{c1}, s58 bitop3:0x54")
        A(f"v_cmp_ne_u32 vcc, 0, v{c0}")
        A(f"s_cbranch_vccnz {lretry}")
    def bail(l):
        A("s_sub_u32 s15, s15, 1")
        A(f"s_cbranch_scc0 {l}")
        A("s_endpgm")
    def tag(r, vT, src=None):
        A(f"v_and_or_b32 v{r}, v{r if src is None else src}, s58, v{vT}")
    def mktag(vT):
        A("s_add_u32 s12, s13, 1"); A("s_and_b32 s12, s12, 0xff")
        A(f"v_mov_b32 v{vT}, s12")
    def rnd(r):
        A(f"v_cvt_pk_bf16_f32 v{r}, v{r}, v{r}"); A(f"v_and_b32 v{r}, 0xffff0000, v{r}")
    def allred16(op, r, steps):
        for st in steps: A(f"{op}_dpp v{r}, v{r}, v{r} {st} row_mask:0xf bank_mask:0xf")
    def allred_swap(op, r, t, which):
        A(f"v_mov_b32 v{t}, v{r}")
        A(f"v_permlane{which}_swap_b32 v{t}, v{r}")
        A(f"{op} v{r}, v{t}, v{r}")
    def ldsinc(flag, vz, vone):
        A("s_mov_b64 exec, 1")
        A(f"ds_add_u32 v{vz}, v{vone} offset:{flag}")
        A("s_mov_b64 exec, -1")
    def common(epoch=True):
        srd(40, 38, 39, WS_SIZE, 0x3fc00000 if "wsend" in opt else None)
        if epoch: A("s_load_dword s13, s[40:41], 0")
        A("s_mul_i32 s10, s5, 37"); A("s_lshr_b32 s10, s10, 8")
        A("s_mul_i32 s11, s10, 7"); A("s_sub_u32 s11, s5, s11")
        A("s_lshl_b32 s14, s4, 2"); A("s_add_u32 s10, s10, s14")
        A(f"s_mov_b32 s15, {SPIN}")
        A("s_mov_b32 s56, 0x05040100"); A("s_mov_b32 s57, 0x07060302"); A("s_mov_b32 s58, 0xffffff00")
        A(f"s_mov_b32 s59, {CEXP}")
    def kvoff():
        A("s_lshr_b32 s6, s5, 4")
        A("s_lshl_b32 s60, s6, 3"); A("s_add_u32 s60, s60, s4"); A("s_lshl_b32 s60, s60, 7")
        A("s_and_b32 s14, s5, 15"); A("s_add_u32 s60, s60, s14"); A("s_add_u32 s60, s60, 112"); A("s_lshl_b32 s60, s60, 17")
        A("s_lshl_b32 s9, s4, 2"); A("s_xor_b32 s9, s9, s5")
    def quad16(o, z0, z1, vT):
        tag(o, vT, z0); tag(o+1, vT, z1); tag(o+2, vT, z0); tag(o+3, vT, z1)
        A(f"v_permlane16_swap_b32 v{o}, v{o+2}"); A(f"v_permlane16_swap_b32 v{o+1}, v{o+3}")

    if "delay" in opt: A("s_memrealtime s[90:91]")
    stamp(0)
    A("s_load_dwordx16 s[16:31], s[0:1], 0")
    A("s_load_dwordx8 s[32:39], s[0:1], 64")
    A("v_lshrrev_b32 v1, 6, v0")
    A("s_cmp_ge_u32 s2, 256"); A("s_cbranch_scc1 L_end")
    A("v_readfirstlane_b32 s3, v1")
    A("v_and_b32 v0, 63, v0")
    A("s_and_b32 s4, s2, 7")
    A("s_lshr_b32 s5, s2, 3")
    A("s_and_b32 s8, s3, 3")
    A("s_cmp_ge_u32 s3, 2"); A("s_cbranch_scc1 L_KV")

    A("s_setprio 3")
    A("v_and_b32 v3, 7, v0"); A("v_lshlrev_b32 v3, 4, v3")
    A("s_cmp_eq_u32 s3, 1"); A("s_cbranch_scc1 L_A1pre")
    A("s_lshr_b32 s61, s5, 3")
    A("s_mul_i32 s14, s61, 112")
    A("v_lshrrev_b32 v2, 3, v0"); A("v_mul_u32_u24 v2, 14, v2"); A("v_add_u32 v2, s14, v2"); A("v_lshl_add_u32 v2, v2, 13, v3")
    A("s_and_b32 s62, s5, 7"); A("s_lshl_b32 s60, s4, 3"); A("s_add_u32 s60, s62, s60")
    A("s_movk_i32 s62, 8192")
    A("v_and_b32 v4, 1, v0"); A("v_lshrrev_b32 v5, 4, v0"); A("v_lshl_add_u32 v4, v5, 1, v4")
    A("s_branch L_S1")
    A("L_A1pre:")
    A("s_cmp_eq_u32 s4, 7"); A("s_cbranch_scc1 L_end")
    A("s_lshr_b32 s61, s5, 2")
    A("s_mul_i32 s14, s61, 56")
    A("s_movk_i32 s62, 3584")
    A("v_lshrrev_b32 v4, 4, v0")
    A("v_mul_u32_u24 v2, 14, v4"); A("v_add_u32 v2, s14, v2"); A("v_mad_u32_u24 v2, v2, s62, v3")
    A("s_and_b32 s60, s5, 3"); A("s_xor_b32 s60, s60, 2"); A("s_lshl2_add_u32 s60, s4, s60")
    A("L_S1:")
    A("s_lshl_b32 s63, s60, 7"); A("v_add_u32 v2, s63, v2"); A("v_mov_b32 v3, 0")
    A("s_mov_b32 s63, 0")
    A("v_mul_u32_u24 v4, 28, v4"); A("s_lshl_b32 s14, s14, 1"); A("v_add_u32 v4, s14, v4")
    A("v_bfe_u32 v5, v0, 1, 1"); A("v_mul_u32_u24 v5, 896, v5"); A("v_add_u32 v4, v4, v5")
    A("v_lshrrev_b32 v6, 2, v0"); A("v_and_b32 v7, 1, v0"); A("v_lshl_add_u32 v6, v6, 1, v7")
    A("v_lshl_add_u32 v5, v6, 5, v5")
    A("v_cmp_gt_u32 vcc, 56, v0"); A("v_mov_b32 v7, 0x10000"); A("v_cndmask_b32 v5, v7, v5, vcc")
    A("s_movk_i32 s46, 1792"); A("s_mov_b32 s47, 0x20000")
    A("s_cmp_eq_u32 s3, 1")
    A("s_waitcnt lgkmcnt(0)")
    A("s_mov_b64 s[44:45], s[16:17]")
    A("buffer_load_dwordx4 v[8:11], v5, s[44:47], 0 offen")
    A("buffer_load_dwordx4 v[12:15], v5, s[44:47], 0 offen offset:16")
    A("s_cselect_b64 s[52:53], s[28:29], s[22:23]")
    A("s_cselect_b64 s[54:55], s[30:31], s[22:23]")
    A("v_lshl_add_u64 v[6:7], v[2:3], 0, s[54:55]")
    A("v_lshl_add_u64 v[2:3], v[2:3], 0, s[52:53]")
    A("buffer_load_dwordx4 v[16:19], v4, s[44:47], 0 offen")
    A("buffer_load_dwordx3 v[20:22], v4, s[44:47], 0 offen offset:16")
    A("v_mov_b32_dpp v2, v6 quad_perm:[0,1,2,3] row_mask:0xf bank_mask:0xc")
    A("v_mov_b32_dpp v3, v7 quad_perm:[0,1,2,3] row_mask:0xf bank_mask:0xc")
    WD = 32
    for j in range(14):
        if "nos1" in opt and j > 0: continue
        A(f"global_load_dwordx4 v[{WD+4*j}:{WD+4*j+3}], v[2:3], off nt")
        if j < 13: A("v_lshl_add_u64 v[2:3], v[2:3], 0, s[62:63]")
    stamp(4)
    A("s_barrier")
    A("s_branch L_S2")

    A("L_KV:")
    A("s_cmp_lt_u32 s3, 4"); A("s_cbranch_scc1 L_A23")
    kvoff()
    A("s_cmp_lt_u32 s3, 8"); A("s_cbranch_scc1 L_K")
    A("s_barrier")
    A("s_branch L_V")
    A("L_A23:")
    A("s_getpc_b64 s[60:61]")
    A("L_pc:")
    A(f"s_sub_u32 s60, s60, L_pc-{NAME}_kernel"); A("s_subb_u32 s61, s61, 0")
    A("s_and_b32 s14, s3, 1"); A("s_lshl_b32 s14, s14, 13")
    A("v_lshlrev_b32 v1, 7, v0"); A("v_add_u32 v1, s14, v1")
    A(f"v_min_u32 v1, L_end-{NAME}_kernel, v1")
    A("global_load_dword v8, v1, s[60:61]")
    A("s_cmp_eq_u32 s3, 2"); A("s_cbranch_scc1 L_A2")
    A("v_lshlrev_b32 v1, 4, v0")
    for r in range(2, 6): A(f"v_mov_b32 v{r}, 0")
    A("ds_write_b128 v1, v[2:5]")
    A("v_mov_b32 v6, 0xff800000"); A("v_mov_b32 v7, v6")
    A(f"ds_write_b64 v2, v[6:7] offset:{L_MAX}")
    A("s_waitcnt lgkmcnt(0)")
    A("s_barrier")
    A("s_branch L_A3")
    A("L_A2:")
    A("s_barrier")
    A("s_mov_b64 exec, 0")
    A("s_branch @NEXT0@")

    A("L_K:")
    A("s_setprio 2")
    A("v_and_b32 v2, 3, v0"); A("v_lshlrev_b32 v1, 9, v2")
    A("v_lshrrev_b32 v2, 2, v0"); A("v_lshl_add_u32 v1, v2, 4, v1")
    A("s_lshl_b32 s14, s8, 15"); A("v_add_u32 v1, s14, v1")
    A("s_lshr_b32 s61, s9, 1"); A("s_lshl_b32 s14, s8, 2"); A("s_xor_b32 s61, s61, s14")
    A("s_lshl_b32 s62, s61, 11")
    A("s_mov_b32 s46, 0x20000"); A("s_mov_b32 s47, 0x20000")
    A("s_waitcnt lgkmcnt(0)")
    A("s_add_u32 s44, s18, s60"); A("s_addc_u32 s45, s19, 0")
    A("s_barrier")
    KD = 32
    QAT = getopt("qat", 12)
    PF = "sc1" if "pollnont" in opt else "sc1 nt"
    def qpoll(va=3):
        A(f"buffer_load_dwordx4 v[16:19], v{va}, s[40:43], s52 offen {PF}")
        A(f"buffer_load_dwordx4 v[20:23], v{va}, s[40:43], s53 offen {PF}")
    for t in range(17):
        if t == 6:
            common()
            A("v_and_b32 v3, 31, v0"); A("v_lshlrev_b32 v3, 4, v3"); A("v_lshrrev_b32 v2, 5, v0"); A("v_lshl_add_u32 v3, v2, 11, v3")
            A("s_lshl_b32 s52, s4, 14"); A("s_lshl_b32 s14, s6, 13"); A("s_add_u32 s52, s52, s14")
            A("s_lshl_b32 s14, s8, 9"); A("s_add_u32 s52, s52, s14"); A(f"s_add_u32 s52, s52, {QP}")
            A("s_add_u32 s53, s52, 4096")
            A("v_mov_b32 v5, 0"); A("v_mov_b32 v167, 1")
        if t == 10: ldsinc(F_KI, 5, 167)
        if t == QAT and "noq" not in opt:
            qpoll()
        if t == 16: break
        if t == 0: s = "s62"
        else:
            A(f"s_xor_b32 s14, s62, {t*2048}"); s = "s14"
        r = KD + 8*t
        A(f"buffer_load_dwordx4 v[{r}:{r+3}], v1, s[44:47], {s} offen nt")
        A(f"buffer_load_dwordx4 v[{r+4}:{r+7}], v1, s[44:47], {s} offen offset:256 nt")
    stamp(1)
    A("v_and_b32 v2, 1, v0"); A("v_lshlrev_b32 v2, 9, v2")
    A("v_lshrrev_b32 v6, 2, v0"); A("v_lshl_add_u32 v2, v6, 4, v2")
    A("s_lshl_b32 s14, s61, 2"); A("s_lshl_b32 s62, s8, 6"); A("s_or_b32 s14, s14, s62")
    A("s_lshr_b32 s62, s9, 3"); A("s_lshl_b32 s62, s62, 6"); A("s_xor_b32 s14, s14, s62")
    A("s_and_b32 s62, s9, 7"); A("s_xor_b32 s14, s14, s62")
    A("v_xor_b32 v4, s14, v0"); A("v_lshlrev_b32 v4, 1, v4")
    A("v_and_b32 v1, 7, v0"); A("v_lshlrev_b32 v1, 4, v1"); A("v_and_b32 v9, 8, v0"); A("v_or_b32 v1, v1, v9")
    A("v_bfe_u32 v9, v0, 4, 1"); A("v_lshl_add_u32 v1, v9, 7, v1")
    A("v_lshrrev_b32 v9, 5, v0"); A("v_lshl_add_u32 v1, v9, 2, v1")
    A("s_lshl_b32 s14, s8, 8"); A("v_add_u32 v1, s14, v1")
    A("s_waitcnt lgkmcnt(0)")
    mktag(7)
    pad()
    A(f"s_waitcnt vmcnt({2*(16-QAT)})")
    lq = lab("cq"); lrq = lab("rq")
    A(f"{lq}:")
    if "noq" not in opt: tagcheck(list(range(16, 24)), 7, 8, 9, lrq)
    stamp(7)
    for k in range(4): A(f"v_add_f32 v{16+k}, v{16+k}, v{20+k}")
    A("v_permlane32_swap_b32 v16, v18"); A("v_permlane32_swap_b32 v17, v19")
    A("v_add_f32 v16, v16, v18"); A("v_add_f32 v17, v17, v19")
    A("v_cvt_pk_bf16_f32 v16, v16, v17")
    A(f"ds_write_b32 v1, v16 offset:{L_Q}")
    ldsinc(F_Q, 5, 167)
    spin_lds(F_Q, 4, 5, 6)
    A(f"ds_read_b128 v[8:11], v2 offset:{L_Q}")
    A(f"ds_read_b128 v[12:15], v2 offset:{L_Q+256}")
    A("s_waitcnt lgkmcnt(0)")
    def acc(t):
        B = t // 4
        return (16 if B == 0 else KD + 32*(B-1)) + 4*(t % 4)
    for B in range(4):
        if 4*B+4 > QAT: A(f"s_waitcnt vmcnt({32-8*(B+1)})")
        for step in range(4):
            for tt in range(4):
                t = 4*B + tt
                a = acc(t); kd = KD + 8*t + 2*step; q = 8 + 2*step
                c = "0" if step == 0 else f"v[{a}:{a+3}]"
                A(f"v_mfma_f32_4x4x4_16b_bf16 v[{a}:{a+3}], v[{q}:{q+1}], v[{kd}:{kd+1}], {c}")
    pad()
    val = {(t, h): acc(t) + h for t in range(16) for h in range(2)}
    for t in range(8):
        for h in range(2): A(f"v_permlane32_swap_b32 v{val[t,h]}, v{val[t+8,h]}")
    for t in range(8):
        for h in range(2): A(f"v_add_f32 v{val[t,h]}, v{val[t,h]}, v{val[t+8,h]}")
    for t in range(4):
        for h in range(2): A(f"v_permlane16_swap_b32 v{val[t,h]}, v{val[t+4,h]}")
    for t in range(4):
        for h in range(2): A(f"v_add_f32 v{val[t,h]}, v{val[t,h]}, v{val[t+4,h]}")
    for t in range(2):
        for h in range(2):
            o = 160 + 2*t + h
            A(f"v_add_f32_dpp v{o}, v{val[t,h]}, v{val[t,h]} row_ror:8 row_mask:0xf bank_mask:0x3")
    for t in range(2):
        for h in range(2):
            o = 160 + 2*t + h
            A(f"v_add_f32_dpp v{o}, v{val[t+2,h]}, v{val[t+2,h]} row_ror:8 row_mask:0xf bank_mask:0xc")
    for h in range(2): A(f"v_add_f32_dpp v{164+h}, v{160+h}, v{160+h} row_shl:4 row_mask:0xf bank_mask:0x5")
    for h in range(2): A(f"v_add_f32_dpp v{164+h}, v{162+h}, v{162+h} row_shr:4 row_mask:0xf bank_mask:0xa")
    A("v_cvt_pk_bf16_f32 v166, v164, v165")
    A("v_lshlrev_b32 v164, 16, v166"); A("v_and_b32 v165, 0xffff0000, v166")
    stamp(2)
    A("v_mov_b32 v16, v164"); A("v_mov_b32 v17, v165")
    A("v_permlane32_swap_b32 v16, v17"); A("v_max_f32 v16, v16, v17")
    allred_swap("v_max_f32", 16, 17, 16)
    allred16("v_max_f32", 16, ["row_ror:8", "row_ror:4", "row_ror:2", "row_ror:1"])
    A("v_lshrrev_b32 v18, 5, v0"); A("v_lshlrev_b32 v18, 2, v18")
    A("s_mov_b32 exec_lo, 1"); A("s_mov_b32 exec_hi, 1")
    A(f"ds_max_f32 v18, v16 offset:{L_MAX}")
    A("s_mov_b32 exec_hi, 0")
    A(f"ds_add_u32 v5, v167 offset:{F_M}")
    A("s_mov_b64 exec, -1")
    spin_lds(F_M, 4, 5, 6)
    A(f"ds_read_b64 v[20:21], v5 offset:{L_MAX}")
    A("s_waitcnt lgkmcnt(0)")
    A("v_sub_f32 v22, v164, v20"); A("v_sub_f32 v23, v165, v21")
    A("v_mul_f32 v22, s59, v22"); A("v_mul_f32 v23, s59, v23")
    A("v_exp_f32 v22, v22"); A("v_exp_f32 v23, v23")
    A("v_cvt_pk_bf16_f32 v24, v22, v23")
    A(f"ds_write_b16 v4, v24 offset:{L_P}")
    A(f"ds_write_b16_d16_hi v4, v24 offset:{L_P+512}")
    ldsinc(F_P, 5, 167)
    stamp(3)
    A("s_cmp_ge_u32 s5, 28"); A("s_cbranch_scc1 L_FIN")
    pad()
    srd(44, 24, 25, 4096*896); srd(48, 32, 33, 1792*896)
    A("v_lshrrev_b32 v2, 3, v0"); A("v_and_b32 v3, 7, v0"); A("v_lshlrev_b32 v3, 4, v3")
    A("v_mul_u32_u24 v13, 7168, v2"); A("v_add_u32 v13, v13, v3")
    A("s_lshl_b32 s62, s11, 7")
    A("s_lshl_b32 s52, s10, 1"); A("s_lshr_b32 s14, s8, 1"); A("s_add_u32 s52, s52, s14"); A("s_lshl_b32 s52, s52, 4")
    A("s_and_b32 s14, s8, 1"); A("s_add_u32 s52, s52, s14"); A("s_mul_i32 s52, s52, 3584"); A("s_add_u32 s52, s52, s62")
    A("s_lshl_b32 s53, s10, 5"); A("s_add_u32 s53, s53, s8"); A("s_mul_i32 s53, s53, 1792"); A("s_add_u32 s53, s53, s62")
    for r in range(48, 56): A(f"v_mov_b32 v{r}, 0")
    BO = 64; PO = 96; AV = 112
    for d in range(8): A(f"v_mov_b32 v{BO+4*d+3}, 0")
    for r in range(AV, AV+16): A(f"v_mov_b32 v{r}, 0")
    A("v_and_b32 v2, 1, v0"); A("v_lshrrev_b32 v3, 4, v0"); A("v_lshl_add_u32 v2, v3, 1, v2")
    A("v_bfe_u32 v3, v0, 1, 1")
    A("v_bfe_u32 v6, v0, 2, 2")
    A("v_lshlrev_b32 v1, 4, v2"); A("v_lshl_add_u32 v1, v3, 13, v1"); A("v_lshl_add_u32 v1, v6, 9, v1")
    A("v_lshlrev_b32 v12, 4, v6"); A("v_lshl_add_u32 v12, v3, 6, v12")
    A("s_lshl_b32 s61, s10, 14"); A("s_lshl_b32 s14, s8, 7"); A("s_add_u32 s61, s61, s14"); A(f"s_add_u32 s61, s61, {OP}")
    A("s_add_u32 s63, s61, 4096")
    A("v_lshlrev_b32 v4, 3, v2"); A("v_lshl_add_u32 v4, v3, 6, v4")
    A("s_lshl2_add_u32 s55, s10, s8"); A("s_lshl_b32 s55, s55, 7"); A(f"s_add_u32 s55, s55, {HB}")
    A("v_mov_b32 v28, v7"); A("v_mov_b32 v29, v7")
    spin_lds(F_MODE, 1, 5, 6, sleep=2)
    A(f"ds_read_b32 v6, v5 offset:{L_MODE}")
    A("s_waitcnt lgkmcnt(0)")
    A("v_add_u32 v1, v1, v6"); A("v_add_u32 v4, v4, v6")
    A("v_and_b32 v2, 15, v0"); A("v_lshlrev_b32 v2, 5, v2"); A("v_lshrrev_b32 v3, 4, v0"); A("v_lshl_add_u32 v2, v3, 3, v2")
    A("s_lshl_b32 s14, s8, 9"); A("v_add_u32 v2, s14, v2")
    A("s_lshl_b32 s54, s11, 5"); A("s_add_u32 s54, s54, s10"); A("s_lshl_b32 s54, s54, 9"); A(f"s_add_u32 s54, s54, {YP}")
    A(f"s_add_u32 s60, s54, {FAR}")
    A("v_lshlrev_b32 v15, 4, v0")
    spin_lds(F_VI, 4, 5, 6, sleep=2)
    lh = lab("ph"); lrh = lab("rh")
    def pollh():
        A(f"buffer_load_dwordx2 v[28:29], v4, s[40:43], s55 offen {PF}")
    A("s_cmp_eq_u32 s4, 7"); A("s_cbranch_scc1 L_noh")
    pollh()
    if "nowo" in opt: A("s_mov_b64 exec, 1")
    for j in range(2): A(f"buffer_load_dwordx4 v[{48+4*j}:{51+4*j}], v13, s[48:51], s53 offen offset:{896*j} nt")
    A("L_noh:")
    if "nowo" in opt: A("s_mov_b64 exec, 1")
    for j in range(4): A(f"buffer_load_dwordx4 v[{32+4*j}:{35+4*j}], v13, s[44:47], s52 offen offset:{896*j} nt")
    if "nowo" in opt: A("s_mov_b64 exec, -1")
    stamp(8)
    pad()
    lp = lab("pa"); lr = lab("ra")
    def polla():
        for u in range(4):
            A(f"buffer_load_dwordx4 v[{PO+4*u}:{PO+4*u+3}], v1, s[40:43], s{61 if u < 2 else 63} offen offset:{2048*(u%2)} {PF}")
    if "waitV" in opt: spin_lds(F_V, 4, 5, 6)
    polla()
    A("s_setprio 3")
    spin_lds(F_X, 1, 5, 6)
    A(f"ds_read_b128 v[24:27], v12 offset:{L_W}")
    A("s_waitcnt vmcnt(10)")
    A(f"{lh}:")
    tagcheck([28, 29], 7, 8, 9, lrh)
    A("v_perm_b32 v28, v29, v28, s57")
    for rg in range(4): A(f"v_mov_b32_dpp v{AV+4*rg+2}, v28 quad_perm:[0,1,2,3] row_mask:0xf bank_mask:{1<<rg}")
    A("s_waitcnt vmcnt(4)")
    stamp(9)
    for c in range(4):
        for e in range(2):
            d = 2*c + e
            for q, (lo, hi) in enumerate([(32, 36), (40, 44), (48, 52)]):
                A(f"v_perm_b32 v{BO+4*d+q}, v{hi+c}, v{lo+c}, s{56+e}")
    pad()
    A(f"{lp}:")
    A("s_waitcnt vmcnt(0) lgkmcnt(0)")
    tagcheck(list(range(PO, PO+16)), 7, 8, 9, lr)
    stamp(4)
    for k in range(4): A(f"v_mul_f32 v{PO+k}, v24, v{PO+k}")
    for u in range(1, 4):
        for k in range(4): A(f"v_fmac_f32 v{PO+k}, v{24+u}, v{PO+4*u+k}")
    for st in ("row_ror:4", "row_ror:8"):
        for k in range(4): A(f"v_add_f32_dpp v{PO+k}, v{PO+k}, v{PO+k} {st} row_mask:0xf bank_mask:0xf")
    A(f"v_cvt_pk_bf16_f32 v8, v{PO}, v{PO+1}"); A(f"v_cvt_pk_bf16_f32 v9, v{PO+2}, v{PO+3}")
    for rg in range(4):
        for k in range(2): A(f"v_mov_b32_dpp v{AV+4*rg+k}, v{8+k} quad_perm:[0,1,2,3] row_mask:0xf bank_mask:{1<<rg}")
    for rg in range(4):
        for e in range(2):
            d = 2*rg + e; a = 16 + 4*e
            c = "0" if rg == 0 else f"v[{a}:{a+3}]"
            A(f"v_mfma_f32_16x16x32_bf16 v[{a}:{a+3}], v[{AV+4*rg}:{AV+4*rg+3}], v[{BO+4*d}:{BO+4*d+3}], {c}")
    for e in range(2):
        A(f"v_add_f32_dpp v{10+e}, v{16+4*e+1}, v{16+4*e} row_ror:8 row_mask:0xf bank_mask:0x3")
    for e in range(2):
        A(f"v_add_f32_dpp v{10+e}, v{16+4*e+2}, v{16+4*e+3} row_ror:8 row_mask:0xf bank_mask:0xc")
    A(f"ds_write_b64 v2, v[10:11] offset:{L_Y}")
    A("s_waitcnt lgkmcnt(0)")
    A("s_barrier")
    A("s_cmp_lg_u32 s8, 0"); A("s_cbranch_scc1 L_Kx")
    A("s_mov_b32 exec_hi, 0")
    for k in range(4): A(f"ds_read_b128 v[{PO+4*k}:{PO+4*k+3}], v15 offset:{L_Y+512*k}")
    A("s_waitcnt lgkmcnt(2)")
    for k in range(4): A(f"v_add_f32 v{PO+k}, v{PO+k}, v{PO+4+k}")
    A("s_waitcnt lgkmcnt(0)")
    for k in range(4): A(f"v_add_f32 v{PO+8+k}, v{PO+8+k}, v{PO+12+k}")
    for k in range(4): A(f"v_add_f32 v{PO+k}, v{PO+k}, v{PO+8+k}")
    for k in range(4): tag(PO+k, 7)
    A(f"buffer_store_dwordx4 v[{PO}:{PO+3}], v15, s[40:43], s60 offen sc1")
    if "ynear" in opt: A(f"buffer_store_dwordx4 v[{PO}:{PO+3}], v15, s[40:43], s54 offen")
    stamp(5)
    A("L_Kx:")
    flush([(1, 3), (2, 4), (3, 5), (4, 9), (5, 10), (7, 2), (8, 23), (9, 24)], persub=[(1, 44), (2, 48), (4, 52)])
    A("s_endpgm")
    A(f"{lr}:")
    if getopt("aslp", 0): A(f"s_sleep {getopt('aslp', 0)}")
    A("s_mov_b64 exec, vcc")
    polla()
    A("s_mov_b64 exec, -1")
    bail(lp)
    A(f"{lrh}:")
    pollh()
    A("s_waitcnt vmcnt(0)")
    bail(lh)
    A(f"{lrq}:")
    A(f"ds_read_b32 v6, v5 offset:{L_MODE}")
    A("s_waitcnt lgkmcnt(0)")
    A("v_add_u32 v6, v6, v3")
    qpoll(6)
    A("s_waitcnt vmcnt(0)")
    bail(lq)

    A("L_FIN:")
    pad()
    A("s_lshl_b32 s60, s4, 2"); A("s_add_u32 s60, s60, s5"); A("s_sub_u32 s60, s60, 28")
    A("s_cmp_lg_u32 s8, 0"); A("s_cbranch_scc1 L_end")
    A("s_cmp_ge_u32 s60, 28"); A("s_cbranch_scc1 L_end")
    srd(44, 16, 17, 1792); srd(48, 34, 35, 1792)
    A("v_and_b32 v2, 7, v0"); A("v_lshlrev_b32 v2, 2, v2"); A("v_bfe_u32 v3, v0, 4, 1"); A("v_lshl_add_u32 v2, v3, 1, v2")
    A("v_lshrrev_b32 v3, 5, v0"); A("v_add_u32 v2, v2, v3")
    A("s_lshr_b32 s14, s60, 2"); A("s_lshl_b32 s14, s14, 6")
    A("s_and_b32 s62, s60, 1"); A("s_lshl_b32 s62, s62, 5"); A("s_add_u32 s14, s14, s62")
    A("s_bfe_u32 s62, s60, 0x10001"); A("s_mul_i32 s62, s62, 448"); A("s_add_u32 s14, s14, s62")
    A("v_add_u32 v2, s14, v2"); A("v_lshlrev_b32 v2, 1, v2")
    A("buffer_load_ushort v3, v2, s[44:47], 0 offen")
    A("v_lshrrev_b32 v8, 3, v0"); A("v_lshlrev_b32 v4, 11, v8"); A("v_and_b32 v6, 7, v0"); A("v_lshl_add_u32 v4, v6, 4, v4")
    A("s_lshr_b32 s61, s60, 2"); A("s_lshl_b32 s61, s61, 14"); A("s_and_b32 s14, s60, 3"); A("s_lshl_b32 s14, s14, 7")
    A("s_add_u32 s61, s61, s14"); A(f"s_add_u32 s52, s61, {YP}")
    A(f"v_add_u32 v9, {FAR}, v4")
    if "ynear" in opt:
        spin_lds(F_MODE, 1, 5, 6, sleep=2)
        A(f"ds_read_b32 v6, v5 offset:{L_MODE}")
        A("v_cmp_eq_u32 vcc, s4, v8")
        A("s_waitcnt lgkmcnt(0)")
        A("v_add_u32 v4, v4, v6")
        A("v_cndmask_b32 v9, v9, v4, vcc")
    A("s_waitcnt vmcnt(0)")
    A("v_lshlrev_b32 v3, 16, v3")
    spin_lds(F_V, 4, 5, 6)
    lp2 = lab("py"); lr2 = lab("ry")
    def polly():
        for j in range(4): A(f"buffer_load_dwordx4 v[{16+4*j}:{19+4*j}], v9, s[40:43], s52 offen offset:{512*j} sc1{' nt' if 'ynt' in opt else ''}")
    polly()
    A(f"{lp2}:")
    A("s_waitcnt vmcnt(0)")
    tagcheck(list(range(16, 32)), 7, 12, 13, lr2)
    stamp(4)
    for k in range(4): A(f"v_add_f32 v{16+k}, v{16+k}, v{20+k}")
    for k in range(4): A(f"v_add_f32 v{24+k}, v{24+k}, v{28+k}")
    for k in range(4): A(f"v_add_f32 v{16+k}, v{16+k}, v{24+k}")
    A("v_permlane32_swap_b32 v16, v17"); A("v_permlane32_swap_b32 v18, v19")
    A("v_add_f32 v16, v16, v17"); A("v_add_f32 v18, v18, v19")
    A("v_permlane16_swap_b32 v16, v18"); A("v_add_f32 v16, v16, v18")
    A("v_add_f32_dpp v16, v16, v16 row_ror:8 row_mask:0xf bank_mask:0xf")
    A("v_add_f32 v16, v16, v3")
    A("v_cvt_pk_bf16_f32 v16, v16, v16")
    if "delay" in opt:
        A("L_dly:"); A("s_memrealtime s[92:93]"); A("s_waitcnt lgkmcnt(0)"); A("s_sub_u32 s92, s92, s90"); A("s_cmp_lt_u32 s92, 4000"); A("s_cbranch_scc1 L_dly")
    A("s_mov_b32 exec_lo, 0x00ff00ff"); A("s_mov_b32 exec_hi, 0x00ff00ff")
    A("buffer_store_short v16, v2, s[48:51], 0 offen")
    A("s_cmp_lg_u32 s60, 0"); A("s_cbranch_scc1 L_noep")
    A("s_mov_b64 exec, 1")
    A("s_add_u32 s14, s13, 1"); A("v_mov_b32 v6, s14")
    A("buffer_store_dword v6, v5, s[40:43], 0 offen")
    A("L_noep:")
    stamp(5)
    flush([(1, 3), (2, 4), (3, 5), (4, 11), (5, 12), (7, 2)])
    A("s_endpgm")
    A(f"{lr2}:")
    if getopt("yslp", 0): A(f"s_sleep {getopt('yslp', 0)}")
    A("s_mov_b64 exec, vcc")
    polly()
    A("s_mov_b64 exec, -1")
    bail(lp2)

    A("L_V:")
    A("s_setprio 1")
    A("v_lshrrev_b32 v2, 3, v0"); A("v_lshlrev_b32 v1, 12, v2")
    A("v_and_b32 v2, 7, v0"); A("v_lshl_add_u32 v1, v2, 4, v1")
    A("s_lshl_b32 s14, s8, 7"); A("v_add_u32 v1, s14, v1")
    A("s_and_b32 s62, s9, 7"); A("s_lshl_b32 s62, s62, 9"); A("s_lshr_b32 s14, s9, 3"); A("s_lshl_b32 s14, s14, 15"); A("s_or_b32 s62, s62, s14")
    A("s_waitcnt lgkmcnt(0)")
    srd(44, 20, 21, 131072, "s60")
    common()
    A("v_and_b32 v6, 1, v0"); A("v_lshrrev_b32 v7, 4, v0"); A("v_lshl_add_u32 v6, v7, 1, v6"); A("v_lshlrev_b32 v6, 4, v6")
    A("v_bfe_u32 v7, v0, 1, 1"); A("v_lshl_add_u32 v6, v7, 9, v6"); A(f"v_add_u32 v6, {L_P}, v6")
    for rg in range(4): A(f"v_mov_b32 v{2+rg}, {L_ZERO}")
    for rg in range(4): A(f"v_mov_b32_dpp v{2+rg}, v6 quad_perm:[0,1,2,3] row_mask:0xf bank_mask:{1<<rg}")
    A("v_mov_b32 v6, 0"); A("v_mov_b32 v16, 1")
    def oaddr(va, vt):
        A(f"v_bfe_u32 v{vt}, v0, 3, 1")
        A(f"v_and_b32 v{va}, 7, v0"); A(f"v_lshlrev_b32 v{va}, 4, v{va}"); A(f"v_lshl_add_u32 v{va}, v{vt}, 15, v{va}")
        A(f"v_lshrrev_b32 v{vt}, 5, v0"); A(f"v_lshl_add_u32 v{va}, v{vt}, 7, v{va}")
    A("s_lshl_b32 s61, s4, 16"); A("s_lshr_b32 s14, s8, 1"); A("s_lshl_b32 s14, s14, 14"); A("s_add_u32 s61, s61, s14")
    A("s_lshl_b32 s14, s5, 9"); A("s_add_u32 s61, s61, s14")
    A("s_and_b32 s14, s8, 1"); A("s_lshl_b32 s14, s14, 8"); A("s_add_u32 s61, s61, s14"); A(f"s_add_u32 s61, s61, {OP}")
    A(f"s_add_u32 s63, s61, {FAR}")
    A("s_mov_b32 s52, 0xffff"); A("s_mov_b32 s53, 0xffff")
    if "prewarm" in opt:
        oaddr(17, 18)
        A("s_waitcnt lgkmcnt(0)")
        for r in range(20, 24): A(f"v_mov_b32 v{r}, s13")
        A("s_mov_b64 exec, s[52:53]")
        A("buffer_store_dwordx4 v[20:23], v17, s[40:43], s61 offen")
        A("s_mov_b64 exec, -1")
    VD = 40
    for t in range(32):
        A(f"s_xor_b32 s14, s62, {(t>>3)*32768 + (t&7)*512}")
        r = VD + 4*t
        A(f"buffer_load_dwordx4 v[{r}:{r+3}], v1, s[44:47], s14 offen nt")
    ldsinc(F_VI, 6, 16)
    stamp(1)
    pad()
    spin_lds(F_P, 4, 6, 7)
    A("s_setprio 3")
    def rdA(g4, base):
        for rg in range(4): A(f"ds_read_b128 v[{base+4*rg}:{base+4*rg+3}], v{2+rg} offset:{128*g4}")
    Abase = {0: 24, 1: VD, 2: VD+16, 3: 24}
    rdA(0, 24)
    for g4 in range(3):
        ab = Abase[g4]; D = VD + 32*g4
        if g4 == 2: pad()
        A(f"s_waitcnt vmcnt({24-8*g4}) lgkmcnt(0)")
        for c in range(4):
            for e in range(2):
                for q in range(4):
                    A(f"v_perm_b32 v{16+4*e+q}, v{D+8*q+4+c}, v{D+8*q+c}, s{56+e}")
            for e in range(2):
                a = 8 + 4*e
                cc = "0" if (g4 == 0 and c == 0) else f"v[{a}:{a+3}]"
                A(f"v_mfma_f32_16x16x32_bf16 v[{a}:{a+3}], v[{ab+4*c}:{ab+4*c+3}], v[{16+4*e}:{19+4*e}], {cc}")
        if g4 == 0:
            rdA(1, VD); rdA(2, VD+16); rdA(3, 24)
    mktag(3)
    spin_lds(F_MODE, 1, 6, 7)
    A(f"ds_read_b32 v7, v6 offset:{L_MODE}")
    A("v_mov_b32 v2, 1")
    oaddr(1, 4)
    A("s_waitcnt lgkmcnt(0)")
    A("v_readfirstlane_b32 s54, v7")
    TT = VD + 32
    D = VD + 96
    pad()
    for q in range(4):
        A(f"s_waitcnt vmcnt({6-2*q})")
        if q == 3: stamp(2)
        for c in range(4):
            for e in range(2):
                A(f"v_perm_b32 v{TT+4*(2*c+e)+q}, v{D+8*q+4+c}, v{D+8*q+c}, s{56+e}")
    for c in range(4):
        for e in range(2):
            a = 8 + 4*e; d = 2*c + e
            A(f"v_mfma_f32_16x16x32_bf16 v[{a}:{a+3}], v[{24+4*c}:{27+4*c}], v[{TT+4*d}:{TT+4*d+3}], v[{a}:{a+3}]")
    for e in range(2): A(f"v_add_f32_dpp v{4+e}, v{8+4*e+1}, v{8+4*e} row_ror:8 row_mask:0xf bank_mask:0x3")
    for e in range(2): A(f"v_add_f32_dpp v{4+e}, v{8+4*e+2}, v{8+4*e+3} row_ror:8 row_mask:0xf bank_mask:0xc")
    quad16(16, 4, 5, 3)
    A("s_mov_b64 exec, s[52:53]")
    A("buffer_store_dwordx4 v[16:19], v1, s[40:43], s61 offen")
    A("s_cmp_eq_u32 s54, 0"); A("s_cbranch_scc1 L_onear")
    A("buffer_store_dwordx4 v[16:19], v1, s[40:43], s63 offen sc1")
    A("L_onear:")
    A("s_mov_b64 exec, 1")
    A(f"ds_add_u32 v6, v2 offset:{F_V}")
    stamp(3)
    flush([(1, 6), (2, 7), (3, 8)], persub=[(1, 36), (2, 40)])
    A("s_endpgm")

    A("L_S2:")
    common()
    A("s_waitcnt vmcnt(16)")
    X = 96
    for k in range(8):
        A(f"v_lshlrev_b32 v{X+2*k}, 16, v{8+k}"); A(f"v_and_b32 v{X+2*k+1}, 0xffff0000, v{8+k}")
    for k in range(8): A(f"v_add_f32 v{8+k}, v{X+2*k}, v{X+2*k+1}")
    for k in range(4): A(f"v_add_f32 v{8+k}, v{8+k}, v{12+k}")
    A("v_add_f32 v8, v8, v10"); A("v_add_f32 v9, v9, v11"); A("v_add_f32 v8, v8, v9")
    def red_b(r, t):
        allred16("v_add_f32", r, ["quad_perm:[1,0,3,2]", "row_ror:4", "row_ror:8"])
        allred_swap("v_add_f32", r, t, 16); allred_swap("v_add_f32", r, t, 32)
    red_b(8, 9)
    A("v_mul_f32 v8, 0x3b124925, v8")
    for k in range(16): A(f"v_sub_f32 v{X+k}, v{X+k}, v8")
    A(f"v_mul_f32 v10, v{X}, v{X}"); A(f"v_mul_f32 v11, v{X+1}, v{X+1}")
    for k in range(2, 16): A(f"v_fmac_f32 v{10+k%2}, v{X+k}, v{X+k}")
    A("v_add_f32 v10, v10, v11")
    A("v_cndmask_b32 v10, 0, v10, vcc")
    red_b(10, 9)
    A("v_mul_f32 v10, 0x3b124925, v10")
    rnd(8); rnd(10)
    A("v_add_f32 v10, 0x3727c5ac, v10"); rnd(10)
    A("v_sqrt_f32 v10, v10"); rnd(10)
    A("v_rcp_f32 v11, v10")
    A("v_fma_f32 v12, -v10, v11, 1.0"); A("v_fma_f32 v11, v12, v11, v11")
    pad(0)
    A("s_waitcnt vmcnt(14)")
    for k in range(7):
        A(f"v_lshlrev_b32 v{X+2*k}, 16, v{16+k}"); A(f"v_and_b32 v{X+2*k+1}, 0xffff0000, v{16+k}")
    for k in range(14): A(f"v_sub_f32 v{X+k}, v{X+k}, v8")
    for k in range(7): A(f"v_cvt_pk_bf16_f32 v{16+k}, v{X+2*k}, v{X+2*k+1}")
    for k in range(7):
        A(f"v_lshlrev_b32 v{X+2*k}, 16, v{16+k}"); A(f"v_and_b32 v{X+2*k+1}, 0xffff0000, v{16+k}")
    for k in range(14): A(f"v_mul_f32 v{X+k}, v{X+k}, v11")
    for k in range(7): A(f"v_cvt_pk_bf16_f32 v{16+k}, v{X+2*k}, v{X+2*k+1}")
    A("v_mov_b32 v23, 0")
    TB = 88
    A("v_mov_b32 v95, 0"); A("v_mov_b32 v31, 0")
    AC = 112
    A("s_waitcnt vmcnt(0) lgkmcnt(0)")
    stamp(8)
    mktag(1)
    for d in range(8):
        c = d >> 1; e = d & 1; T = TB if e == 0 else 24
        for q in range(7): A(f"v_perm_b32 v{T+q}, v{WD+8*q+4+c}, v{WD+8*q+c}, s{56+e}")
        a = AC + 4*d
        A(f"v_mfma_f32_16x16x32_bf16 v[{a}:{a+3}], v[16:19], v[{T}:{T+3}], 0")
        A(f"v_mfma_f32_16x16x32_bf16 v[{a}:{a+3}], v[20:23], v[{T+4}:{T+7}], v[{a}:{a+3}]")
    pad(1)
    A("s_cmp_eq_u32 s3, 1"); A("s_cbranch_scc1 L_A1post")
    A("v_and_b32 v5, 7, v0"); A("v_lshlrev_b32 v5, 4, v5"); A("v_lshrrev_b32 v6, 5, v0"); A("v_lshl_add_u32 v5, v6, 7, v5")
    A("v_bfe_u32 v6, v0, 3, 1"); A("v_lshl_add_u32 v5, v6, 13, v5")
    for rg in range(4):
        for half in range(2):
            for e in range(2):
                a = AC + 4*(2*rg+e)
                if half == 0: A(f"v_add_f32_dpp v{8+e}, v{a+1}, v{a} row_ror:8 row_mask:{1<<rg} bank_mask:0x3")
                else: A(f"v_add_f32_dpp v{8+e}, v{a+2}, v{a+3} row_ror:8 row_mask:{1<<rg} bank_mask:0xc")
    quad16(12, 8, 9, 1)
    A("s_lshl_b32 s14, s4, 14"); A("s_lshl_b32 s62, s61, 11"); A("s_add_u32 s14, s14, s62")
    A("s_and_b32 s62, s5, 7"); A("s_lshl_b32 s62, s62, 8"); A("s_add_u32 s14, s14, s62"); A(f"s_add_u32 s62, s14, {QP}")
    A("s_mov_b32 exec_lo, 0xffff"); A("s_mov_b32 exec_hi, 0xffff")
    A("buffer_store_dwordx4 v[12:15], v5, s[40:43], s62 offen")
    stamp(1)
    def farstore(regs, va, lskip):
        A("v_mov_b32 v6, 0")
        spin_lds(F_MODE, 1, 6, 7, sleep=8)
        A(f"ds_read_b32 v7, v6 offset:{L_MODE}")
        A("s_waitcnt lgkmcnt(0)")
        A("v_readfirstlane_b32 s54, v7")
        A("s_cmp_eq_u32 s54, 0"); A(f"s_cbranch_scc1 {lskip}")
        A("s_add_u32 s62, s62, s54")
        A(f"buffer_store_dwordx4 {regs}, v{va}, s[40:43], s62 offen sc1")
        A(f"{lskip}:")
    farstore("v[12:15]", 5, "L_qnear")
    flush([(0, 0), (1, 1), (8, 20), (4, 28)])
    A("s_endpgm")
    A("L_A1post:")
    A("v_lshlrev_b32 v5, 4, v0")
    A("s_lshl3_add_u32 s62, s60, s61"); A("s_lshl_b32 s62, s62, 10"); A(f"s_add_u32 s62, s62, {FPB}")
    A("s_nop 4")
    for rg in range(4):
        for b in range(2):
            for e in range(2):
                a = AC + 4*(2*rg+e) + 2*b
                A(f"v_mov_b32_dpp v{8+2*b+e}, v{a} quad_perm:[0,1,2,3] row_mask:{1<<rg} bank_mask:0xf")
    for k in range(4): tag(8+k, 1)
    A("buffer_store_dwordx4 v[8:11], v5, s[40:43], s62 offen")
    farstore("v[8:11]", 5, "L_fnear")
    A("s_cmp_ge_u32 s5, 16"); A("s_cbranch_scc1 L_end")
    A("v_and_b32 v5, 15, v0"); A("v_lshlrev_b32 v5, 4, v5"); A("v_lshrrev_b32 v3, 4, v0"); A("v_lshl_add_u32 v5, v3, 10, v5")
    A("s_lshr_b32 s14, s5, 2"); A("s_lshl2_add_u32 s60, s4, s14"); A("s_lshl_b32 s60, s60, 13")
    A("s_and_b32 s14, s5, 3"); A("s_lshl_b32 s14, s14, 8"); A("s_add_u32 s60, s60, s14"); A(f"s_add_u32 s60, s60, {FPB}")
    A("s_add_u32 s60, s60, s54"); A("s_add_u32 s61, s60, 4096")
    A("v_and_b32 v4, 7, v0"); A("v_lshlrev_b32 v4, 3, v4"); A("v_lshrrev_b32 v3, 5, v0"); A("v_lshl_add_u32 v4, v3, 6, v4")
    A("s_lshl4_add_u32 s62, s4, s5"); A("s_lshl_b32 s62, s62, 7"); A(f"s_add_u32 s62, s62, {HB}")
    lp = lab("pf"); lr = lab("rf")
    A(f"{lp}:")
    A(f"buffer_load_dwordx4 v[{WD}:{WD+3}], v5, s[40:43], s60 offen {PF}")
    A(f"buffer_load_dwordx4 v[{WD+4}:{WD+7}], v5, s[40:43], s61 offen {PF}")
    A("s_waitcnt vmcnt(0)")
    tagcheck(list(range(WD, WD+8)), 1, 8, 9, lr)
    for k in range(4): A(f"v_add_f32 v{WD+k}, v{WD+k}, v{WD+4+k}")
    A(f"v_permlane32_swap_b32 v{WD}, v{WD+2}"); A(f"v_permlane32_swap_b32 v{WD+1}, v{WD+3}")
    for k in range(2): A(f"v_add_f32 v{WD+k}, v{WD+k}, v{WD+2+k}")
    for k in range(2): allred_swap("v_add_f32", WD+k, WD+2+k, 16)
    for k in range(2): rnd(WD+k)
    for k in range(2): A(f"v_mov_b32_dpp v{WD+4+k}, v{WD+k} row_ror:8 row_mask:0xf bank_mask:0xf")
    for k in range(2): A(f"v_mul_f32 v{8+k}, v{WD+k}, v{WD+k}")
    A("s_mov_b32 s14, 0x3d372713")
    for k in range(2): A(f"v_fma_f32 v{8+k}, v{8+k}, s14, 1.0")
    for k in range(2): A(f"v_mul_f32 v{8+k}, v{8+k}, v{WD+k}")
    for k in range(2): A(f"v_mul_f32 v{8+k}, 0xc0135761, v{8+k}")
    for k in range(2): A(f"v_exp_f32 v{8+k}, v{8+k}")
    for k in range(2): A(f"v_add_f32 v{8+k}, 1.0, v{8+k}")
    for k in range(2): A(f"v_rcp_f32 v{8+k}, v{8+k}")
    for k in range(2): A(f"v_mul_f32 v{8+k}, v{8+k}, v{WD+k}")
    for k in range(2): rnd(8+k)
    for k in range(2): A(f"v_mul_f32 v{8+k}, v{8+k}, v{WD+4+k}")
    for k in range(2): rnd(8+k)
    for k in range(2): A(f"v_or_b32 v{8+k}, v{8+k}, v1")
    A("s_mov_b32 exec_lo, 0xff"); A("s_mov_b32 exec_hi, 0xff")
    A("s_cmp_lg_u32 s54, 0"); A("s_cbranch_scc1 L_hfar")
    A("buffer_store_dwordx2 v[8:9], v4, s[40:43], s62 offen")
    stamp(1)
    flush([(1, 13)], cond_sub0=False)
    A("s_endpgm")
    A("L_hfar:")
    A("s_add_u32 s62, s62, s54")
    A("buffer_store_dwordx2 v[8:9], v4, s[40:43], s62 offen sc1")
    A("s_endpgm")
    A(f"{lr}:")
    A("s_sleep 8")
    bail(lp)

    A("L_A3:")
    A("s_setprio 3")
    common()
    srd(44, 36, 37, 256)
    A("s_getreg_b32 s60, hwreg(HW_REG_XCC_ID, 0, 4)")
    if "forcefar" in opt: A("s_and_b32 s60, s5, 1")
    A("s_lshl_b32 s61, s4, 7"); A(f"s_add_u32 s61, s61, {IDS}")
    A("s_lshl2_add_u32 s62, s5, s61")
    A("v_mov_b32 v6, 0"); A("v_lshlrev_b32 v4, 2, v0")
    A("s_waitcnt lgkmcnt(0)")
    mktag(1)
    A("s_add_u32 s14, s13, 1"); A("s_lshl4_add_u32 s14, s14, s60")
    A("v_mov_b32 v2, s14")
    A("s_mov_b64 exec, 1")
    A("buffer_store_dword v2, v6, s[40:43], s62 offen")
    A("s_mov_b64 exec, -1")
    spin_lds(F_KI, 4, 6, 7, sleep=8)
    A("s_mov_b32 exec_hi, 0")
    A("s_mov_b32 s63, 5"); A("s_mov_b32 s54, 0")
    A("L_pi:")
    A(f"buffer_load_dword v3, v4, s[40:43], s61 offen {PF}")
    A("s_waitcnt vmcnt(0)")
    A("v_cmp_ne_u32 vcc, v2, v3")
    A("s_cbranch_vccnz L_pifail")
    A("L_pidone:")
    A("v_mov_b32 v2, s54"); A("v_mov_b32 v7, 1")
    A(f"ds_write_b32 v6, v2 offset:{L_MODE}")
    A(f"ds_write_b32 v6, v7 offset:{F_MODE}")
    A("s_mov_b64 exec, -1")
    stamp(2)
    A("v_lshlrev_b32 v5, 4, v0")
    A("v_lshrrev_b32 v4, 5, v0"); A("v_lshlrev_b32 v4, 2, v4")
    spin_lds(F_P, 4, 6, 7, sleep=4)
    A(f"ds_read_b128 v[8:11], v5 offset:{L_P}")
    A(f"ds_read_b32 v16, v4 offset:{L_MAX}")
    A("s_waitcnt lgkmcnt(0)")
    for k in range(4): A(f"v_lshlrev_b32 v{12+k}, 16, v{8+k}")
    for k in range(4): A(f"v_and_b32 v{8+k}, 0xffff0000, v{8+k}")
    for k in range(4): A(f"v_add_f32 v{8+k}, v{8+k}, v{12+k}")
    A("v_add_f32 v8, v8, v9"); A("v_add_f32 v10, v10, v11"); A("v_add_f32 v17, v8, v10")
    allred_swap("v_add_f32", 17, 13, 16)
    allred16("v_add_f32", 17, ["row_ror:8", "row_ror:4", "row_ror:2", "row_ror:1"])
    tag(16, 1); tag(17, 1)
    A("v_mov_b32 v18, v16"); A("v_mov_b32 v19, v17")
    A("v_permlane32_swap_b32 v16, v18"); A("v_permlane32_swap_b32 v17, v19")
    A("s_lshl_b32 s61, s4, 9"); A(f"s_add_u32 s61, s61, {ST}")
    A("s_add_u32 s61, s61, s54")
    A("s_lshl_b32 s14, s5, 4"); A("s_add_u32 s14, s14, s61")
    A("s_mov_b64 exec, 1")
    A("s_cmp_lg_u32 s54, 0"); A("s_cbranch_scc1 L_sfar")
    A("buffer_store_dwordx4 v[16:19], v6, s[40:43], s14 offen")
    A("s_branch L_sdone")
    A("L_sfar:")
    A("buffer_store_dwordx4 v[16:19], v6, s[40:43], s14 offen sc1")
    A("L_sdone:")
    A("s_mov_b64 exec, -1")
    A("s_cmp_ge_u32 s5, 28"); A("s_cbranch_scc1 L_end")
    A("v_and_b32 v2, 3, v0"); A("v_lshlrev_b32 v2, 4, v2"); A("v_bfe_u32 v3, v0, 2, 2"); A("v_lshl_add_u32 v2, v3, 2, v2")
    A("v_lshrrev_b32 v3, 4, v0"); A("v_lshl_add_u32 v2, v3, 6, v2")
    if "latestat" in opt: spin_lds(F_VI, 4, 6, 7, sleep=2)
    else: A("s_waitcnt vmcnt(0)")
    A("s_mov_b32 exec_hi, 0")
    lp = lab("ps"); lr = lab("rs")
    A(f"{lp}:")
    A(f"buffer_load_dwordx4 v[8:11], v5, s[40:43], s61 offen {PF}")
    A("s_waitcnt vmcnt(0)")
    tagcheck([8, 9, 10, 11], 1, 12, 13, lr)
    A("s_bitcmp1_b32 s10, 1"); A("s_cbranch_scc0 L_h0")
    A("v_mov_b32 v8, v10"); A("v_mov_b32 v9, v11")
    A("L_h0:")
    A("v_and_b32 v8, 0xffff0000, v8")
    A("v_mov_b32 v12, v8")
    allred16("v_max_f32", 12, ["row_ror:8", "row_ror:4", "row_ror:2", "row_ror:1"])
    A("v_sub_f32 v8, v8, v12"); A("v_mul_f32 v8, s59, v8"); A("v_exp_f32 v8, v8")
    A("v_mul_f32 v9, v9, v8")
    allred16("v_add_f32", 9, ["row_ror:8", "row_ror:4", "row_ror:2", "row_ror:1"])
    A("v_rcp_f32 v10, v9")
    A("v_fma_f32 v11, -v9, v10, 1.0"); A("v_fma_f32 v10, v11, v10, v10")
    A("v_mul_f32 v8, v8, v10")
    A(f"ds_write_b32 v2, v8 offset:{L_W}")
    A("v_mov_b32 v7, 1")
    A("s_mov_b64 exec, 1")
    A(f"ds_write_b32 v6, v7 offset:{F_X}")
    A("s_waitcnt lgkmcnt(0)")
    stamp(1)
    flush([(1, 14), (2, 15)], cond_sub0=False)
    A("s_endpgm")
    A(f"{lr}:")
    A(f"s_sleep {getopt('sslp', 8)}")
    bail(lp)
    A("L_pifail:")
    A("s_sub_u32 s15, s15, 1"); A("s_cbranch_scc1 L_end")
    A("s_sleep 8")
    A("s_sub_u32 s63, s63, 1")
    A("s_cmp_gt_i32 s63, 0"); A("s_cbranch_scc1 L_pi")
    A("s_or_b32 s14, s60, 0x80"); A("v_mov_b32 v8, s14")
    A("s_lshl_b32 s62, s4, 5")
    A("s_cmp_lg_u32 s63, 0"); A("s_cbranch_scc1 L_piread")
    A("s_add_u32 s14, s62, s5")
    A("s_mov_b32 exec_lo, 1")
    A("buffer_store_byte v8, v6, s[44:47], s14 offen sc1")
    A("s_mov_b32 exec_lo, -1")
    A("L_piread:")
    A("buffer_load_ubyte v3, v0, s[44:47], s62 offen sc1")
    A("s_waitcnt vmcnt(0)")
    A("v_cmp_eq_u32 vcc, 0, v3")
    A("s_cbranch_vccnz L_pi")
    A("v_cmp_ne_u32 vcc, v8, v3")
    A("s_cmp_lg_u64 vcc, 0"); A(f"s_cselect_b32 s54, {FAR}, 0")
    A("s_branch L_pidone")
    A("L_end:")
    A("s_endpgm")
    txt = A.finish()
    chain = [0] + [n for _, n in sorted(pads)]
    for a, b in zip(chain, chain[1:] + [None]):
        txt = txt.replace(f"@NEXT{a}@", f"L_pad{b}" if b else "L_end")
    return txt

HEADER = open("cdna_kernels/%s.s.ref" % NAME).read().split("; Override launch")[0]
def full(stamps=False, opt=()):
    body = gen(stamps, opt)
    return HEADER + f"""; @launch grid=(256,1,1) block=(768,1,1) lds={LDS_SIZE}
.amdgcn_target "amdgcn-amd-amdhsa--gfx950"
.text
.p2align 12
.fill 832, 4, 0xbf810000
.globl {NAME}_kernel
.p2align 8
.type {NAME}_kernel,@function
{NAME}_kernel:
{body}
.section .rodata,"a"
.p2align 6
.amdhsa_kernel {NAME}_kernel
  .amdhsa_next_free_vgpr 168
  .amdhsa_next_free_sgpr 96
  .amdhsa_accum_offset 168
  .amdhsa_group_segment_fixed_size 0
  .amdhsa_kernarg_size 96
  .amdhsa_user_sgpr_count 2
  .amdhsa_user_sgpr_kernarg_segment_ptr 1
  .amdhsa_system_sgpr_workgroup_id_x 1
.end_amdhsa_kernel
"""
if __name__ == "__main__":
    out = sys.argv[1] if len(sys.argv) > 1 else "cdna_kernels/%s.s" % NAME
    open(out, "w").write(full(stamps=(len(sys.argv) > 2 and sys.argv[2] == "stamps"), opt=sys.argv[3:]))
```

```python
import sys
from asmgen import Asm
NAME = "parallel_sum__sliding_block_cached__glu_gated_geglu__decode"

IDS = 0x1000; AFLG = 0x1800; ACC = 0x2000; QP = 0x10000; FPB = 0x30000; HB = 0x68000; ST = 0x70000; OP = 0x80000
FAR = 0x100000
WS_SIZE = 0x200000
F_Q, F_P, F_M, F_X, F_V, F_VI, F_KI, F_MODE, F_V24, F_TK = 0x00, 0x04, 0x08, 0x0c, 0x20, 0x24, 0x28, 0x2c, 0x30, 0x34
L_MAX, L_TAG, L_MODE = 0x10, 0x18, 0x1c
L_W = 0xc00
L_ZERO = 0x100
L_Q, L_P, L_Y = 0x400, 0x800, 0x1000
LDS_SIZE = 0x1800
CEXP = 0x3db8aa3b
SPIN = 0x100000

def gen(stamps=False, opt=()):
    A = Asm()
    uid = [0]
    pads = []
    def getopt(name, default):
        for o in opt:
            if o.startswith(name + "="): return int(o.split("=")[1])
        return default
    def lab(p):
        uid[0] += 1
        return f"L_{p}{uid[0]}"
    def pad(prio=5):
        n = len(pads) + 1
        pads.append((prio, n))
        A(f"L_pad{n}:")
        A(f"s_cbranch_execz @NEXT{n}@")
    def stamp(k):
        if stamps: A(f"s_memrealtime s[{64+2*k}:{65+2*k}]")
    def flush(slots, cond_sub0=True, persub=()):
        if not stamps: return
        A("s_waitcnt lgkmcnt(0)")
        A("s_mov_b64 exec, -1")
        A("v_mov_b32 v1, 0"); A("v_mov_b32 v2, 0"); A("v_mov_b32 v3, 0")
        A("s_lshl_b32 s14, s2, 9")
        A("s_add_u32 s62, s38, s14"); A("s_addc_u32 s63, s39, 0")
        A("s_add_u32 s62, s62, 0x20000000"); A("s_addc_u32 s63, s63, 0")
        n = 0
        for k, slot in persub:
            A("s_lshl_b32 s14, s8, 3"); A(f"s_add_u32 s14, s14, {slot*8}")
            A(f"v_writelane_b32 v1, s14, {n}"); A(f"v_writelane_b32 v2, s{64+2*k}, {n}"); A(f"v_writelane_b32 v3, s{65+2*k}, {n}")
            n += 1
        np_ = n
        for k, slot in slots:
            A(f"s_movk_i32 s14, {slot*8}")
            A(f"v_writelane_b32 v1, s14, {n}"); A(f"v_writelane_b32 v2, s{64+2*k}, {n}"); A(f"v_writelane_b32 v3, s{65+2*k}, {n}")
            n += 1
        A("s_mov_b32 exec_hi, 0")
        if cond_sub0:
            A("s_cmp_eq_u32 s8, 0"); A(f"s_cselect_b32 exec_lo, {(1<<n)-1}, {(1<<np_)-1}")
            if np_ == 0: A("s_cbranch_execz L_end")
        else:
            A(f"s_mov_b32 exec_lo, {(1<<n)-1}")
        A("global_store_dwordx2 v1, v[2:3], s[62:63]")
    def srd(s, lo, hi, size, off=None):
        if off is None:
            A(f"s_mov_b32 s{s}, s{lo}"); A(f"s_mov_b32 s{s+1}, s{hi}")
        else:
            A(f"s_add_u32 s{s}, s{lo}, {off}"); A(f"s_addc_u32 s{s+1}, s{hi}, 0")
        A(f"s_mov_b32 s{s+2}, {size}"); A(f"s_mov_b32 s{s+3}, 0x20000")
    def spin_lds(flag, n, vz, vt, sleep=1):
        l = lab("sp"); d = lab("sd")
        A(f"{l}:")
        A(f"ds_read_b32 v{vt}, v{vz} offset:{flag}")
        A("s_waitcnt lgkmcnt(0)")
        A(f"v_readfirstlane_b32 s14, v{vt}")
        A(f"s_cmp_ge_u32 s14, {n}")
        A(f"s_cbranch_scc1 {d}")
        if sleep: A(f"s_sleep {sleep}")
        A("s_sub_u32 s15, s15, 1")
        A(f"s_cbranch_scc0 {l}")
        A("s_endpgm")
        A(f"{d}:")
    def tagcheck(regs, vT, c0, c1, lretry):
        A(f"v_xor_b32 v{c0}, v{regs[0]}, v{vT}")
        A(f"v_xor_b32 v{c1}, v{regs[1]}, v{vT}")
        for k, r in enumerate(regs[2:]):
            c = c0 if k % 2 == 0 else c1
            A(f"v_bitop3_b32 v{c}, v{c}, v{r}, v{vT} bitop3:0xf6")
        A(f"v_bitop3_b32 v{c0}, v{c0}, v{c1}, s58 bitop3:0x54")
        A(f"v_cmp_ne_u32 vcc, 0, v{c0}")
        A(f"s_cbranch_vccnz {lretry}")
    def bail(l):
        A("s_sub_u32 s15, s15, 1")
        A(f"s_cbranch_scc0 {l}")
        A("s_endpgm")
    def tag(r, vT, src=None):
        A(f"v_and_or_b32 v{r}, v{r if src is None else src}, s58, v{vT}")
    def mktag(vT):
        A("s_add_u32 s12, s13, 1"); A("s_and_b32 s12, s12, 0xff")
        A(f"v_mov_b32 v{vT}, s12")
    def rnd(r):
        A(f"v_cvt_pk_bf16_f32 v{r}, v{r}, v{r}"); A(f"v_and_b32 v{r}, 0xffff0000, v{r}")
    def allred16(op, r, steps):
        for st in steps: A(f"{op}_dpp v{r}, v{r}, v{r} {st} row_mask:0xf bank_mask:0xf")
    def allred_swap(op, r, t, which):
        A(f"v_mov_b32 v{t}, v{r}")
        A(f"v_permlane{which}_swap_b32 v{t}, v{r}")
        A(f"{op} v{r}, v{t}, v{r}")
    def ldsinc(flag, vz, vone):
        A("s_mov_b64 exec, 1")
        A(f"ds_add_u32 v{vz}, v{vone} offset:{flag}")
        A("s_mov_b64 exec, -1")
    def common(epoch=True):
        srd(40, 38, 39, WS_SIZE, 0x3fc00000 if "wsend" in opt else None)
        if epoch: A("s_load_dword s13, s[40:41], 0")
        A(f"s_mov_b32 s15, {SPIN}")
        A("s_mov_b32 s56, 0x05040100"); A("s_mov_b32 s57, 0x07060302"); A("s_mov_b32 s58, 0xffffff00")
        A(f"s_mov_b32 s59, {CEXP}")
    def kvoff():
        A("s_lshr_b32 s6, s5, 4")
        A("s_lshl_b32 s60, s6, 3"); A("s_add_u32 s60, s60, s4"); A("s_lshl_b32 s60, s60, 7")
        A("s_and_b32 s14, s5, 15"); A("s_add_u32 s60, s60, s14"); A("s_add_u32 s60, s60, 112"); A("s_lshl_b32 s60, s60, 17")
        A("s_lshl_b32 s9, s4, 2"); A("s_xor_b32 s9, s9, s5")
    def quad16(o, z0, z1, vT):
        tag(o, vT, z0); tag(o+1, vT, z1); tag(o+2, vT, z0); tag(o+3, vT, z1)
        A(f"v_permlane16_swap_b32 v{o}, v{o+2}"); A(f"v_permlane16_swap_b32 v{o+1}, v{o+3}")

    if "delay" in opt: A("s_memrealtime s[96:97]")
    stamp(0)
    A("s_load_dwordx16 s[16:31], s[0:1], 0")
    A("s_load_dwordx8 s[32:39], s[0:1], 64")
    A("v_lshrrev_b32 v1, 6, v0")
    A("s_cmp_ge_u32 s2, 256"); A("s_cbranch_scc1 L_end")
    A("v_readfirstlane_b32 s3, v1")
    A("v_and_b32 v0, 63, v0")
    A("s_and_b32 s4, s2, 7")
    A("s_lshr_b32 s5, s2, 3")
    A("s_and_b32 s8, s3, 3")
    A("s_cmp_ge_u32 s3, 2"); A("s_cbranch_scc1 L_KV")

    A("s_setprio 3")
    A("v_and_b32 v3, 7, v0"); A("v_lshlrev_b32 v3, 4, v3")
    A("s_cmp_eq_u32 s3, 1"); A("s_cbranch_scc1 L_A1pre")
    A("s_lshr_b32 s61, s5, 3")
    A("s_mul_i32 s14, s61, 112")
    A("v_lshrrev_b32 v2, 3, v0"); A("v_mul_u32_u24 v2, 14, v2"); A("v_add_u32 v2, s14, v2"); A("v_lshl_add_u32 v2, v2, 13, v3")
    A("s_and_b32 s62, s5, 7"); A("s_lshl_b32 s60, s4, 3"); A("s_add_u32 s60, s62, s60")
    A("s_movk_i32 s62, 8192")
    A("v_and_b32 v4, 1, v0"); A("v_lshrrev_b32 v5, 4, v0"); A("v_lshl_add_u32 v4, v5, 1, v4")
    A("s_branch L_S1")
    A("L_A1z:")
    A("s_cmp_lg_u32 s5, 0"); A("s_cbranch_scc1 L_end")
    A("s_barrier")
    A("s_branch L_ZERO")
    A("L_A1pre:")
    A("s_cmp_eq_u32 s4, 7"); A("s_cbranch_scc1 L_A1z")
    A("s_lshr_b32 s61, s5, 2")
    A("s_mul_i32 s14, s61, 56")
    A("s_movk_i32 s62, 3584")
    A("v_lshrrev_b32 v4, 4, v0")
    A("v_mul_u32_u24 v2, 14, v4"); A("v_add_u32 v2, s14, v2"); A("v_mad_u32_u24 v2, v2, s62, v3")
    A("s_and_b32 s60, s5, 3"); A("s_xor_b32 s60, s60, 2"); A("s_lshl2_add_u32 s60, s4, s60")
    A("L_S1:")
    A("s_lshl_b32 s63, s60, 7"); A("v_add_u32 v2, s63, v2"); A("v_mov_b32 v3, 0")
    A("s_mov_b32 s63, 0")
    A("v_mul_u32_u24 v4, 28, v4"); A("s_lshl_b32 s14, s14, 1"); A("v_add_u32 v4, s14, v4")
    A("v_bfe_u32 v5, v0, 1, 1"); A("v_mul_u32_u24 v5, 896, v5"); A("v_add_u32 v4, v4, v5")
    A("v_lshrrev_b32 v6, 2, v0"); A("v_and_b32 v7, 1, v0"); A("v_lshl_add_u32 v6, v6, 1, v7")
    A("v_lshl_add_u32 v5, v6, 5, v5")
    A("v_cmp_gt_u32 vcc, 56, v0"); A("v_mov_b32 v7, 0x10000"); A("v_cndmask_b32 v5, v7, v5, vcc")
    A("s_movk_i32 s46, 1792"); A("s_mov_b32 s47, 0x20000")
    A("s_cmp_eq_u32 s3, 1")
    A("s_waitcnt lgkmcnt(0)")
    A("s_mov_b64 s[44:45], s[16:17]")
    A("buffer_load_dwordx4 v[8:11], v5, s[44:47], 0 offen")
    A("buffer_load_dwordx4 v[12:15], v5, s[44:47], 0 offen offset:16")
    A("s_cselect_b64 s[52:53], s[28:29], s[22:23]")
    A("s_cselect_b64 s[54:55], s[30:31], s[22:23]")
    A("v_lshl_add_u64 v[6:7], v[2:3], 0, s[54:55]")
    A("v_lshl_add_u64 v[2:3], v[2:3], 0, s[52:53]")
    A("buffer_load_dwordx4 v[16:19], v4, s[44:47], 0 offen")
    A("buffer_load_dwordx3 v[20:22], v4, s[44:47], 0 offen offset:16")
    A("v_mov_b32_dpp v2, v6 quad_perm:[0,1,2,3] row_mask:0xf bank_mask:0xc")
    A("v_mov_b32_dpp v3, v7 quad_perm:[0,1,2,3] row_mask:0xf bank_mask:0xc")
    WD = 32
    for j in range(14):
        if "nos1" in opt and j > 0: continue
        A(f"global_load_dwordx4 v[{WD+4*j}:{WD+4*j+3}], v[2:3], off nt")
        if j < 13: A("v_lshl_add_u64 v[2:3], v[2:3], 0, s[62:63]")
    stamp(4)
    A("s_barrier")
    A("s_branch L_S2")

    A("L_KV:")
    A("s_cmp_lt_u32 s3, 4"); A("s_cbranch_scc1 L_A23")
    kvoff()
    A("s_cmp_lt_u32 s3, 8"); A("s_cbranch_scc1 L_K")
    A("s_barrier")
    A("s_branch L_V")
    A("L_A23:")
    A("s_getpc_b64 s[60:61]")
    A("L_pc:")
    A(f"s_sub_u32 s60, s60, L_pc-{NAME}_kernel"); A("s_subb_u32 s61, s61, 0")
    A("s_and_b32 s14, s3, 1"); A("s_lshl_b32 s14, s14, 13")
    A("v_lshlrev_b32 v1, 7, v0"); A("v_add_u32 v1, s14, v1")
    A(f"v_min_u32 v1, L_end-{NAME}_kernel, v1")
    A("global_load_dword v8, v1, s[60:61]")
    A("s_cmp_eq_u32 s3, 2"); A("s_cbranch_scc1 L_A2")
    A("v_lshlrev_b32 v1, 4, v0")
    for r in range(2, 6): A(f"v_mov_b32 v{r}, 0")
    A("ds_write_b128 v1, v[2:5]")
    A("v_mov_b32 v6, 0xff800000"); A("v_mov_b32 v7, v6")
    A(f"ds_write_b64 v2, v[6:7] offset:{L_MAX}")
    A("s_waitcnt lgkmcnt(0)")
    A("s_barrier")
    A("s_branch L_A3")
    A("L_A2:")
    A("s_barrier")
    A("s_mov_b64 exec, 0")
    A("s_branch @NEXT0@")

    A("L_K:")
    A("s_setprio 2")
    A("v_and_b32 v2, 3, v0"); A("v_lshlrev_b32 v1, 9, v2")
    A("v_lshrrev_b32 v2, 2, v0"); A("v_lshl_add_u32 v1, v2, 4, v1")
    A("s_lshl_b32 s14, s8, 15"); A("v_add_u32 v1, s14, v1")
    A("s_lshr_b32 s61, s9, 1"); A("s_lshl_b32 s14, s8, 2"); A("s_xor_b32 s61, s61, s14")
    A("s_lshl_b32 s62, s61, 11")
    A("s_mov_b32 s46, 0x20000"); A("s_mov_b32 s47, 0x20000")
    A("s_waitcnt lgkmcnt(0)")
    A("s_add_u32 s44, s18, s60"); A("s_addc_u32 s45, s19, 0")
    A("s_barrier")
    KD = 32
    QAT = getopt("qat", 12)
    PF = "sc1" if "pollnont" in opt else "sc1 nt"
    def qpoll(va=3):
        A(f"buffer_load_dwordx4 v[16:19], v{va}, s[40:43], s52 offen {PF}")
        A(f"buffer_load_dwordx4 v[20:23], v{va}, s[40:43], s53 offen {PF}")
    for t in range(17):
        if t == 6:
            common()
            A("v_and_b32 v3, 31, v0"); A("v_lshlrev_b32 v3, 4, v3"); A("v_lshrrev_b32 v2, 5, v0"); A("v_lshl_add_u32 v3, v2, 11, v3")
            A("s_lshl_b32 s52, s4, 14"); A("s_lshl_b32 s14, s6, 13"); A("s_add_u32 s52, s52, s14")
            A("s_lshl_b32 s14, s8, 9"); A("s_add_u32 s52, s52, s14"); A(f"s_add_u32 s52, s52, {QP}")
            A("s_add_u32 s53, s52, 4096")
            A("v_mov_b32 v5, 0"); A("v_mov_b32 v167, 1")
        if t == 10: ldsinc(F_KI, 5, 167)
        if t == QAT and "noq" not in opt:
            qpoll()
        if t == 16: break
        if t == 0: s = "s62"
        else:
            A(f"s_xor_b32 s14, s62, {t*2048}"); s = "s14"
        r = KD + 8*t
        A(f"buffer_load_dwordx4 v[{r}:{r+3}], v1, s[44:47], {s} offen nt")
        A(f"buffer_load_dwordx4 v[{r+4}:{r+7}], v1, s[44:47], {s} offen offset:256 nt")
    stamp(1)
    A("v_and_b32 v2, 1, v0"); A("v_lshlrev_b32 v2, 9, v2")
    A("v_lshrrev_b32 v6, 2, v0"); A("v_lshl_add_u32 v2, v6, 4, v2")
    A("s_lshl_b32 s14, s61, 2"); A("s_lshl_b32 s62, s8, 6"); A("s_or_b32 s14, s14, s62")
    A("s_lshr_b32 s62, s9, 3"); A("s_lshl_b32 s62, s62, 6"); A("s_xor_b32 s14, s14, s62")
    A("s_and_b32 s62, s9, 7"); A("s_xor_b32 s14, s14, s62")
    A("v_xor_b32 v4, s14, v0"); A("v_lshlrev_b32 v4, 1, v4")
    A("v_and_b32 v1, 7, v0"); A("v_lshlrev_b32 v1, 4, v1"); A("v_and_b32 v9, 8, v0"); A("v_or_b32 v1, v1, v9")
    A("v_bfe_u32 v9, v0, 4, 1"); A("v_lshl_add_u32 v1, v9, 7, v1")
    A("v_lshrrev_b32 v9, 5, v0"); A("v_lshl_add_u32 v1, v9, 2, v1")
    A("s_lshl_b32 s14, s8, 8"); A("v_add_u32 v1, s14, v1")
    A("s_waitcnt lgkmcnt(0)")
    mktag(7)
    pad()
    A(f"s_waitcnt vmcnt({2*(16-QAT)})")
    lq = lab("cq"); lrq = lab("rq")
    A(f"{lq}:")
    if "noq" not in opt: tagcheck(list(range(16, 24)), 7, 8, 9, lrq)
    stamp(7)
    for k in range(4): A(f"v_add_f32 v{16+k}, v{16+k}, v{20+k}")
    A("v_permlane32_swap_b32 v16, v18"); A("v_permlane32_swap_b32 v17, v19")
    A("v_add_f32 v16, v16, v18"); A("v_add_f32 v17, v17, v19")
    A("v_cvt_pk_bf16_f32 v16, v16, v17")
    A(f"ds_write_b32 v1, v16 offset:{L_Q}")
    ldsinc(F_Q, 5, 167)
    spin_lds(F_Q, 4, 5, 6)
    A(f"ds_read_b128 v[8:11], v2 offset:{L_Q}")
    A(f"ds_read_b128 v[12:15], v2 offset:{L_Q+256}")
    A("s_waitcnt lgkmcnt(0)")
    def acc(t):
        B = t // 4
        return (16 if B == 0 else KD + 32*(B-1)) + 4*(t % 4)
    for B in range(4):
        if 4*B+4 > QAT: A(f"s_waitcnt vmcnt({32-8*(B+1)})")
        for step in range(4):
            for tt in range(4):
                t = 4*B + tt
                a = acc(t); kd = KD + 8*t + 2*step; q = 8 + 2*step
                c = "0" if step == 0 else f"v[{a}:{a+3}]"
                A(f"v_mfma_f32_4x4x4_16b_bf16 v[{a}:{a+3}], v[{q}:{q+1}], v[{kd}:{kd+1}], {c}")
    pad()
    val = {(t, h): acc(t) + h for t in range(16) for h in range(2)}
    for t in range(8):
        for h in range(2): A(f"v_permlane32_swap_b32 v{val[t,h]}, v{val[t+8,h]}")
    for t in range(8):
        for h in range(2): A(f"v_add_f32 v{val[t,h]}, v{val[t,h]}, v{val[t+8,h]}")
    for t in range(4):
        for h in range(2): A(f"v_permlane16_swap_b32 v{val[t,h]}, v{val[t+4,h]}")
    for t in range(4):
        for h in range(2): A(f"v_add_f32 v{val[t,h]}, v{val[t,h]}, v{val[t+4,h]}")
    for t in range(2):
        for h in range(2):
            o = 160 + 2*t + h
            A(f"v_add_f32_dpp v{o}, v{val[t,h]}, v{val[t,h]} row_ror:8 row_mask:0xf bank_mask:0x3")
    for t in range(2):
        for h in range(2):
            o = 160 + 2*t + h
            A(f"v_add_f32_dpp v{o}, v{val[t+2,h]}, v{val[t+2,h]} row_ror:8 row_mask:0xf bank_mask:0xc")
    for h in range(2): A(f"v_add_f32_dpp v{164+h}, v{160+h}, v{160+h} row_shl:4 row_mask:0xf bank_mask:0x5")
    for h in range(2): A(f"v_add_f32_dpp v{164+h}, v{162+h}, v{162+h} row_shr:4 row_mask:0xf bank_mask:0xa")
    A("v_cvt_pk_bf16_f32 v166, v164, v165")
    A("v_lshlrev_b32 v164, 16, v166"); A("v_and_b32 v165, 0xffff0000, v166")
    stamp(2)
    A("v_mov_b32 v16, v164"); A("v_mov_b32 v17, v165")
    A("v_permlane32_swap_b32 v16, v17"); A("v_max_f32 v16, v16, v17")
    allred_swap("v_max_f32", 16, 17, 16)
    allred16("v_max_f32", 16, ["row_ror:8", "row_ror:4", "row_ror:2", "row_ror:1"])
    A("v_lshrrev_b32 v18, 5, v0"); A("v_lshlrev_b32 v18, 2, v18")
    A("s_mov_b32 exec_lo, 1"); A("s_mov_b32 exec_hi, 1")
    A(f"ds_max_f32 v18, v16 offset:{L_MAX}")
    A("s_mov_b32 exec_hi, 0")
    A(f"ds_add_u32 v5, v167 offset:{F_M}")
    A("s_mov_b64 exec, -1")
    spin_lds(F_M, 4, 5, 6)
    A(f"ds_read_b64 v[20:21], v5 offset:{L_MAX}")
    A("s_waitcnt lgkmcnt(0)")
    A("v_sub_f32 v22, v164, v20"); A("v_sub_f32 v23, v165, v21")
    A("v_mul_f32 v22, s59, v22"); A("v_mul_f32 v23, s59, v23")
    A("v_exp_f32 v22, v22"); A("v_exp_f32 v23, v23")
    A("v_cvt_pk_bf16_f32 v24, v22, v23")
    A(f"ds_write_b16 v4, v24 offset:{L_P}")
    A(f"ds_write_b16_d16_hi v4, v24 offset:{L_P+512}")
    ldsinc(F_P, 5, 167)
    stamp(3)
    A("s_cmp_ge_u32 s5, 28"); A("s_cbranch_scc1 L_Kx")
    pad()
    A("v_lshrrev_b32 v2, 3, v0"); A("v_and_b32 v3, 7, v0"); A("v_lshlrev_b32 v3, 4, v3")
    A("v_mul_u32_u24 v13, 7168, v2"); A("v_add_u32 v13, v13, v3")
    for r in range(48, 56): A(f"v_mov_b32 v{r}, 0")
    BO = 64; PO = 96; AV = 112
    for d in range(8): A(f"v_mov_b32 v{BO+4*d+3}, 0")
    for r in range(AV, AV+16): A(f"v_mov_b32 v{r}, 0")
    A("v_and_b32 v2, 1, v0"); A("v_lshrrev_b32 v3, 4, v0"); A("v_lshl_add_u32 v2, v3, 1, v2")
    A("v_bfe_u32 v3, v0, 1, 1")
    A("v_bfe_u32 v6, v0, 2, 2")
    LIN = "olin" in opt
    if LIN: A("v_lshlrev_b32 v1, 4, v0")
    else:
        A("v_lshlrev_b32 v1, 4, v2"); A("v_lshl_add_u32 v1, v3, 13, v1"); A("v_lshl_add_u32 v1, v6, 9, v1")
    A("v_lshlrev_b32 v12, 4, v6"); A("v_lshl_add_u32 v12, v3, 6, v12")
    A("v_lshlrev_b32 v4, 3, v2"); A("v_lshl_add_u32 v4, v3, 6, v4")
    A("v_mov_b32 v28, v7"); A("v_mov_b32 v29, v7")
    A("v_and_b32 v2, 15, v0"); A("v_lshlrev_b32 v2, 5, v2"); A("v_lshrrev_b32 v3, 4, v0"); A("v_lshl_add_u32 v2, v3, 3, v2")
    A("s_lshl_b32 s14, s8, 9"); A("v_add_u32 v2, s14, v2")
    for u in range(4): A(f"s_mov_b64 s[{88+2*u}:{89+2*u}], -1")
    A("s_mul_i32 s10, s5, 37"); A("s_lshr_b32 s10, s10, 8")
    A("s_mul_i32 s11, s10, 7"); A("s_sub_u32 s11, s5, s11")
    A("s_lshl_b32 s14, s10, 6"); A("s_and_b32 s14, s14, 128"); A("v_add_u32 v12, s14, v12")
    A("s_lshl2_add_u32 s10, s4, s10")
    A("s_lshl_b32 s62, s11, 7")
    A("v_lshrrev_b32 v3, 2, v0"); A("v_sub_u32 v3, v0, v3")
    A("v_lshlrev_b32 v15, 2, v3"); A("s_lshl_b32 s14, s8, 7"); A("v_add_u32 v15, s14, v15")
    A("s_lshr_b32 s14, s8, 1"); A("s_mul_i32 s14, s14, 896"); A("s_add_u32 s14, s14, s62")
    A("s_and_b32 s60, s8, 1"); A("s_lshl_b32 s60, s60, 6"); A("s_add_u32 s14, s14, s60")
    A("v_lshl_add_u32 v14, v3, 1, s14")
    A("v_lshlrev_b32 v30, 2, v0")
    A("v_mov_b32 v31, 0"); A("v_mov_b32 v6, 1.0")
    A("s_mov_b32 exec_lo, 0x88888888"); A("s_mov_b32 exec_hi, 0x88888888"); A("v_mov_b32 v31, 1.0"); A("s_mov_b64 exec, -1")
    srd(44, 16, 17, 1792)
    A("buffer_load_ushort v56, v14, s[44:47], 0 offen")
    A(f"s_movk_i32 s14, {AFLG}")
    A("buffer_load_dword v57, v5, s[40:43], s14 offen sc1")
    A("s_lshl2_add_u32 s60, s11, s8"); A("s_lshl_b32 s60, s60, 8"); A(f"s_add_u32 s60, s60, {ACC}")
    srd(44, 24, 25, 4096*896); srd(48, 32, 33, 1792*896)
    A("s_lshr_b32 s14, s8, 1"); A("s_lshl1_add_u32 s52, s10, s14")
    A("s_and_b32 s14, s8, 1"); A("s_lshl4_add_u32 s52, s52, s14"); A("s_mul_i32 s52, s52, 3584"); A("s_add_u32 s52, s52, s62")
    A("s_lshl_b32 s53, s10, 5"); A("s_add_u32 s53, s53, s8"); A("s_mul_i32 s53, s53, 1792"); A("s_add_u32 s53, s53, s62")
    A("s_lshl_b32 s61, s10, 14"); A(f"s_lshl_b32 s14, s8, {12 if LIN else 7}"); A("s_add_u32 s61, s61, s14"); A(f"s_add_u32 s61, s61, {OP}")
    A("s_add_u32 s63, s61, 4096")
    A("s_lshl2_add_u32 s55, s10, s8"); A("s_lshl_b32 s55, s55, 7"); A(f"s_add_u32 s55, s55, {HB}")
    spin_lds(F_MODE, 1, 5, 6, sleep=2)
    A(f"ds_read_b32 v6, v5 offset:{L_MODE}")
    A("s_add_u32 s54, s13, 1")
    A("s_waitcnt vmcnt(0) lgkmcnt(0)")
    A("v_add_u32 v1, v1, v6"); A("v_add_u32 v4, v4, v6")
    A("v_lshlrev_b32 v56, 16, v56")
    A("L_cz:")
    A("v_cmp_ne_u32 vcc, s54, v57")
    A("s_cbranch_vccnz L_rz")
    spin_lds(F_VI, 4, 5, 6, sleep=1)
    lh = lab("ph"); lrh = lab("rh")
    AF = "sc1" if "anont" in opt else PF
    def pollh():
        A(f"buffer_load_dwordx2 v[28:29], v4, s[40:43], s55 offen {PF}")
    def polla(u):
        if LIN: A(f"buffer_load_dwordx4 v[{PO+4*u}:{PO+4*u+3}], v1, s[40:43], s61 offen offset:{1024*u} {AF}")
        else: A(f"buffer_load_dwordx4 v[{PO+4*u}:{PO+4*u+3}], v1, s[40:43], s{61 if u < 2 else 63} offen offset:{2048*(u%2)} {AF}")
    A("s_cmp_eq_u32 s4, 7"); A("s_cbranch_scc1 L_noh")
    pollh()
    for j in range(2): A(f"buffer_load_dwordx4 v[{48+4*j}:{51+4*j}], v13, s[48:51], s53 offen offset:{896*j} nt")
    A("L_noh:")
    for j in range(4): A(f"buffer_load_dwordx4 v[{32+4*j}:{35+4*j}], v13, s[44:47], s52 offen offset:{896*j} nt")
    srd(44, 34, 35, 1792)
    A("s_mov_b32 s52, 0x77777777"); A("s_mov_b32 s53, 0x377")
    stamp(8)
    pad()
    A("s_setprio 3")
    spin_lds(F_V, 4, 5, 6, sleep=getopt("vsl", 1))
    for u in range(4): polla(u)
    A("s_waitcnt vmcnt(10)")
    A(f"{lh}:")
    tagcheck([28, 29], 7, 8, 9, lrh)
    A("v_perm_b32 v28, v29, v28, s57")
    for rg in range(4): A(f"v_mov_b32_dpp v{AV+4*rg+2}, v28 quad_perm:[0,1,2,3] row_mask:0xf bank_mask:{1<<rg}")
    spin_lds(F_X, 1, 5, 6)
    A(f"ds_read_b128 v[24:27], v12 offset:{L_W}")
    A("s_waitcnt vmcnt(4)")
    stamp(9)
    for c in range(4):
        for e in range(2):
            d = 2*c + e
            for q, (lo, hi) in enumerate([(32, 36), (40, 44), (48, 52)]):
                A(f"v_perm_b32 v{BO+4*d+q}, v{hi+c}, v{lo+c}, s{56+e}")
    pad()
    A("s_branch L_ck")
    A("L_ra:")
    for u in range(4):
        A(f"s_mov_b64 exec, s[{88+2*u}:{89+2*u}]")
        A(f"s_cbranch_execz L_ras{u}")
        polla(u)
        A(f"L_ras{u}:")
    A("s_sub_u32 s15, s15, 1"); A("s_cbranch_scc1 L_end")
    A("L_ck:")
    A("s_waitcnt vmcnt(0) lgkmcnt(0)")
    for u in range(4):
        A(f"s_mov_b64 exec, s[{88+2*u}:{89+2*u}]")
        A(f"s_cbranch_execz L_cks{u}")
        r = PO + 4*u
        A(f"v_xor_b32 v8, v{r}, v7")
        for k in range(1, 4): A(f"v_bitop3_b32 v8, v8, v{r+k}, v7 bitop3:0xf6")
        A(f"v_cmp_ne_u32_sdwa s[{88+2*u}:{89+2*u}], v8, v5 src0_sel:BYTE_0 src1_sel:DWORD")
        A(f"L_cks{u}:")
    A("s_or_b64 vcc, s[88:89], s[90:91]"); A("s_or_b64 vcc, vcc, s[92:93]"); A("s_or_b64 vcc, vcc, s[94:95]")
    A("s_cbranch_scc1 L_ra")
    A("s_mov_b64 exec, -1")
    stamp(4)
    for k in range(2): A(f"v_pk_mul_f32 v[{PO+2*k}:{PO+2*k+1}], v[{PO+2*k}:{PO+2*k+1}], v[24:25] op_sel_hi:[1,0]")
    for u in range(1, 4):
        w = 24 + (u & 2)
        sel = "op_sel:[0,1,0] op_sel_hi:[1,1,1]" if u & 1 else "op_sel_hi:[1,0,1]"
        for k in range(2): A(f"v_pk_fma_f32 v[{PO+2*k}:{PO+2*k+1}], v[{PO+4*u+2*k}:{PO+4*u+2*k+1}], v[{w}:{w+1}], v[{PO+2*k}:{PO+2*k+1}] {sel}")
    for st in ("row_ror:4", "row_ror:8"):
        for k in range(4): A(f"v_add_f32_dpp v{PO+k}, v{PO+k}, v{PO+k} {st} row_mask:0xf bank_mask:0xf")
    A(f"v_cvt_pk_bf16_f32 v8, v{PO}, v{PO+1}"); A(f"v_cvt_pk_bf16_f32 v9, v{PO+2}, v{PO+3}")
    def amov(rg):
        for k in range(2): A(f"v_mov_b32_dpp v{AV+4*rg+k}, v{8+k} quad_perm:[0,1,2,3] row_mask:0xf bank_mask:{1<<rg}")
    amov(0); amov(1)
    for rg in range(4):
        for e in range(2):
            d = 2*rg + e; a = 16 + 4*e
            c = "0" if rg == 0 else f"v[{a}:{a+3}]"
            A(f"v_mfma_f32_16x16x32_bf16 v[{a}:{a+3}], v[{AV+4*rg}:{AV+4*rg+3}], v[{BO+4*d}:{BO+4*d+3}], {c}")
        if rg < 2: amov(rg + 2)
    for e in range(2):
        A(f"v_add_f32_dpp v{10+e}, v{16+4*e+1}, v{16+4*e} row_ror:8 row_mask:0xf bank_mask:0x3")
    for e in range(2):
        A(f"v_add_f32_dpp v{10+e}, v{16+4*e+2}, v{16+4*e+3} row_ror:8 row_mask:0xf bank_mask:0xc")
    A(f"ds_write_b64 v2, v[10:11] offset:{L_Y}")
    A("s_waitcnt lgkmcnt(0)")
    A("s_barrier")
    A(f"ds_read2st64_b32 v[16:17], v15 offset0:{L_Y//256} offset1:{L_Y//256+2}")
    A(f"ds_read2st64_b32 v[18:19], v15 offset0:{L_Y//256+4} offset1:{L_Y//256+6}")
    A("s_mov_b32 exec_hi, 0xfff")
    A("s_waitcnt lgkmcnt(0)")
    A("v_pk_add_f32 v[16:17], v[16:17], v[18:19]")
    A("v_add_f32 v16, v16, v17")
    A("v_cndmask_b32 v17, v31, v16, s[52:53]")
    stamp(5)
    A("buffer_atomic_add_f32 v17, v30, s[40:43], s60 offen sc0 sc1")
    A("v_add_f32 v16, v16, v56")
    A("v_mov_b32 v19, 0x41f80000")
    A("s_waitcnt vmcnt(0)")
    A("v_mov_b32_dpp v18, v17 quad_perm:[3,3,3,3] row_mask:0xf bank_mask:0xf")
    A("v_add_f32 v16, v16, v17")
    A("v_cmp_eq_f32 vcc, v18, v19")
    A("v_cvt_pk_bf16_f32 v16, v16, v16")
    if "delay" in opt:
        A("L_dly:"); A("s_memrealtime s[98:99]"); A("s_waitcnt lgkmcnt(0)"); A("s_sub_u32 s98, s98, s96"); A("s_cmp_lt_u32 s98, 4000"); A("s_cbranch_scc1 L_dly")
    A("s_and_b64 exec, vcc, s[52:53]")
    A("s_cbranch_execz L_Ky")
    A("buffer_store_short v16, v14, s[44:47], 0 offen")
    A(f"s_cmp_lg_u32 s60, {ACC}"); A("s_cbranch_scc1 L_Ky")
    A("s_and_b64 exec, exec, 1")
    A("s_cbranch_execz L_Ky")
    A("v_mov_b32 v6, s54")
    A("buffer_store_dword v6, v5, s[40:43], 0 offen")
    A("L_Ky:")
    stamp(6)
    flush([(1, 3), (2, 4), (3, 5), (4, 9), (5, 10), (6, 12), (7, 2), (8, 23), (9, 24)], persub=[(1, 44), (2, 48), (4, 52), (6, 56)])
    A("L_Kx:")
    A("s_endpgm")
    A(f"{lrh}:")
    pollh()
    A("s_waitcnt vmcnt(0)")
    bail(lh)
    A(f"{lrq}:")
    A(f"ds_read_b32 v6, v5 offset:{L_MODE}")
    A("s_waitcnt lgkmcnt(0)")
    A("v_add_u32 v6, v6, v3")
    qpoll(6)
    A("s_waitcnt vmcnt(0)")
    bail(lq)
    A("L_rz:")
    A("s_sleep 8")
    A(f"s_movk_i32 s14, {AFLG}")
    A("buffer_load_dword v57, v5, s[40:43], s14 offen sc1")
    A("s_waitcnt vmcnt(0)")
    bail("L_cz")
    A("L_ZERO:")
    A("s_waitcnt lgkmcnt(0)")
    common()
    A("v_lshlrev_b32 v1, 4, v0")
    for r in range(4, 8): A(f"v_mov_b32 v{r}, 0")
    for k in range(7):
        A(f"s_movk_i32 s14, {ACC + 1024*k}")
        A("buffer_store_dwordx4 v[4:7], v1, s[40:43], s14 offen sc1")
    A("s_waitcnt vmcnt(0) lgkmcnt(0)")
    A("s_add_u32 s54, s13, 1"); A("v_mov_b32 v2, s54")
    A(f"s_movk_i32 s14, {AFLG}")
    A("s_mov_b64 exec, 1")
    A("buffer_store_dword v2, v4, s[40:43], s14 offen sc1")
    A("s_endpgm")

    A("L_V:")
    A("s_setprio 1")
    A("v_lshrrev_b32 v2, 3, v0"); A("v_lshlrev_b32 v1, 12, v2")
    A("v_and_b32 v2, 7, v0"); A("v_lshl_add_u32 v1, v2, 4, v1")
    A("s_lshl_b32 s14, s8, 7"); A("v_add_u32 v1, s14, v1")
    A("s_and_b32 s62, s9, 7"); A("s_lshl_b32 s62, s62, 9"); A("s_lshr_b32 s14, s9, 3"); A("s_lshl_b32 s14, s14, 15"); A("s_or_b32 s62, s62, s14")
    A("s_waitcnt lgkmcnt(0)")
    srd(44, 20, 21, 131072, "s60")
    common()
    A("v_and_b32 v6, 1, v0"); A("v_lshrrev_b32 v7, 4, v0"); A("v_lshl_add_u32 v6, v7, 1, v6"); A("v_lshlrev_b32 v6, 4, v6")
    A("v_bfe_u32 v7, v0, 1, 1"); A("v_lshl_add_u32 v6, v7, 9, v6"); A(f"v_add_u32 v6, {L_P}, v6")
    for rg in range(4): A(f"v_mov_b32 v{2+rg}, {L_ZERO}")
    for rg in range(4): A(f"v_mov_b32_dpp v{2+rg}, v6 quad_perm:[0,1,2,3] row_mask:0xf bank_mask:{1<<rg}")
    A("v_mov_b32 v6, 0"); A("v_mov_b32 v16, 1")
    def oaddr(va, vt):
        A(f"v_bfe_u32 v{vt}, v0, 3, 1")
        if LIN:
            A(f"v_and_b32 v{va}, 1, v0"); A(f"v_lshlrev_b32 v{va}, 4, v{va}"); A(f"v_lshl_add_u32 v{va}, v{vt}, 15, v{va}")
            A(f"v_bfe_u32 v{vt}, v0, 1, 2"); A(f"v_lshl_add_u32 v{va}, v{vt}, 8, v{va}")
            A(f"v_lshrrev_b32 v{vt}, 5, v0"); A(f"v_lshl_add_u32 v{va}, v{vt}, 12, v{va}")
        else:
            A(f"v_and_b32 v{va}, 7, v0"); A(f"v_lshlrev_b32 v{va}, 4, v{va}"); A(f"v_lshl_add_u32 v{va}, v{vt}, 15, v{va}")
            A(f"v_lshrrev_b32 v{vt}, 5, v0"); A(f"v_lshl_add_u32 v{va}, v{vt}, 7, v{va}")
    if LIN:
        A("s_lshl_b32 s61, s4, 16"); A("s_lshl_b32 s14, s8, 13"); A("s_add_u32 s61, s61, s14")
        A("s_bfe_u32 s14, s5, 0x20002"); A("s_lshl_b32 s14, s14, 10"); A("s_add_u32 s61, s61, s14")
        A("s_and_b32 s14, s5, 3"); A("s_lshl_b32 s14, s14, 6"); A("s_add_u32 s61, s61, s14")
        A("s_lshl_b32 s14, s6, 5"); A("s_add_u32 s61, s61, s14"); A(f"s_add_u32 s61, s61, {OP}")
    else:
        A("s_lshl_b32 s61, s4, 16"); A("s_lshr_b32 s14, s8, 1"); A("s_lshl_b32 s14, s14, 14"); A("s_add_u32 s61, s61, s14")
        A("s_lshl_b32 s14, s5, 9"); A("s_add_u32 s61, s61, s14")
        A("s_and_b32 s14, s8, 1"); A("s_lshl_b32 s14, s14, 8"); A("s_add_u32 s61, s61, s14"); A(f"s_add_u32 s61, s61, {OP}")
    A(f"s_add_u32 s63, s61, {FAR}")
    A("s_mov_b32 s52, 0xffff"); A("s_mov_b32 s53, 0xffff")
    if "prewarm" in opt:
        oaddr(17, 18)
        A("s_waitcnt lgkmcnt(0)")
        for r in range(20, 24): A(f"v_mov_b32 v{r}, s13")
        A("s_mov_b64 exec, s[52:53]")
        A("buffer_store_dwordx4 v[20:23], v17, s[40:43], s61 offen")
        A("s_mov_b64 exec, -1")
    VD = 40
    for t in range(32):
        A(f"s_xor_b32 s14, s62, {(t>>3)*32768 + (t&7)*512}")
        r = VD + 4*t
        A(f"buffer_load_dwordx4 v[{r}:{r+3}], v1, s[44:47], s14 offen nt")
        if t == getopt("tkat", 22): ldsinc(F_V24, 6, 16)
    ldsinc(F_VI, 6, 16)
    stamp(1)
    pad()
    spin_lds(F_P, 4, 6, 7)
    A("s_setprio 3")
    def rdA(g4, base):
        for rg in range(4): A(f"ds_read_b128 v[{base+4*rg}:{base+4*rg+3}], v{2+rg} offset:{128*g4}")
    Abase = {0: 24, 1: VD, 2: VD+16, 3: 24}
    rdA(0, 24)
    for g4 in range(3):
        ab = Abase[g4]; D = VD + 32*g4
        if g4 == 2: pad()
        A(f"s_waitcnt vmcnt({24-8*g4}) lgkmcnt(0)")
        for c in range(4):
            for e in range(2):
                for q in range(4):
                    A(f"v_perm_b32 v{16+4*e+q}, v{D+8*q+4+c}, v{D+8*q+c}, s{56+e}")
            for e in range(2):
                a = 8 + 4*e
                cc = "0" if (g4 == 0 and c == 0) else f"v[{a}:{a+3}]"
                A(f"v_mfma_f32_16x16x32_bf16 v[{a}:{a+3}], v[{ab+4*c}:{ab+4*c+3}], v[{16+4*e}:{19+4*e}], {cc}")
        if g4 == 0:
            rdA(1, VD); rdA(2, VD+16); rdA(3, 24)
    mktag(3)
    spin_lds(F_MODE, 1, 6, 7)
    A(f"ds_read_b32 v7, v6 offset:{L_MODE}")
    A("v_mov_b32 v2, 1")
    oaddr(1, 4)
    A("s_waitcnt lgkmcnt(0)")
    A("v_readfirstlane_b32 s54, v7")
    TT = VD + 32
    D = VD + 96
    pad()
    for q in range(4):
        A(f"s_waitcnt vmcnt({6-2*q})")
        if q == 3: stamp(2)
        for c in range(4):
            for e in range(2):
                A(f"v_perm_b32 v{TT+4*(2*c+e)+q}, v{D+8*q+4+c}, v{D+8*q+c}, s{56+e}")
    for c in range(4):
        for e in range(2):
            a = 8 + 4*e; d = 2*c + e
            A(f"v_mfma_f32_16x16x32_bf16 v[{a}:{a+3}], v[{24+4*c}:{27+4*c}], v[{TT+4*d}:{TT+4*d+3}], v[{a}:{a+3}]")
    for e in range(2): A(f"v_add_f32_dpp v{4+e}, v{8+4*e+1}, v{8+4*e} row_ror:8 row_mask:0xf bank_mask:0x3")
    for e in range(2): A(f"v_add_f32_dpp v{4+e}, v{8+4*e+2}, v{8+4*e+3} row_ror:8 row_mask:0xf bank_mask:0xc")
    quad16(16, 4, 5, 3)
    A("s_mov_b64 exec, s[52:53]")
    A("buffer_store_dwordx4 v[16:19], v1, s[40:43], s61 offen")
    A("s_cmp_eq_u32 s54, 0"); A("s_cbranch_scc1 L_onear")
    A("buffer_store_dwordx4 v[16:19], v1, s[40:43], s63 offen sc1")
    A("L_onear:")
    A("s_mov_b64 exec, 1")
    A(f"ds_add_u32 v6, v2 offset:{F_V}")
    stamp(3)
    flush([(1, 6), (2, 7), (3, 8)], persub=[(1, 36), (2, 40)])
    A("s_endpgm")

    A("L_S2:")
    common()
    A("s_waitcnt vmcnt(16)")
    X = 96
    for k in range(8):
        A(f"v_lshlrev_b32 v{X+2*k}, 16, v{8+k}"); A(f"v_and_b32 v{X+2*k+1}, 0xffff0000, v{8+k}")
    for k in range(8): A(f"v_add_f32 v{8+k}, v{X+2*k}, v{X+2*k+1}")
    for k in range(4): A(f"v_add_f32 v{8+k}, v{8+k}, v{12+k}")
    A("v_add_f32 v8, v8, v10"); A("v_add_f32 v9, v9, v11"); A("v_add_f32 v8, v8, v9")
    def red_b(r, t):
        allred16("v_add_f32", r, ["quad_perm:[1,0,3,2]", "row_ror:4", "row_ror:8"])
        allred_swap("v_add_f32", r, t, 16); allred_swap("v_add_f32", r, t, 32)
    red_b(8, 9)
    A("v_mul_f32 v8, 0x3b124925, v8")
    for k in range(16): A(f"v_sub_f32 v{X+k}, v{X+k}, v8")
    A(f"v_mul_f32 v10, v{X}, v{X}"); A(f"v_mul_f32 v11, v{X+1}, v{X+1}")
    for k in range(2, 16): A(f"v_fmac_f32 v{10+k%2}, v{X+k}, v{X+k}")
    A("v_add_f32 v10, v10, v11")
    A("v_cndmask_b32 v10, 0, v10, vcc")
    red_b(10, 9)
    A("v_mul_f32 v10, 0x3b124925, v10")
    rnd(8); rnd(10)
    A("v_add_f32 v10, 0x3727c5ac, v10"); rnd(10)
    A("v_sqrt_f32 v10, v10"); rnd(10)
    A("v_rcp_f32 v11, v10")
    A("v_fma_f32 v12, -v10, v11, 1.0"); A("v_fma_f32 v11, v12, v11, v11")
    pad(0)
    A("s_waitcnt vmcnt(14)")
    for k in range(7):
        A(f"v_lshlrev_b32 v{X+2*k}, 16, v{16+k}"); A(f"v_and_b32 v{X+2*k+1}, 0xffff0000, v{16+k}")
    for k in range(14): A(f"v_sub_f32 v{X+k}, v{X+k}, v8")
    for k in range(7): A(f"v_cvt_pk_bf16_f32 v{16+k}, v{X+2*k}, v{X+2*k+1}")
    for k in range(7):
        A(f"v_lshlrev_b32 v{X+2*k}, 16, v{16+k}"); A(f"v_and_b32 v{X+2*k+1}, 0xffff0000, v{16+k}")
    for k in range(14): A(f"v_mul_f32 v{X+k}, v{X+k}, v11")
    for k in range(7): A(f"v_cvt_pk_bf16_f32 v{16+k}, v{X+2*k}, v{X+2*k+1}")
    A("v_mov_b32 v23, 0")
    TB = 88
    A("v_mov_b32 v95, 0"); A("v_mov_b32 v31, 0")
    AC = 112
    A("s_waitcnt vmcnt(0) lgkmcnt(0)")
    stamp(8)
    mktag(1)
    for d in range(8):
        c = d >> 1; e = d & 1; T = TB if e == 0 else 24
        for q in range(7): A(f"v_perm_b32 v{T+q}, v{WD+8*q+4+c}, v{WD+8*q+c}, s{56+e}")
        a = AC + 4*d
        A(f"v_mfma_f32_16x16x32_bf16 v[{a}:{a+3}], v[16:19], v[{T}:{T+3}], 0")
        A(f"v_mfma_f32_16x16x32_bf16 v[{a}:{a+3}], v[20:23], v[{T+4}:{T+7}], v[{a}:{a+3}]")
    pad(1)
    A("s_cmp_eq_u32 s3, 1"); A("s_cbranch_scc1 L_A1post")
    A("v_and_b32 v5, 7, v0"); A("v_lshlrev_b32 v5, 4, v5"); A("v_lshrrev_b32 v6, 5, v0"); A("v_lshl_add_u32 v5, v6, 7, v5")
    A("v_bfe_u32 v6, v0, 3, 1"); A("v_lshl_add_u32 v5, v6, 13, v5")
    for rg in range(4):
        for half in range(2):
            for e in range(2):
                a = AC + 4*(2*rg+e)
                if half == 0: A(f"v_add_f32_dpp v{8+e}, v{a+1}, v{a} row_ror:8 row_mask:{1<<rg} bank_mask:0x3")
                else: A(f"v_add_f32_dpp v{8+e}, v{a+2}, v{a+3} row_ror:8 row_mask:{1<<rg} bank_mask:0xc")
    quad16(12, 8, 9, 1)
    A("s_lshl_b32 s14, s4, 14"); A("s_lshl_b32 s62, s61, 11"); A("s_add_u32 s14, s14, s62")
    A("s_and_b32 s62, s5, 7"); A("s_lshl_b32 s62, s62, 8"); A("s_add_u32 s14, s14, s62"); A(f"s_add_u32 s62, s14, {QP}")
    A("s_mov_b32 exec_lo, 0xffff"); A("s_mov_b32 exec_hi, 0xffff")
    A("buffer_store_dwordx4 v[12:15], v5, s[40:43], s62 offen")
    stamp(1)
    def farstore(regs, va, lskip):
        A("v_mov_b32 v6, 0")
        spin_lds(F_MODE, 1, 6, 7, sleep=8)
        A(f"ds_read_b32 v7, v6 offset:{L_MODE}")
        A("s_waitcnt lgkmcnt(0)")
        A("v_readfirstlane_b32 s54, v7")
        A("s_cmp_eq_u32 s54, 0"); A(f"s_cbranch_scc1 {lskip}")
        A("s_add_u32 s62, s62, s54")
        A(f"buffer_store_dwordx4 {regs}, v{va}, s[40:43], s62 offen sc1")
        A(f"{lskip}:")
    farstore("v[12:15]", 5, "L_qnear")
    ow = getopt("owarm", 0)
    if ow:
        if ow == 2: spin_lds(F_V24, 4, 6, 7, sleep=4)
        if ow == 3: spin_lds(F_P, 4, 6, 7, sleep=4)
        A("s_mov_b32 exec_hi, 0")
        A("v_lshlrev_b32 v5, 7, v0")
        A("s_lshl_b32 s14, s4, 5"); A("s_add_u32 s14, s14, s5"); A("s_lshl_b32 s14, s14, 11"); A(f"s_add_u32 s14, s14, {OP}")
        A("buffer_load_dword v8, v5, s[40:43], s14 offen sc1 nt")
        if "owarm1" not in opt:
            A("s_waitcnt vmcnt(0)")
            A("buffer_load_dword v8, v5, s[40:43], s14 offen sc1")
    stamp(2)
    flush([(0, 0), (1, 1), (8, 20), (4, 28), (2, 16)])
    A("s_endpgm")
    A("L_A1post:")
    A("v_lshlrev_b32 v5, 4, v0")
    A("s_lshl3_add_u32 s62, s60, s61"); A("s_lshl_b32 s62, s62, 10"); A(f"s_add_u32 s62, s62, {FPB}")
    A("s_nop 4")
    for rg in range(4):
        for b in range(2):
            for e in range(2):
                a = AC + 4*(2*rg+e) + 2*b
                A(f"v_mov_b32_dpp v{8+2*b+e}, v{a} quad_perm:[0,1,2,3] row_mask:{1<<rg} bank_mask:0xf")
    for k in range(4): tag(8+k, 1)
    A("buffer_store_dwordx4 v[8:11], v5, s[40:43], s62 offen")
    farstore("v[8:11]", 5, "L_fnear")
    A("s_cmp_ge_u32 s5, 16"); A("s_cbranch_scc1 L_end")
    A("v_and_b32 v5, 15, v0"); A("v_lshlrev_b32 v5, 4, v5"); A("v_lshrrev_b32 v3, 4, v0"); A("v_lshl_add_u32 v5, v3, 10, v5")
    A("s_lshr_b32 s14, s5, 2"); A("s_lshl2_add_u32 s60, s4, s14"); A("s_lshl_b32 s60, s60, 13")
    A("s_and_b32 s14, s5, 3"); A("s_lshl_b32 s14, s14, 8"); A("s_add_u32 s60, s60, s14"); A(f"s_add_u32 s60, s60, {FPB}")
    A("s_add_u32 s60, s60, s54"); A("s_add_u32 s61, s60, 4096")
    A("v_and_b32 v4, 7, v0"); A("v_lshlrev_b32 v4, 3, v4"); A("v_lshrrev_b32 v3, 5, v0"); A("v_lshl_add_u32 v4, v3, 6, v4")
    A("s_lshl4_add_u32 s62, s4, s5"); A("s_lshl_b32 s62, s62, 7"); A(f"s_add_u32 s62, s62, {HB}")
    lp = lab("pf"); lr = lab("rf")
    A(f"{lp}:")
    A(f"buffer_load_dwordx4 v[{WD}:{WD+3}], v5, s[40:43], s60 offen {PF}")
    A(f"buffer_load_dwordx4 v[{WD+4}:{WD+7}], v5, s[40:43], s61 offen {PF}")
    A("s_waitcnt vmcnt(0)")
    tagcheck(list(range(WD, WD+8)), 1, 8, 9, lr)
    for k in range(4): A(f"v_add_f32 v{WD+k}, v{WD+k}, v{WD+4+k}")
    A(f"v_permlane32_swap_b32 v{WD}, v{WD+2}"); A(f"v_permlane32_swap_b32 v{WD+1}, v{WD+3}")
    for k in range(2): A(f"v_add_f32 v{WD+k}, v{WD+k}, v{WD+2+k}")
    for k in range(2): allred_swap("v_add_f32", WD+k, WD+2+k, 16)
    for k in range(2): rnd(WD+k)
    for k in range(2): A(f"v_mov_b32_dpp v{WD+4+k}, v{WD+k} row_ror:8 row_mask:0xf bank_mask:0xf")
    for k in range(2): A(f"v_mul_f32 v{8+k}, v{WD+k}, v{WD+k}")
    A("s_mov_b32 s14, 0x3d372713")
    for k in range(2): A(f"v_fma_f32 v{8+k}, v{8+k}, s14, 1.0")
    for k in range(2): A(f"v_mul_f32 v{8+k}, v{8+k}, v{WD+k}")
    for k in range(2): A(f"v_mul_f32 v{8+k}, 0xc0135761, v{8+k}")
    for k in range(2): A(f"v_exp_f32 v{8+k}, v{8+k}")
    for k in range(2): A(f"v_add_f32 v{8+k}, 1.0, v{8+k}")
    for k in range(2): A(f"v_rcp_f32 v{8+k}, v{8+k}")
    for k in range(2): A(f"v_mul_f32 v{8+k}, v{8+k}, v{WD+k}")
    for k in range(2): rnd(8+k)
    for k in range(2): A(f"v_mul_f32 v{8+k}, v{8+k}, v{WD+4+k}")
    for k in range(2): rnd(8+k)
    for k in range(2): A(f"v_or_b32 v{8+k}, v{8+k}, v1")
    A("s_mov_b32 exec_lo, 0xff"); A("s_mov_b32 exec_hi, 0xff")
    A("s_cmp_lg_u32 s54, 0"); A("s_cbranch_scc1 L_hfar")
    A("buffer_store_dwordx2 v[8:9], v4, s[40:43], s62 offen")
    stamp(1)
    flush([(1, 13)], cond_sub0=False)
    A("s_endpgm")
    A("L_hfar:")
    A("s_add_u32 s62, s62, s54")
    A("buffer_store_dwordx2 v[8:9], v4, s[40:43], s62 offen sc1")
    A("s_endpgm")
    A(f"{lr}:")
    A("s_sleep 8")
    bail(lp)

    A("L_A3:")
    A("s_setprio 3")
    common()
    srd(44, 36, 37, 256)
    A("s_getreg_b32 s60, hwreg(HW_REG_XCC_ID, 0, 4)")
    if "forcefar" in opt: A("s_and_b32 s60, s5, 1")
    A("s_lshl_b32 s61, s4, 7"); A(f"s_add_u32 s61, s61, {IDS}")
    A("s_lshl2_add_u32 s62, s5, s61")
    A("v_mov_b32 v6, 0"); A("v_lshlrev_b32 v4, 2, v0")
    A("s_waitcnt lgkmcnt(0)")
    mktag(1)
    A("s_add_u32 s14, s13, 1"); A("s_lshl4_add_u32 s14, s14, s60")
    A("v_mov_b32 v2, s14")
    A("s_mov_b64 exec, 1")
    A("buffer_store_dword v2, v6, s[40:43], s62 offen")
    A("s_mov_b64 exec, -1")
    spin_lds(F_KI, 4, 6, 7, sleep=8)
    A("s_mov_b32 exec_hi, 0")
    A("s_mov_b32 s63, 5"); A("s_mov_b32 s54, 0")
    A("L_pi:")
    A(f"buffer_load_dword v3, v4, s[40:43], s61 offen {PF}")
    A("s_waitcnt vmcnt(0)")
    A("v_cmp_ne_u32 vcc, v2, v3")
    A("s_cbranch_vccnz L_pifail")
    A("L_pidone:")
    A("v_mov_b32 v2, s54"); A("v_mov_b32 v7, 1")
    A(f"ds_write_b32 v6, v2 offset:{L_MODE}")
    A(f"ds_write_b32 v6, v7 offset:{F_MODE}")
    A("s_mov_b64 exec, -1")
    stamp(2)
    A("v_lshlrev_b32 v5, 4, v0")
    A("v_lshrrev_b32 v4, 5, v0"); A("v_lshlrev_b32 v4, 2, v4")
    spin_lds(F_P, 4, 6, 7, sleep=4)
    A(f"ds_read_b128 v[8:11], v5 offset:{L_P}")
    A(f"ds_read_b32 v16, v4 offset:{L_MAX}")
    A("s_waitcnt lgkmcnt(0)")
    for k in range(4): A(f"v_lshlrev_b32 v{12+k}, 16, v{8+k}")
    for k in range(4): A(f"v_and_b32 v{8+k}, 0xffff0000, v{8+k}")
    for k in range(4): A(f"v_add_f32 v{8+k}, v{8+k}, v{12+k}")
    A("v_add_f32 v8, v8, v9"); A("v_add_f32 v10, v10, v11"); A("v_add_f32 v17, v8, v10")
    allred_swap("v_add_f32", 17, 13, 16)
    allred16("v_add_f32", 17, ["row_ror:8", "row_ror:4", "row_ror:2", "row_ror:1"])
    tag(16, 1); tag(17, 1)
    A("v_mov_b32 v18, v16"); A("v_mov_b32 v19, v17")
    A("v_permlane32_swap_b32 v16, v18"); A("v_permlane32_swap_b32 v17, v19")
    A("s_lshl_b32 s61, s4, 9"); A(f"s_add_u32 s61, s61, {ST}")
    A("s_add_u32 s61, s61, s54")
    A("s_lshl_b32 s14, s5, 4"); A("s_add_u32 s14, s14, s61")
    A("s_mov_b64 exec, 1")
    A("s_cmp_lg_u32 s54, 0"); A("s_cbranch_scc1 L_sfar")
    A("buffer_store_dwordx4 v[16:19], v6, s[40:43], s14 offen")
    A("s_branch L_sdone")
    A("L_sfar:")
    A("buffer_store_dwordx4 v[16:19], v6, s[40:43], s14 offen sc1")
    A("L_sdone:")
    A("s_mov_b64 exec, -1")
    A("s_cmp_ge_u32 s5, 28"); A("s_cbranch_scc1 L_end")
    A("v_and_b32 v5, 31, v0"); A("v_lshlrev_b32 v5, 4, v5"); A("v_lshl_add_u32 v5, v4, 1, v5")
    A("v_and_b32 v2, 3, v0"); A("v_lshlrev_b32 v2, 4, v2"); A("v_bfe_u32 v3, v0, 2, 2"); A("v_lshl_add_u32 v2, v3, 2, v2")
    A("v_lshrrev_b32 v3, 4, v0"); A("v_lshl_add_u32 v2, v3, 6, v2")
    if "latestat" in opt: spin_lds(F_V24, 4, 6, 7, sleep=2)
    else: A("s_waitcnt vmcnt(0)")
    lp = lab("ps"); lr = lab("rs")
    A(f"{lp}:")
    A(f"buffer_load_dwordx2 v[8:9], v5, s[40:43], s61 offen {PF}")
    A("s_waitcnt vmcnt(0)")
    tagcheck([8, 9], 1, 12, 13, lr)
    A("v_and_b32 v8, 0xffff0000, v8")
    A("v_mov_b32 v12, v8")
    allred16("v_max_f32", 12, ["row_ror:8", "row_ror:4", "row_ror:2", "row_ror:1"])
    A("v_sub_f32 v8, v8, v12"); A("v_mul_f32 v8, s59, v8"); A("v_exp_f32 v8, v8")
    A("v_mul_f32 v9, v9, v8")
    allred16("v_add_f32", 9, ["row_ror:8", "row_ror:4", "row_ror:2", "row_ror:1"])
    A("v_rcp_f32 v10, v9")
    A("v_fma_f32 v11, -v9, v10, 1.0"); A("v_fma_f32 v10, v11, v10, v10")
    A("v_mul_f32 v8, v8, v10")
    A(f"ds_write_b32 v2, v8 offset:{L_W}")
    A("v_mov_b32 v7, 1")
    A("s_mov_b64 exec, 1")
    A(f"ds_write_b32 v6, v7 offset:{F_X}")
    A("s_waitcnt lgkmcnt(0)")
    stamp(1)
    flush([(1, 14), (2, 15)], cond_sub0=False)
    A("s_endpgm")
    A(f"{lr}:")
    A(f"s_sleep {getopt('sslp', 8)}")
    bail(lp)
    A("L_pifail:")
    A("s_sub_u32 s15, s15, 1"); A("s_cbranch_scc1 L_end")
    A("s_sleep 8")
    A("s_sub_u32 s63, s63, 1")
    A("s_cmp_gt_i32 s63, 0"); A("s_cbranch_scc1 L_pi")
    A("s_or_b32 s14, s60, 0x80"); A("v_mov_b32 v8, s14")
    A("s_lshl_b32 s62, s4, 5")
    A("s_cmp_lg_u32 s63, 0"); A("s_cbranch_scc1 L_piread")
    A("s_add_u32 s14, s62, s5")
    A("s_mov_b32 exec_lo, 1")
    A("buffer_store_byte v8, v6, s[44:47], s14 offen sc1")
    A("s_mov_b32 exec_lo, -1")
    A("L_piread:")
    A("buffer_load_ubyte v3, v0, s[44:47], s62 offen sc1")
    A("s_waitcnt vmcnt(0)")
    A("v_cmp_eq_u32 vcc, 0, v3")
    A("s_cbranch_vccnz L_pi")
    A("v_cmp_ne_u32 vcc, v8, v3")
    A("s_cmp_lg_u64 vcc, 0"); A(f"s_cselect_b32 s54, {FAR}, 0")
    A("s_branch L_pidone")
    A("L_end:")
    A("s_endpgm")
    txt = A.finish()
    chain = [0] + [n for _, n in sorted(pads)]
    for a, b in zip(chain, chain[1:] + [None]):
        txt = txt.replace(f"@NEXT{a}@", f"L_pad{b}" if b else "L_end")
    return txt

HEADER = open("cdna_kernels/%s.s.ref" % NAME).read().split("; Override launch")[0]
def full(stamps=False, opt=()):
    body = gen(stamps, opt)
    return HEADER + f"""; @launch grid=(256,1,1) block=(768,1,1) lds={LDS_SIZE}
.amdgcn_target "amdgcn-amd-amdhsa--gfx950"
.text
.p2align 12
.fill 832, 4, 0xbf810000
.globl {NAME}_kernel
.p2align 8
.type {NAME}_kernel,@function
{NAME}_kernel:
{body}
.section .rodata,"a"
.p2align 6
.amdhsa_kernel {NAME}_kernel
  .amdhsa_next_free_vgpr 168
  .amdhsa_next_free_sgpr 100
  .amdhsa_accum_offset 168
  .amdhsa_group_segment_fixed_size 0
  .amdhsa_kernarg_size 96
  .amdhsa_user_sgpr_count 2
  .amdhsa_user_sgpr_kernarg_segment_ptr 1
  .amdhsa_system_sgpr_workgroup_id_x 1
.end_amdhsa_kernel
"""
if __name__ == "__main__":
    out = sys.argv[1] if len(sys.argv) > 1 else "cdna_kernels/%s.s" % NAME
    open(out, "w").write(full(stamps=(len(sys.argv) > 2 and sys.argv[2] == "stamps"), opt=sys.argv[3:]))
```

```python
import sys
from asmgen import Asm
NAME = "parallel_sum__sliding_block_cached__glu_gated_geglu__decode"

IDS = 0x1000; AFLG = 0x1800; ACC = 0x2000; QP = 0x10000; FPB = 0x30000; HB = 0x68000; ST = 0x70000; OP = 0x80000
FAR = 0x100000
WS_SIZE = 0x200000
F_Q, F_P, F_M, F_X, F_V, F_VI, F_KI, F_MODE, F_V24, F_TK = 0x00, 0x04, 0x08, 0x0c, 0x20, 0x24, 0x28, 0x2c, 0x30, 0x34
L_MAX, L_TAG, L_MODE = 0x10, 0x18, 0x1c
L_W = 0xc00
L_ZERO = 0x100
L_Q, L_P, L_Y = 0x400, 0x800, 0x1000
LDS_SIZE = 0x1800
CEXP = 0x3db8aa3b
SPIN = 0x20000

def gen(stamps=False, opt=()):
    A = Asm()
    uid = [0]
    pads = []
    def getopt(name, default):
        for o in opt:
            if o.startswith(name + "="): return int(o.split("=")[1])
        return default
    def lab(p):
        uid[0] += 1
        return f"L_{p}{uid[0]}"
    def pad(prio=5):
        n = len(pads) + 1
        pads.append((prio, n))
        A(f"L_pad{n}:")
        A(f"s_cbranch_execz @NEXT{n}@")
    def stamp(k):
        if stamps: A(f"s_memrealtime s[{64+2*k}:{65+2*k}]")
    def flush(slots, cond_sub0=True, persub=()):
        if not stamps: return
        A("s_waitcnt lgkmcnt(0)")
        A("s_mov_b64 exec, -1")
        A("v_mov_b32 v1, 0"); A("v_mov_b32 v2, 0"); A("v_mov_b32 v3, 0")
        A("s_lshl_b32 s14, s2, 9")
        A("s_add_u32 s62, s38, s14"); A("s_addc_u32 s63, s39, 0")
        A("s_add_u32 s62, s62, 0x20000000"); A("s_addc_u32 s63, s63, 0")
        n = 0
        for k, slot in persub:
            A("s_lshl_b32 s14, s8, 3"); A(f"s_add_u32 s14, s14, {slot*8}")
            A(f"v_writelane_b32 v1, s14, {n}"); A(f"v_writelane_b32 v2, s{64+2*k}, {n}"); A(f"v_writelane_b32 v3, s{65+2*k}, {n}")
            n += 1
        np_ = n
        for k, slot in slots:
            A(f"s_movk_i32 s14, {slot*8}")
            A(f"v_writelane_b32 v1, s14, {n}"); A(f"v_writelane_b32 v2, s{64+2*k}, {n}"); A(f"v_writelane_b32 v3, s{65+2*k}, {n}")
            n += 1
        A("s_mov_b32 exec_hi, 0")
        if cond_sub0:
            A("s_cmp_eq_u32 s8, 0"); A(f"s_cselect_b32 exec_lo, {(1<<n)-1}, {(1<<np_)-1}")
            if np_ == 0: A("s_cbranch_execz L_end")
        else:
            A(f"s_mov_b32 exec_lo, {(1<<n)-1}")
        A("global_store_dwordx2 v1, v[2:3], s[62:63]")
    def srd(s, lo, hi, size, off=None):
        if off is None:
            A(f"s_mov_b32 s{s}, s{lo}"); A(f"s_mov_b32 s{s+1}, s{hi}")
        else:
            A(f"s_add_u32 s{s}, s{lo}, {off}"); A(f"s_addc_u32 s{s+1}, s{hi}, 0")
        A(f"s_mov_b32 s{s+2}, {size}"); A(f"s_mov_b32 s{s+3}, 0x20000")
    def spin_lds(flag, n, vz, vt, sleep=1):
        l = lab("sp"); d = lab("sd")
        A(f"{l}:")
        A(f"ds_read_b32 v{vt}, v{vz} offset:{flag}")
        A("s_waitcnt lgkmcnt(0)")
        A(f"v_readfirstlane_b32 s14, v{vt}")
        A(f"s_cmp_ge_u32 s14, {n}")
        A(f"s_cbranch_scc1 {d}")
        if sleep: A(f"s_sleep {sleep}")
        A("s_sub_u32 s15, s15, 1")
        A(f"s_cbranch_scc0 {l}")
        A("s_endpgm")
        A(f"{d}:")
    def tagcheck(regs, vT, c0, c1, lretry):
        A(f"v_xor_b32 v{c0}, v{regs[0]}, v{vT}")
        A(f"v_xor_b32 v{c1}, v{regs[1]}, v{vT}")
        for k, r in enumerate(regs[2:]):
            c = c0 if k % 2 == 0 else c1
            A(f"v_bitop3_b32 v{c}, v{c}, v{r}, v{vT} bitop3:0xf6")
        A(f"v_bitop3_b32 v{c0}, v{c0}, v{c1}, s58 bitop3:0x54")
        A(f"v_cmp_ne_u32 vcc, 0, v{c0}")
        A(f"s_cbranch_vccnz {lretry}")
    def bail(l):
        A("s_sub_u32 s15, s15, 1")
        A(f"s_cbranch_scc0 {l}")
        A("s_endpgm")
    def tag(r, vT, src=None):
        A(f"v_and_or_b32 v{r}, v{r if src is None else src}, s58, v{vT}")
    def mktag(vT):
        A("s_add_u32 s12, s13, 1"); A("s_and_b32 s12, s12, 0xff")
        A(f"v_mov_b32 v{vT}, s12")
    def rnd(r):
        A(f"v_cvt_pk_bf16_f32 v{r}, v{r}, v{r}"); A(f"v_and_b32 v{r}, 0xffff0000, v{r}")
    def allred16(op, r, steps):
        for st in steps: A(f"{op}_dpp v{r}, v{r}, v{r} {st} row_mask:0xf bank_mask:0xf")
    def allred_swap(op, r, t, which):
        A(f"v_mov_b32 v{t}, v{r}")
        A(f"v_permlane{which}_swap_b32 v{t}, v{r}")
        A(f"{op} v{r}, v{t}, v{r}")
    def ldsinc(flag, vz, vone):
        A("s_mov_b64 exec, 1")
        A(f"ds_add_u32 v{vz}, v{vone} offset:{flag}")
        A("s_mov_b64 exec, -1")
    def common(epoch=True):
        srd(40, 38, 39, WS_SIZE, 0x3fc00000 if "wsend" in opt else None)
        if epoch: A("s_load_dword s13, s[40:41], 0")
        A(f"s_mov_b32 s15, {SPIN}")
        A("s_mov_b32 s56, 0x05040100"); A("s_mov_b32 s57, 0x07060302"); A("s_mov_b32 s58, 0xffffff00")
        A(f"s_mov_b32 s59, {CEXP}")
    def kvoff():
        A("s_lshr_b32 s6, s5, 4")
        A("s_lshl_b32 s60, s6, 3"); A("s_add_u32 s60, s60, s4"); A("s_lshl_b32 s60, s60, 7")
        A("s_and_b32 s14, s5, 15"); A("s_add_u32 s60, s60, s14"); A("s_add_u32 s60, s60, 112"); A("s_lshl_b32 s60, s60, 17")
        if "mul2" in opt:
            A("s_lshr_b32 s9, s5, 1"); A("s_lshl3_add_u32 s9, s9, s4"); A("s_mul_i32 s9, s9, 0x9E3779B1"); A("s_lshr_b32 s9, s9, 27")
        elif "gi2" in opt:
            A("s_lshl_b32 s9, s4, 2"); A("s_lshr_b32 s14, s5, 1"); A("s_xor_b32 s9, s9, s14"); A("s_and_b32 s14, s5, 16"); A("s_xor_b32 s9, s9, s14")
        else:
            A("s_lshl_b32 s9, s4, 2"); A("s_xor_b32 s9, s9, s5")
    def quad16(o, z0, z1, vT):
        tag(o, vT, z0); tag(o+1, vT, z1); tag(o+2, vT, z0); tag(o+3, vT, z1)
        A(f"v_permlane16_swap_b32 v{o}, v{o+2}"); A(f"v_permlane16_swap_b32 v{o+1}, v{o+3}")

    if "delay" in opt: A("s_memrealtime s[96:97]")
    stamp(0)
    A("s_load_dwordx16 s[16:31], s[0:1], 0")
    A("s_load_dwordx8 s[32:39], s[0:1], 64")
    A("v_lshrrev_b32 v1, 6, v0")
    A("s_cmp_ge_u32 s2, 256"); A("s_cbranch_scc1 L_end")
    A("v_readfirstlane_b32 s3, v1")
    A("v_and_b32 v0, 63, v0")
    A("s_and_b32 s4, s2, 7")
    A("s_lshr_b32 s5, s2, 3")
    A("s_and_b32 s8, s3, 3")
    A("s_cmp_ge_u32 s3, 2"); A("s_cbranch_scc1 L_KV")

    A("s_setprio 3")
    A("v_and_b32 v3, 7, v0"); A("v_lshlrev_b32 v3, 4, v3")
    A("s_cmp_eq_u32 s3, 1"); A("s_cbranch_scc1 L_A1pre")
    A("s_lshr_b32 s61, s5, 3")
    A("s_mul_i32 s14, s61, 112")
    A("v_lshrrev_b32 v2, 3, v0"); A("v_mul_u32_u24 v2, 14, v2"); A("v_add_u32 v2, s14, v2"); A("v_lshl_add_u32 v2, v2, 13, v3")
    A("s_and_b32 s62, s5, 7"); A("s_lshl_b32 s60, s4, 3"); A("s_add_u32 s60, s62, s60")
    A("s_movk_i32 s62, 8192")
    A("v_and_b32 v4, 1, v0"); A("v_lshrrev_b32 v5, 4, v0"); A("v_lshl_add_u32 v4, v5, 1, v4")
    A("s_branch L_S1")
    A("L_A1z:")
    A("s_cmp_lg_u32 s5, 0"); A("s_cbranch_scc1 L_end")
    A("s_barrier")
    A("s_branch L_ZERO")
    A("L_A1pre:")
    A("s_cmp_eq_u32 s4, 7"); A("s_cbranch_scc1 L_A1z")
    A("s_lshr_b32 s61, s5, 2")
    A("s_mul_i32 s14, s61, 56")
    A("s_movk_i32 s62, 3584")
    A("v_lshrrev_b32 v4, 4, v0")
    A("v_mul_u32_u24 v2, 14, v4"); A("v_add_u32 v2, s14, v2"); A("v_mad_u32_u24 v2, v2, s62, v3")
    A("s_and_b32 s60, s5, 3"); A("s_xor_b32 s60, s60, 2"); A("s_lshl2_add_u32 s60, s4, s60")
    A("L_S1:")
    A("s_lshl_b32 s63, s60, 7"); A("v_add_u32 v2, s63, v2"); A("v_mov_b32 v3, 0")
    A("s_mov_b32 s63, 0")
    A("v_mul_u32_u24 v4, 28, v4"); A("s_lshl_b32 s14, s14, 1"); A("v_add_u32 v4, s14, v4")
    A("v_bfe_u32 v5, v0, 1, 1"); A("v_mul_u32_u24 v5, 896, v5"); A("v_add_u32 v4, v4, v5")
    A("v_lshrrev_b32 v6, 2, v0"); A("v_and_b32 v7, 1, v0"); A("v_lshl_add_u32 v6, v6, 1, v7")
    A("v_lshl_add_u32 v5, v6, 5, v5")
    A("v_cmp_gt_u32 vcc, 56, v0"); A("v_mov_b32 v7, 0x10000"); A("v_cndmask_b32 v5, v7, v5, vcc")
    A("s_movk_i32 s46, 1792"); A("s_mov_b32 s47, 0x20000")
    A("s_cmp_eq_u32 s3, 1")
    A("s_waitcnt lgkmcnt(0)")
    A("s_mov_b64 s[44:45], s[16:17]")
    XL = getopt("xat", 0)
    def xloads():
        A("buffer_load_dwordx4 v[8:11], v5, s[44:47], 0 offen")
        A("buffer_load_dwordx4 v[12:15], v5, s[44:47], 0 offen offset:16")
        A("buffer_load_dwordx4 v[16:19], v4, s[44:47], 0 offen")
        A("buffer_load_dwordx3 v[20:22], v4, s[44:47], 0 offen offset:16")
    A("s_cselect_b64 s[52:53], s[28:29], s[22:23]")
    A("s_cselect_b64 s[54:55], s[30:31], s[22:23]")
    A("v_lshl_add_u64 v[6:7], v[2:3], 0, s[54:55]")
    A("v_lshl_add_u64 v[2:3], v[2:3], 0, s[52:53]")
    if XL == 0: xloads()
    A("v_mov_b32_dpp v2, v6 quad_perm:[0,1,2,3] row_mask:0xf bank_mask:0xc")
    A("v_mov_b32_dpp v3, v7 quad_perm:[0,1,2,3] row_mask:0xf bank_mask:0xc")
    WD = 32
    for j in range(14):
        if "nos1" in opt and j > 0: continue
        A(f"global_load_dwordx4 v[{WD+4*j}:{WD+4*j+3}], v[2:3], off nt")
        if j < 13: A("v_lshl_add_u64 v[2:3], v[2:3], 0, s[62:63]")
        if j + 1 == XL: xloads()
    stamp(4)
    A("s_barrier")
    A("s_branch L_S2")

    A("L_KV:")
    A("s_cmp_lt_u32 s3, 4"); A("s_cbranch_scc1 L_A23")
    kvoff()
    A("s_cmp_lt_u32 s3, 8"); A("s_cbranch_scc1 L_K")
    A("s_barrier")
    A("s_branch L_V")
    A("L_A23:")
    A("s_getpc_b64 s[60:61]")
    A("L_pc:")
    A(f"s_sub_u32 s60, s60, L_pc-{NAME}_kernel"); A("s_subb_u32 s61, s61, 0")
    if "pf4" in opt:
        A("s_and_b32 s14, s3, 1"); A("s_lshl1_add_u32 s14, s5, s14"); A("s_lshl_b32 s14, s14, 8")
        A("v_lshlrev_b32 v1, 7, v0"); A("v_add_u32 v1, s14, v1")
        A(f"v_min_u32 v1, L_end-{NAME}_kernel, v1")
        A("s_mov_b64 exec, 3")
        A("global_load_dword v8, v1, s[60:61]")
        A("s_mov_b64 exec, -1")
    else:
        A("s_and_b32 s14, s3, 1"); A("s_lshl_b32 s14, s14, 13")
        A("v_lshlrev_b32 v1, 7, v0"); A("v_add_u32 v1, s14, v1")
        A(f"v_min_u32 v1, L_end-{NAME}_kernel, v1")
        A("global_load_dword v8, v1, s[60:61]")
    A("s_cmp_eq_u32 s3, 2"); A("s_cbranch_scc1 L_A2")
    A("v_lshlrev_b32 v1, 4, v0")
    for r in range(2, 6): A(f"v_mov_b32 v{r}, 0")
    A("ds_write_b128 v1, v[2:5]")
    A("v_mov_b32 v6, 0xff800000"); A("v_mov_b32 v7, v6")
    A(f"ds_write_b64 v2, v[6:7] offset:{L_MAX}")
    A("s_waitcnt lgkmcnt(0)")
    A("s_barrier")
    A("s_branch L_A3")
    A("L_A2:")
    A("s_barrier")
    A("s_mov_b64 exec, 0")
    A("s_branch @NEXT0@")

    A("L_K:")
    A("s_setprio 2")
    K15 = "k15" in opt
    if K15:
        A("v_and_b32 v2, 1, v0"); A("v_lshlrev_b32 v1, 9, v2"); A("v_and_b32 v2, 2, v0"); A("v_lshl_add_u32 v1, v2, 15, v1")
    else:
        A("v_and_b32 v2, 3, v0"); A("v_lshlrev_b32 v1, 9, v2")
    A("v_lshrrev_b32 v2, 2, v0"); A("v_lshl_add_u32 v1, v2, 4, v1")
    A(f"s_lshl_b32 s14, s8, {14 if K15 else 15}"); A("v_add_u32 v1, s14, v1")
    A("s_lshr_b32 s61, s9, 1"); A("s_lshl_b32 s14, s8, 2"); A("s_xor_b32 s61, s61, s14")
    A(f"s_lshl_b32 s62, s61, {10 if K15 else 11}")
    A("s_mov_b32 s46, 0x20000"); A("s_mov_b32 s47, 0x20000")
    A("s_waitcnt lgkmcnt(0)")
    A("s_add_u32 s44, s18, s60"); A("s_addc_u32 s45, s19, 0")
    A("s_barrier")
    KD = 32
    QAT = getopt("qat", 12)
    PF = "sc1" if "pollnont" in opt else "sc1 nt"
    def qpoll(va=3):
        A(f"buffer_load_dwordx4 v[16:19], v{va}, s[40:43], s52 offen {PF}")
        A(f"buffer_load_dwordx4 v[20:23], v{va}, s[40:43], s53 offen {PF}")
    for t in range(17):
        if t == 6:
            common()
            A("v_and_b32 v3, 31, v0"); A("v_lshlrev_b32 v3, 4, v3"); A("v_lshrrev_b32 v2, 5, v0"); A("v_lshl_add_u32 v3, v2, 11, v3")
            A("s_lshl_b32 s52, s4, 14"); A("s_lshl_b32 s14, s6, 13"); A("s_add_u32 s52, s52, s14")
            A("s_lshl_b32 s14, s8, 9"); A("s_add_u32 s52, s52, s14"); A(f"s_add_u32 s52, s52, {QP}")
            A("s_add_u32 s53, s52, 4096")
            A("v_mov_b32 v5, 0"); A("v_mov_b32 v167, 1")
        if t == 10: ldsinc(F_KI, 5, 167)
        if t == QAT and "noq" not in opt:
            qpoll()
        if t == 16: break
        if t == 0: s = "s62"
        else:
            A(f"s_xor_b32 s14, s62, {t*(1024 if K15 else 2048)}"); s = "s14"
        r = KD + 8*t
        A(f"buffer_load_dwordx4 v[{r}:{r+3}], v1, s[44:47], {s} offen nt")
        A(f"buffer_load_dwordx4 v[{r+4}:{r+7}], v1, s[44:47], {s} offen offset:256 nt")
    stamp(1)
    A("v_and_b32 v2, 1, v0"); A("v_lshlrev_b32 v2, 9, v2")
    A("v_lshrrev_b32 v6, 2, v0"); A("v_lshl_add_u32 v2, v6, 4, v2")
    A(f"s_lshl_b32 s14, s61, {1 if K15 else 2}"); A(f"s_lshl_b32 s62, s8, {5 if K15 else 6}"); A("s_or_b32 s14, s14, s62")
    A("s_lshr_b32 s62, s9, 3"); A("s_lshl_b32 s62, s62, 6"); A("s_xor_b32 s14, s14, s62")
    A("s_and_b32 s62, s9, 7"); A("s_xor_b32 s14, s14, s62")
    if K15:
        A("v_and_b32 v4, 1, v0"); A("v_lshl_add_u32 v4, v6, 1, v4"); A("v_and_b32 v9, 2, v0"); A("v_lshl_add_u32 v4, v9, 6, v4")
        A("v_xor_b32 v4, s14, v4")
    else: A("v_xor_b32 v4, s14, v0")
    A("v_lshlrev_b32 v4, 1, v4")
    A("v_and_b32 v1, 7, v0"); A("v_lshlrev_b32 v1, 4, v1"); A("v_and_b32 v9, 8, v0"); A("v_or_b32 v1, v1, v9")
    A("v_bfe_u32 v9, v0, 4, 1"); A("v_lshl_add_u32 v1, v9, 7, v1")
    A("v_lshrrev_b32 v9, 5, v0"); A("v_lshl_add_u32 v1, v9, 2, v1")
    A("s_lshl_b32 s14, s8, 8"); A("v_add_u32 v1, s14, v1")
    A("s_waitcnt lgkmcnt(0)")
    mktag(7)
    pad()
    A(f"s_waitcnt vmcnt({2*(16-QAT)})")
    lq = lab("cq"); lrq = lab("rq")
    A(f"{lq}:")
    if "noq" not in opt and "noqst" not in opt: tagcheck(list(range(16, 24)), 7, 8, 9, lrq)
    stamp(7)
    for k in range(4): A(f"v_add_f32 v{16+k}, v{16+k}, v{20+k}")
    A("v_permlane32_swap_b32 v16, v18"); A("v_permlane32_swap_b32 v17, v19")
    A("v_add_f32 v16, v16, v18"); A("v_add_f32 v17, v17, v19")
    A("v_cvt_pk_bf16_f32 v16, v16, v17")
    A(f"ds_write_b32 v1, v16 offset:{L_Q}")
    ldsinc(F_Q, 5, 167)
    spin_lds(F_Q, 4, 5, 6)
    A(f"ds_read_b128 v[8:11], v2 offset:{L_Q}")
    A(f"ds_read_b128 v[12:15], v2 offset:{L_Q+256}")
    A("s_waitcnt lgkmcnt(0)")
    def acc(t):
        B = t // 4
        return (16 if B == 0 else KD + 32*(B-1)) + 4*(t % 4)
    for B in range(4):
        if 4*B+4 > QAT: A(f"s_waitcnt vmcnt({32-8*(B+1)})")
        for step in range(4):
            for tt in range(4):
                t = 4*B + tt
                a = acc(t); kd = KD + 8*t + 2*step; q = 8 + 2*step
                c = "0" if step == 0 else f"v[{a}:{a+3}]"
                A(f"v_mfma_f32_4x4x4_16b_bf16 v[{a}:{a+3}], v[{q}:{q+1}], v[{kd}:{kd+1}], {c}")
    pad()
    val = {(t, h): acc(t) + h for t in range(16) for h in range(2)}
    for t in range(8):
        for h in range(2): A(f"v_permlane32_swap_b32 v{val[t,h]}, v{val[t+8,h]}")
    for t in range(8):
        for h in range(2): A(f"v_add_f32 v{val[t,h]}, v{val[t,h]}, v{val[t+8,h]}")
    for t in range(4):
        for h in range(2): A(f"v_permlane16_swap_b32 v{val[t,h]}, v{val[t+4,h]}")
    for t in range(4):
        for h in range(2): A(f"v_add_f32 v{val[t,h]}, v{val[t,h]}, v{val[t+4,h]}")
    for t in range(2):
        for h in range(2):
            o = 160 + 2*t + h
            A(f"v_add_f32_dpp v{o}, v{val[t,h]}, v{val[t,h]} row_ror:8 row_mask:0xf bank_mask:0x3")
    for t in range(2):
        for h in range(2):
            o = 160 + 2*t + h
            A(f"v_add_f32_dpp v{o}, v{val[t+2,h]}, v{val[t+2,h]} row_ror:8 row_mask:0xf bank_mask:0xc")
    for h in range(2): A(f"v_add_f32_dpp v{164+h}, v{160+h}, v{160+h} row_shl:4 row_mask:0xf bank_mask:0x5")
    for h in range(2): A(f"v_add_f32_dpp v{164+h}, v{162+h}, v{162+h} row_shr:4 row_mask:0xf bank_mask:0xa")
    A("v_cvt_pk_bf16_f32 v166, v164, v165")
    A("v_lshlrev_b32 v164, 16, v166"); A("v_and_b32 v165, 0xffff0000, v166")
    stamp(2)
    A("v_mov_b32 v16, v164"); A("v_mov_b32 v17, v165")
    A("v_permlane32_swap_b32 v16, v17"); A("v_max_f32 v16, v16, v17")
    allred_swap("v_max_f32", 16, 17, 16)
    allred16("v_max_f32", 16, ["row_ror:8", "row_ror:4", "row_ror:2", "row_ror:1"])
    A("v_lshrrev_b32 v18, 5, v0"); A("v_lshlrev_b32 v18, 2, v18")
    A("s_mov_b32 exec_lo, 1"); A("s_mov_b32 exec_hi, 1")
    A(f"ds_max_f32 v18, v16 offset:{L_MAX}")
    A("s_mov_b32 exec_hi, 0")
    A(f"ds_add_u32 v5, v167 offset:{F_M}")
    A("s_mov_b64 exec, -1")
    spin_lds(F_M, 4, 5, 6)
    A(f"ds_read_b64 v[20:21], v5 offset:{L_MAX}")
    A("s_waitcnt lgkmcnt(0)")
    A("v_sub_f32 v22, v164, v20"); A("v_sub_f32 v23, v165, v21")
    A("v_mul_f32 v22, s59, v22"); A("v_mul_f32 v23, s59, v23")
    A("v_exp_f32 v22, v22"); A("v_exp_f32 v23, v23")
    A("v_cvt_pk_bf16_f32 v24, v22, v23")
    A(f"ds_write_b16 v4, v24 offset:{L_P}")
    A(f"ds_write_b16_d16_hi v4, v24 offset:{L_P+512}")
    ldsinc(F_P, 5, 167)
    stamp(3)
    A("s_cmp_ge_u32 s5, 28"); A("s_cbranch_scc1 L_Kx")
    pad()
    A("v_lshrrev_b32 v2, 3, v0"); A("v_and_b32 v3, 7, v0"); A("v_lshlrev_b32 v3, 4, v3")
    A("v_mul_u32_u24 v13, 7168, v2"); A("v_add_u32 v13, v13, v3")
    for r in range(48, 56): A(f"v_mov_b32 v{r}, 0")
    BO = 64; PO = 96; AV = 112
    for d in range(8): A(f"v_mov_b32 v{BO+4*d+3}, 0")
    for r in range(AV, AV+16): A(f"v_mov_b32 v{r}, 0")
    A("v_and_b32 v2, 1, v0"); A("v_lshrrev_b32 v3, 4, v0"); A("v_lshl_add_u32 v2, v3, 1, v2")
    A("v_bfe_u32 v3, v0, 1, 1")
    A("v_bfe_u32 v6, v0, 2, 2")
    LIN = "olin" in opt
    if LIN: A("v_lshlrev_b32 v1, 4, v0")
    else:
        A("v_lshlrev_b32 v1, 4, v2"); A("v_lshl_add_u32 v1, v3, 13, v1"); A("v_lshl_add_u32 v1, v6, 9, v1")
    A("v_lshlrev_b32 v12, 4, v6"); A("v_lshl_add_u32 v12, v3, 6, v12")
    A("v_lshlrev_b32 v4, 3, v2"); A("v_lshl_add_u32 v4, v3, 6, v4")
    A("v_mov_b32 v28, v7"); A("v_mov_b32 v29, v7")
    A("v_and_b32 v2, 15, v0"); A("v_lshlrev_b32 v2, 5, v2"); A("v_lshrrev_b32 v3, 4, v0"); A("v_lshl_add_u32 v2, v3, 3, v2")
    A("s_lshl_b32 s14, s8, 9"); A("v_add_u32 v2, s14, v2")
    A("s_mul_i32 s10, s5, 37"); A("s_lshr_b32 s10, s10, 8")
    A("s_mul_i32 s11, s10, 7"); A("s_sub_u32 s11, s5, s11")
    A("s_lshl_b32 s14, s10, 6"); A("s_and_b32 s14, s14, 128"); A("v_add_u32 v12, s14, v12")
    A("s_lshl2_add_u32 s10, s4, s10")
    A("s_lshl_b32 s62, s11, 7")
    A("v_lshrrev_b32 v3, 2, v0"); A("v_sub_u32 v3, v0, v3")
    A("v_lshlrev_b32 v15, 2, v3"); A("s_lshl_b32 s14, s8, 7"); A("v_add_u32 v15, s14, v15")
    A("s_lshr_b32 s14, s8, 1"); A("s_mul_i32 s14, s14, 896"); A("s_add_u32 s14, s14, s62")
    A("s_and_b32 s60, s8, 1"); A("s_lshl_b32 s60, s60, 6"); A("s_add_u32 s14, s14, s60")
    A("v_lshl_add_u32 v14, v3, 1, s14")
    A("v_lshlrev_b32 v30, 2, v0")
    A("v_mov_b32 v31, 0"); A("v_mov_b32 v6, 1.0")
    A("s_mov_b32 exec_lo, 0x88888888"); A("s_mov_b32 exec_hi, 0x88888888"); A("v_mov_b32 v31, 1.0"); A("s_mov_b64 exec, -1")
    srd(44, 16, 17, 1792)
    A("buffer_load_ushort v56, v14, s[44:47], 0 offen")
    A(f"s_movk_i32 s14, {AFLG}")
    A("buffer_load_dword v57, v5, s[40:43], s14 offen sc1")
    A("s_lshl2_add_u32 s60, s11, s8"); A("s_lshl_b32 s60, s60, 8"); A(f"s_add_u32 s60, s60, {ACC}")
    srd(44, 24, 25, 4096*896); srd(48, 32, 33, 1792*896)
    A("s_lshr_b32 s14, s8, 1"); A("s_lshl1_add_u32 s52, s10, s14")
    A("s_and_b32 s14, s8, 1"); A("s_lshl4_add_u32 s52, s52, s14"); A("s_mul_i32 s52, s52, 3584"); A("s_add_u32 s52, s52, s62")
    A("s_lshl_b32 s53, s10, 5"); A("s_add_u32 s53, s53, s8"); A("s_mul_i32 s53, s53, 1792"); A("s_add_u32 s53, s53, s62")
    A("s_lshl_b32 s61, s10, 14"); A(f"s_lshl_b32 s14, s8, {12 if LIN else 7}"); A("s_add_u32 s61, s61, s14"); A(f"s_add_u32 s61, s61, {OP}")
    A("s_add_u32 s63, s61, 4096")
    A("s_lshl2_add_u32 s55, s10, s8"); A("s_lshl_b32 s55, s55, 7"); A(f"s_add_u32 s55, s55, {HB}")
    spin_lds(F_MODE, 1, 5, 6, sleep=2)
    A(f"ds_read_b32 v6, v5 offset:{L_MODE}")
    A("s_add_u32 s54, s13, 1")
    A("s_waitcnt vmcnt(0) lgkmcnt(0)")
    A("v_add_u32 v1, v1, v6"); A("v_add_u32 v4, v4, v6")
    A("v_lshlrev_b32 v56, 16, v56")
    A("L_cz:")
    A("v_cmp_ne_u32 vcc, s54, v57")
    A("s_cbranch_vccnz L_rz")
    spin_lds(F_VI, 4, 5, 6, sleep=1)
    lh = lab("ph"); lrh = lab("rh")
    AF = "sc1" if "anont" in opt else PF
    def pollh():
        A(f"buffer_load_dwordx2 v[28:29], v4, s[40:43], s55 offen {PF}")
    def polla(u):
        if LIN: A(f"buffer_load_dwordx4 v[{PO+4*u}:{PO+4*u+3}], v1, s[40:43], s61 offen offset:{1024*u} {AF}")
        else: A(f"buffer_load_dwordx4 v[{PO+4*u}:{PO+4*u+3}], v1, s[40:43], s{61 if u < 2 else 63} offen offset:{2048*(u%2)} {AF}")
    A("s_cmp_eq_u32 s4, 7"); A("s_cbranch_scc1 L_noh")
    pollh()
    for j in range(2): A(f"buffer_load_dwordx4 v[{48+4*j}:{51+4*j}], v13, s[48:51], s53 offen offset:{896*j} nt")
    A("L_noh:")
    for j in range(4): A(f"buffer_load_dwordx4 v[{32+4*j}:{35+4*j}], v13, s[44:47], s52 offen offset:{896*j} nt")
    srd(44, 34, 35, 1792)
    A("s_mov_b32 s52, 0x77777777"); A("s_mov_b32 s53, 0x377")
    stamp(8)
    pad()
    A("s_waitcnt vmcnt(6)")
    A(f"{lh}:")
    tagcheck([28, 29], 7, 8, 9, lrh)
    A("v_perm_b32 v28, v29, v28, s57")
    for rg in range(4): A(f"v_mov_b32_dpp v{AV+4*rg+2}, v28 quad_perm:[0,1,2,3] row_mask:0xf bank_mask:{1<<rg}")
    spin_lds(F_X, 1, 5, 6)
    A(f"ds_read_b128 v[24:27], v12 offset:{L_W}")
    A(f"s_waitcnt vmcnt({getopt('wog', 1)})")
    spin_lds(F_V, 4, 5, 6, sleep=getopt("vsl", 0))
    A("s_setprio 3")
    stamp(11)
    for u in range(4): polla(u)
    A("s_waitcnt vmcnt(4)")
    stamp(9)
    for c in range(4):
        for e in range(2):
            d = 2*c + e
            for q, (lo, hi) in enumerate([(32, 36), (40, 44), (48, 52)]):
                A(f"v_perm_b32 v{BO+4*d+q}, v{hi+c}, v{lo+c}, s{56+e}")
    pad()
    if stamps:
        A("s_waitcnt vmcnt(0)"); stamp(10)
    SO = 128
    A("L_ck:")
    A("s_waitcnt vmcnt(0)")
    A(f"v_xor_b32 v8, v{PO}, v7")
    for u in range(1, 4): A(f"v_bitop3_b32 v8, v8, v{PO+4*u}, v7 bitop3:0xf6")
    A("v_cmp_ne_u32_sdwa vcc, v8, v5 src0_sel:BYTE_0 src1_sel:DWORD")
    for k in range(2): A(f"v_pk_mul_f32 v[{SO+2*k}:{SO+2*k+1}], v[{PO+2*k}:{PO+2*k+1}], v[24:25] op_sel_hi:[1,0]")
    A("s_cbranch_vccnz L_ra")
    stamp(4)
    for u in range(1, 4):
        w = 24 + (u & 2)
        sel = "op_sel:[0,1,0] op_sel_hi:[1,1,1]" if u & 1 else "op_sel_hi:[1,0,1]"
        for k in range(2): A(f"v_pk_fma_f32 v[{SO+2*k}:{SO+2*k+1}], v[{PO+4*u+2*k}:{PO+4*u+2*k+1}], v[{w}:{w+1}], v[{SO+2*k}:{SO+2*k+1}] {sel}")
    rest = [PO + 4*u + k for u in range(4) for k in range(1, 4)]
    def chk(n):
        for _ in range(n):
            r = rest.pop(0)
            A(f"v_bitop3_b32 v10, v10, v{r}, v7 bitop3:0xf6" if len(rest) < 11 else f"v_xor_b32 v10, v{r}, v7")
    chk(1)
    for st in ("row_ror:4", "row_ror:8"):
        for k in range(4): A(f"v_add_f32_dpp v{SO+k}, v{SO+k}, v{SO+k} {st} row_mask:0xf bank_mask:0xf")
    A(f"v_cvt_pk_bf16_f32 v8, v{SO}, v{SO+1}"); A(f"v_cvt_pk_bf16_f32 v9, v{SO+2}, v{SO+3}")
    chk(1)
    def amov(rg):
        for k in range(2): A(f"v_mov_b32_dpp v{AV+4*rg+k}, v{8+k} quad_perm:[0,1,2,3] row_mask:0xf bank_mask:{1<<rg}")
    amov(0); amov(1)
    for rg in range(4):
        for e in range(2):
            d = 2*rg + e; a = 16 + 4*e
            c = "0" if rg == 0 else f"v[{a}:{a+3}]"
            A(f"v_mfma_f32_16x16x32_bf16 v[{a}:{a+3}], v[{AV+4*rg}:{AV+4*rg+3}], v[{BO+4*d}:{BO+4*d+3}], {c}")
            if rg >= 2 or e == 0: chk(1)
        if rg < 2: amov(rg + 2)
    chk(len(rest))
    A("v_cmp_ne_u32_sdwa vcc, v10, v5 src0_sel:BYTE_0 src1_sel:DWORD")
    A("s_cbranch_vccnz L_ra")
    for e in range(2):
        A(f"v_add_f32_dpp v{10+e}, v{16+4*e+1}, v{16+4*e} row_ror:8 row_mask:0xf bank_mask:0x3")
    for e in range(2):
        A(f"v_add_f32_dpp v{10+e}, v{16+4*e+2}, v{16+4*e+3} row_ror:8 row_mask:0xf bank_mask:0xc")
    A(f"ds_write_b64 v2, v[10:11] offset:{L_Y}")
    A("s_waitcnt lgkmcnt(0)")
    A("s_barrier")
    A(f"ds_read2st64_b32 v[16:17], v15 offset0:{L_Y//256} offset1:{L_Y//256+2}")
    A(f"ds_read2st64_b32 v[18:19], v15 offset0:{L_Y//256+4} offset1:{L_Y//256+6}")
    A("s_mov_b32 exec_hi, 0xfff")
    A("s_waitcnt lgkmcnt(0)")
    A("v_pk_add_f32 v[16:17], v[16:17], v[18:19]")
    A("v_add_f32 v16, v16, v17")
    A("v_cndmask_b32 v17, v31, v16, s[52:53]")
    stamp(5)
    A("buffer_atomic_add_f32 v17, v30, s[40:43], s60 offen sc0 sc1")
    A("v_add_f32 v16, v16, v56")
    A("v_mov_b32 v19, 0x41f80000")
    A("s_waitcnt vmcnt(0)")
    A("v_mov_b32_dpp v18, v17 quad_perm:[3,3,3,3] row_mask:0xf bank_mask:0xf")
    A("v_add_f32 v16, v16, v17")
    A("v_cmp_eq_f32 vcc, v18, v19")
    A("v_cvt_pk_bf16_f32 v16, v16, v16")
    if "delay" in opt:
        A("L_dly:"); A("s_memrealtime s[98:99]"); A("s_waitcnt lgkmcnt(0)"); A("s_sub_u32 s98, s98, s96"); A("s_cmp_lt_u32 s98, 4000"); A("s_cbranch_scc1 L_dly")
    A("s_and_b64 exec, vcc, s[52:53]")
    A("s_cbranch_execz L_Ky")
    A("buffer_store_short v16, v14, s[44:47], 0 offen")
    A(f"s_cmp_lg_u32 s60, {ACC}"); A("s_cbranch_scc1 L_Ky")
    A("s_and_b64 exec, exec, 1")
    A("s_cbranch_execz L_Ky")
    A("v_mov_b32 v6, s54")
    A("buffer_store_dword v6, v5, s[40:43], 0 offen")
    A("L_Ky:")
    stamp(6)
    flush([(1, 3), (2, 4), (3, 5), (4, 9), (5, 10), (6, 12), (7, 2), (8, 23), (9, 24), (10, 25), (11, 26)], persub=[(1, 44), (2, 48), (4, 52), (6, 56)])
    A("L_Kx:")
    A("s_endpgm")
    A("L_ra:")
    A("s_mov_b64 exec, vcc")
    for u in range(4): polla(u)
    A("s_mov_b64 exec, -1")
    bail("L_ck")
    A(f"{lrh}:")
    pollh()
    A("s_waitcnt vmcnt(0)")
    bail(lh)
    A(f"{lrq}:")
    A(f"ds_read_b32 v6, v5 offset:{L_MODE}")
    A("s_waitcnt lgkmcnt(0)")
    A("v_add_u32 v6, v6, v3")
    qpoll(6)
    A("s_waitcnt vmcnt(0)")
    bail(lq)
    A("L_rz:")
    A("s_sleep 8")
    A(f"s_movk_i32 s14, {AFLG}")
    A("buffer_load_dword v57, v5, s[40:43], s14 offen sc1")
    A("s_waitcnt vmcnt(0)")
    bail("L_cz")
    A("L_ZERO:")
    A("s_waitcnt lgkmcnt(0)")
    common()
    A("v_lshlrev_b32 v1, 4, v0")
    for r in range(4, 8): A(f"v_mov_b32 v{r}, 0")
    for k in range(7):
        A(f"s_movk_i32 s14, {ACC + 1024*k}")
        A("buffer_store_dwordx4 v[4:7], v1, s[40:43], s14 offen sc1")
    A("s_waitcnt vmcnt(0) lgkmcnt(0)")
    A("s_add_u32 s54, s13, 1"); A("v_mov_b32 v2, s54")
    A(f"s_movk_i32 s14, {AFLG}")
    A("s_mov_b64 exec, 1")
    A("buffer_store_dword v2, v4, s[40:43], s14 offen sc1")
    A("s_endpgm")

    A("L_V:")
    A("s_setprio 1")
    A("v_lshrrev_b32 v2, 3, v0"); A("v_lshlrev_b32 v1, 12, v2")
    A("v_and_b32 v2, 7, v0"); A("v_lshl_add_u32 v1, v2, 4, v1")
    A("s_lshl_b32 s14, s8, 7"); A("v_add_u32 v1, s14, v1")
    A("s_and_b32 s62, s9, 7"); A("s_lshl_b32 s62, s62, 9"); A("s_lshr_b32 s14, s9, 3"); A("s_lshl_b32 s14, s14, 15"); A("s_or_b32 s62, s62, s14")
    A("s_waitcnt lgkmcnt(0)")
    srd(44, 20, 21, 131072, "s60")
    common()
    A("v_and_b32 v6, 1, v0"); A("v_lshrrev_b32 v7, 4, v0"); A("v_lshl_add_u32 v6, v7, 1, v6"); A("v_lshlrev_b32 v6, 4, v6")
    A("v_bfe_u32 v7, v0, 1, 1"); A("v_lshl_add_u32 v6, v7, 9, v6"); A(f"v_add_u32 v6, {L_P}, v6")
    for rg in range(4): A(f"v_mov_b32 v{2+rg}, {L_ZERO}")
    for rg in range(4): A(f"v_mov_b32_dpp v{2+rg}, v6 quad_perm:[0,1,2,3] row_mask:0xf bank_mask:{1<<rg}")
    A("v_mov_b32 v6, 0"); A("v_mov_b32 v16, 1")
    def oaddr(va, vt):
        A(f"v_bfe_u32 v{vt}, v0, 3, 1")
        if LIN:
            A(f"v_and_b32 v{va}, 1, v0"); A(f"v_lshlrev_b32 v{va}, 4, v{va}"); A(f"v_lshl_add_u32 v{va}, v{vt}, 15, v{va}")
            A(f"v_bfe_u32 v{vt}, v0, 1, 2"); A(f"v_lshl_add_u32 v{va}, v{vt}, 8, v{va}")
            A(f"v_lshrrev_b32 v{vt}, 5, v0"); A(f"v_lshl_add_u32 v{va}, v{vt}, 12, v{va}")
        else:
            A(f"v_and_b32 v{va}, 7, v0"); A(f"v_lshlrev_b32 v{va}, 4, v{va}"); A(f"v_lshl_add_u32 v{va}, v{vt}, 15, v{va}")
            A(f"v_lshrrev_b32 v{vt}, 5, v0"); A(f"v_lshl_add_u32 v{va}, v{vt}, 7, v{va}")
    if LIN:
        A("s_lshl_b32 s61, s4, 16"); A("s_lshl_b32 s14, s8, 13"); A("s_add_u32 s61, s61, s14")
        A("s_bfe_u32 s14, s5, 0x20002"); A("s_lshl_b32 s14, s14, 10"); A("s_add_u32 s61, s61, s14")
        A("s_and_b32 s14, s5, 3"); A("s_lshl_b32 s14, s14, 6"); A("s_add_u32 s61, s61, s14")
        A("s_lshl_b32 s14, s6, 5"); A("s_add_u32 s61, s61, s14"); A(f"s_add_u32 s61, s61, {OP}")
    else:
        A("s_lshl_b32 s61, s4, 16"); A("s_lshr_b32 s14, s8, 1"); A("s_lshl_b32 s14, s14, 14"); A("s_add_u32 s61, s61, s14")
        A("s_lshl_b32 s14, s5, 9"); A("s_add_u32 s61, s61, s14")
        A("s_and_b32 s14, s8, 1"); A("s_lshl_b32 s14, s14, 8"); A("s_add_u32 s61, s61, s14"); A(f"s_add_u32 s61, s61, {OP}")
    A(f"s_add_u32 s63, s61, {FAR}")
    A("s_mov_b32 s52, 0xffff"); A("s_mov_b32 s53, 0xffff")
    if "prewarm" in opt:
        oaddr(17, 18)
        A("s_waitcnt lgkmcnt(0)")
        for r in range(20, 24): A(f"v_mov_b32 v{r}, s13")
        A("s_mov_b64 exec, s[52:53]")
        A("buffer_store_dwordx4 v[20:23], v17, s[40:43], s61 offen")
        A("s_mov_b64 exec, -1")
    VD = 40
    for t in range(32):
        A(f"s_xor_b32 s14, s62, {(t>>3)*32768 + (t&7)*512}")
        r = VD + 4*t
        A(f"buffer_load_dwordx4 v[{r}:{r+3}], v1, s[44:47], s14 offen nt")
        if t == getopt("tkat", 22): ldsinc(F_V24, 6, 16)
    ldsinc(F_VI, 6, 16)
    stamp(1)
    pad()
    spin_lds(F_P, 4, 6, 7)
    A("s_setprio 3")
    def rdA(g4, base):
        for rg in range(4): A(f"ds_read_b128 v[{base+4*rg}:{base+4*rg+3}], v{2+rg} offset:{128*g4}")
    Abase = {0: 24, 1: VD, 2: VD+16, 3: 24}
    rdA(0, 24)
    for g4 in range(3):
        ab = Abase[g4]; D = VD + 32*g4
        if g4 == 2: pad()
        A(f"s_waitcnt vmcnt({24-8*g4}) lgkmcnt(0)")
        for c in range(4):
            for e in range(2):
                for q in range(4):
                    A(f"v_perm_b32 v{16+4*e+q}, v{D+8*q+4+c}, v{D+8*q+c}, s{56+e}")
            for e in range(2):
                a = 8 + 4*e
                cc = "0" if (g4 == 0 and c == 0) else f"v[{a}:{a+3}]"
                A(f"v_mfma_f32_16x16x32_bf16 v[{a}:{a+3}], v[{ab+4*c}:{ab+4*c+3}], v[{16+4*e}:{19+4*e}], {cc}")
        if g4 == 0:
            rdA(1, VD); rdA(2, VD+16); rdA(3, 24)
    mktag(3)
    spin_lds(F_MODE, 1, 6, 7)
    A(f"ds_read_b32 v7, v6 offset:{L_MODE}")
    A("v_mov_b32 v2, 1")
    oaddr(1, 4)
    A("s_waitcnt lgkmcnt(0)")
    A("v_readfirstlane_b32 s54, v7")
    TT = VD + 32
    D = VD + 96
    pad()
    def vperm(q, c):
        for e in range(2): A(f"v_perm_b32 v{TT+4*(2*c+e)+q}, v{D+8*q+4+c}, v{D+8*q+c}, s{56+e}")
    for q in range(3):
        A(f"s_waitcnt vmcnt({6-2*q})")
        for c in range(4): vperm(q, c)
    A("s_waitcnt vmcnt(0)")
    stamp(2)
    vperm(3, 0); vperm(3, 1)
    for c in range(4):
        for e in range(2):
            a = 8 + 4*e; d = 2*c + e
            A(f"v_mfma_f32_16x16x32_bf16 v[{a}:{a+3}], v[{24+4*c}:{27+4*c}], v[{TT+4*d}:{TT+4*d+3}], v[{a}:{a+3}]")
        if c < 2: vperm(3, c + 2)
    for e in range(2): A(f"v_add_f32_dpp v{4+e}, v{8+4*e+1}, v{8+4*e} row_ror:8 row_mask:0xf bank_mask:0x3")
    for e in range(2): A(f"v_add_f32_dpp v{4+e}, v{8+4*e+2}, v{8+4*e+3} row_ror:8 row_mask:0xf bank_mask:0xc")
    quad16(16, 4, 5, 3)
    A("s_mov_b64 exec, s[52:53]")
    A("buffer_store_dwordx4 v[16:19], v1, s[40:43], s61 offen")
    A("s_cmp_eq_u32 s54, 0"); A("s_cbranch_scc1 L_onear")
    A("buffer_store_dwordx4 v[16:19], v1, s[40:43], s63 offen sc1")
    A("L_onear:")
    A("s_mov_b64 exec, 1")
    A(f"ds_add_u32 v6, v2 offset:{F_V}")
    stamp(3)
    if stamps:
        A("s_waitcnt vmcnt(0)"); stamp(4)
        A("s_barrier"); A("s_sleep 30")
    flush([(1, 6), (2, 7), (3, 8)], persub=[(1, 36), (2, 40), (4, 60)])
    A("s_endpgm")

    A("L_S2:")
    common()
    A(f"s_waitcnt vmcnt({16-XL})")
    X = 96
    for k in range(8):
        A(f"v_lshlrev_b32 v{X+2*k}, 16, v{8+k}"); A(f"v_and_b32 v{X+2*k+1}, 0xffff0000, v{8+k}")
    for k in range(8): A(f"v_add_f32 v{8+k}, v{X+2*k}, v{X+2*k+1}")
    for k in range(4): A(f"v_add_f32 v{8+k}, v{8+k}, v{12+k}")
    A("v_add_f32 v8, v8, v10"); A("v_add_f32 v9, v9, v11"); A("v_add_f32 v8, v8, v9")
    def red_b(r, t):
        allred16("v_add_f32", r, ["quad_perm:[1,0,3,2]", "row_ror:4", "row_ror:8"])
        allred_swap("v_add_f32", r, t, 16); allred_swap("v_add_f32", r, t, 32)
    red_b(8, 9)
    A("v_mul_f32 v8, 0x3b124925, v8")
    for k in range(16): A(f"v_sub_f32 v{X+k}, v{X+k}, v8")
    A(f"v_mul_f32 v10, v{X}, v{X}"); A(f"v_mul_f32 v11, v{X+1}, v{X+1}")
    for k in range(2, 16): A(f"v_fmac_f32 v{10+k%2}, v{X+k}, v{X+k}")
    A("v_add_f32 v10, v10, v11")
    A("v_cndmask_b32 v10, 0, v10, vcc")
    red_b(10, 9)
    A("v_mul_f32 v10, 0x3b124925, v10")
    rnd(8); rnd(10)
    A("v_add_f32 v10, 0x3727c5ac, v10"); rnd(10)
    A("v_sqrt_f32 v10, v10"); rnd(10)
    A("v_rcp_f32 v11, v10")
    A("v_fma_f32 v12, -v10, v11, 1.0"); A("v_fma_f32 v11, v12, v11, v11")
    pad(0)
    A(f"s_waitcnt vmcnt({14-XL})")
    for k in range(7):
        A(f"v_lshlrev_b32 v{X+2*k}, 16, v{16+k}"); A(f"v_and_b32 v{X+2*k+1}, 0xffff0000, v{16+k}")
    for k in range(14): A(f"v_sub_f32 v{X+k}, v{X+k}, v8")
    for k in range(7): A(f"v_cvt_pk_bf16_f32 v{16+k}, v{X+2*k}, v{X+2*k+1}")
    for k in range(7):
        A(f"v_lshlrev_b32 v{X+2*k}, 16, v{16+k}"); A(f"v_and_b32 v{X+2*k+1}, 0xffff0000, v{16+k}")
    for k in range(14): A(f"v_mul_f32 v{X+k}, v{X+k}, v11")
    for k in range(7): A(f"v_cvt_pk_bf16_f32 v{16+k}, v{X+2*k}, v{X+2*k+1}")
    A("v_mov_b32 v23, 0")
    TB = 88
    A("v_mov_b32 v95, 0"); A("v_mov_b32 v31, 0")
    AC = 112
    A("s_waitcnt vmcnt(0) lgkmcnt(0)")
    stamp(8)
    mktag(1)
    for d in range(8):
        c = d >> 1; e = d & 1; T = TB if e == 0 else 24
        for q in range(7): A(f"v_perm_b32 v{T+q}, v{WD+8*q+4+c}, v{WD+8*q+c}, s{56+e}")
        a = AC + 4*d
        A(f"v_mfma_f32_16x16x32_bf16 v[{a}:{a+3}], v[16:19], v[{T}:{T+3}], 0")
        A(f"v_mfma_f32_16x16x32_bf16 v[{a}:{a+3}], v[20:23], v[{T+4}:{T+7}], v[{a}:{a+3}]")
    pad(1)
    A("s_cmp_eq_u32 s3, 1"); A("s_cbranch_scc1 L_A1post")
    A("v_and_b32 v5, 7, v0"); A("v_lshlrev_b32 v5, 4, v5"); A("v_lshrrev_b32 v6, 5, v0"); A("v_lshl_add_u32 v5, v6, 7, v5")
    A("v_bfe_u32 v6, v0, 3, 1"); A("v_lshl_add_u32 v5, v6, 13, v5")
    for rg in range(4):
        for half in range(2):
            for e in range(2):
                a = AC + 4*(2*rg+e)
                if half == 0: A(f"v_add_f32_dpp v{8+e}, v{a+1}, v{a} row_ror:8 row_mask:{1<<rg} bank_mask:0x3")
                else: A(f"v_add_f32_dpp v{8+e}, v{a+2}, v{a+3} row_ror:8 row_mask:{1<<rg} bank_mask:0xc")
    quad16(12, 8, 9, 1)
    A("s_lshl_b32 s14, s4, 14"); A("s_lshl_b32 s62, s61, 11"); A("s_add_u32 s14, s14, s62")
    A("s_and_b32 s62, s5, 7"); A("s_lshl_b32 s62, s62, 8"); A("s_add_u32 s14, s14, s62"); A(f"s_add_u32 s62, s14, {QP}")
    A("s_mov_b32 exec_lo, 0xffff"); A("s_mov_b32 exec_hi, 0xffff")
    if "noqst" not in opt: A("buffer_store_dwordx4 v[12:15], v5, s[40:43], s62 offen" + (" nt" if "stnt" in opt else ""))
    stamp(1)
    def farstore(regs, va, lskip):
        A("v_mov_b32 v6, 0")
        spin_lds(F_MODE, 1, 6, 7, sleep=8)
        A(f"ds_read_b32 v7, v6 offset:{L_MODE}")
        A("s_waitcnt lgkmcnt(0)")
        A("v_readfirstlane_b32 s54, v7")
        A("s_cmp_eq_u32 s54, 0"); A(f"s_cbranch_scc1 {lskip}")
        A("s_add_u32 s62, s62, s54")
        A(f"buffer_store_dwordx4 {regs}, v{va}, s[40:43], s62 offen sc1")
        A(f"{lskip}:")
    farstore("v[12:15]", 5, "L_qnear")
    ow = getopt("owarm", 0)
    if ow:
        if ow == 2: spin_lds(F_V24, 4, 6, 7, sleep=4)
        if ow == 3: spin_lds(F_P, 4, 6, 7, sleep=4)
        A("s_mov_b32 exec_hi, 0")
        A("v_lshlrev_b32 v5, 7, v0")
        A("s_lshl_b32 s14, s4, 5"); A("s_add_u32 s14, s14, s5"); A("s_lshl_b32 s14, s14, 11"); A(f"s_add_u32 s14, s14, {OP}")
        A("buffer_load_dword v8, v5, s[40:43], s14 offen sc1 nt")
        if "owarm1" not in opt:
            A("s_waitcnt vmcnt(0)")
            A("buffer_load_dword v8, v5, s[40:43], s14 offen sc1")
    stamp(2)
    flush([(0, 0), (1, 1), (8, 20), (4, 28), (2, 16)])
    A("s_endpgm")
    A("L_A1post:")
    A("v_lshlrev_b32 v5, 4, v0")
    A("s_lshl3_add_u32 s62, s60, s61"); A("s_lshl_b32 s62, s62, 10"); A(f"s_add_u32 s62, s62, {FPB}")
    A("s_nop 4")
    for rg in range(4):
        for b in range(2):
            for e in range(2):
                a = AC + 4*(2*rg+e) + 2*b
                A(f"v_mov_b32_dpp v{8+2*b+e}, v{a} quad_perm:[0,1,2,3] row_mask:{1<<rg} bank_mask:0xf")
    for k in range(4): tag(8+k, 1)
    if "nofst" not in opt: A("buffer_store_dwordx4 v[8:11], v5, s[40:43], s62 offen" + (" nt" if "stnt" in opt else ""))
    farstore("v[8:11]", 5, "L_fnear")
    A("s_cmp_ge_u32 s5, 16"); A("s_cbranch_scc1 L_end")
    A("v_and_b32 v5, 15, v0"); A("v_lshlrev_b32 v5, 4, v5"); A("v_lshrrev_b32 v3, 4, v0"); A("v_lshl_add_u32 v5, v3, 10, v5")
    A("s_lshr_b32 s14, s5, 2"); A("s_lshl2_add_u32 s60, s4, s14"); A("s_lshl_b32 s60, s60, 13")
    A("s_and_b32 s14, s5, 3"); A("s_lshl_b32 s14, s14, 8"); A("s_add_u32 s60, s60, s14"); A(f"s_add_u32 s60, s60, {FPB}")
    A("s_add_u32 s60, s60, s54"); A("s_add_u32 s61, s60, 4096")
    A("v_and_b32 v4, 7, v0"); A("v_lshlrev_b32 v4, 3, v4"); A("v_lshrrev_b32 v3, 5, v0"); A("v_lshl_add_u32 v4, v3, 6, v4")
    A("s_lshl4_add_u32 s62, s4, s5"); A("s_lshl_b32 s62, s62, 7"); A(f"s_add_u32 s62, s62, {HB}")
    lp = lab("pf"); lr = lab("rf")
    A(f"{lp}:")
    A(f"buffer_load_dwordx4 v[{WD}:{WD+3}], v5, s[40:43], s60 offen {PF}")
    A(f"buffer_load_dwordx4 v[{WD+4}:{WD+7}], v5, s[40:43], s61 offen {PF}")
    A("s_waitcnt vmcnt(0)")
    if "nofst" not in opt: tagcheck(list(range(WD, WD+8)), 1, 8, 9, lr)
    for k in range(4): A(f"v_add_f32 v{WD+k}, v{WD+k}, v{WD+4+k}")
    A(f"v_permlane32_swap_b32 v{WD}, v{WD+2}"); A(f"v_permlane32_swap_b32 v{WD+1}, v{WD+3}")
    for k in range(2): A(f"v_add_f32 v{WD+k}, v{WD+k}, v{WD+2+k}")
    for k in range(2): allred_swap("v_add_f32", WD+k, WD+2+k, 16)
    for k in range(2): rnd(WD+k)
    for k in range(2): A(f"v_mov_b32_dpp v{WD+4+k}, v{WD+k} row_ror:8 row_mask:0xf bank_mask:0xf")
    for k in range(2): A(f"v_mul_f32 v{8+k}, v{WD+k}, v{WD+k}")
    A("s_mov_b32 s14, 0x3d372713")
    for k in range(2): A(f"v_fma_f32 v{8+k}, v{8+k}, s14, 1.0")
    for k in range(2): A(f"v_mul_f32 v{8+k}, v{8+k}, v{WD+k}")
    for k in range(2): A(f"v_mul_f32 v{8+k}, 0xc0135761, v{8+k}")
    for k in range(2): A(f"v_exp_f32 v{8+k}, v{8+k}")
    for k in range(2): A(f"v_add_f32 v{8+k}, 1.0, v{8+k}")
    for k in range(2): A(f"v_rcp_f32 v{8+k}, v{8+k}")
    for k in range(2): A(f"v_mul_f32 v{8+k}, v{8+k}, v{WD+k}")
    for k in range(2): rnd(8+k)
    for k in range(2): A(f"v_mul_f32 v{8+k}, v{8+k}, v{WD+4+k}")
    for k in range(2): rnd(8+k)
    for k in range(2): A(f"v_or_b32 v{8+k}, v{8+k}, v1")
    A("s_mov_b32 exec_lo, 0xff"); A("s_mov_b32 exec_hi, 0xff")
    A("s_cmp_lg_u32 s54, 0"); A("s_cbranch_scc1 L_hfar")
    A("buffer_store_dwordx2 v[8:9], v4, s[40:43], s62 offen")
    stamp(1)
    flush([(1, 13)], cond_sub0=False)
    A("s_endpgm")
    A("L_hfar:")
    A("s_add_u32 s62, s62, s54")
    A("buffer_store_dwordx2 v[8:9], v4, s[40:43], s62 offen sc1")
    A("s_endpgm")
    A(f"{lr}:")
    A("s_sleep 8")
    bail(lp)

    A("L_A3:")
    A("s_setprio 3")
    common()
    srd(44, 36, 37, 256)
    A("s_getreg_b32 s60, hwreg(HW_REG_XCC_ID, 0, 4)")
    if "forcefar" in opt: A("s_and_b32 s60, s5, 1")
    A("s_lshl_b32 s61, s4, 7"); A(f"s_add_u32 s61, s61, {IDS}")
    A("s_lshl2_add_u32 s62, s5, s61")
    A("v_mov_b32 v6, 0"); A("v_lshlrev_b32 v4, 2, v0")
    A("s_waitcnt lgkmcnt(0)")
    mktag(1)
    A("s_add_u32 s14, s13, 1"); A("s_lshl4_add_u32 s14, s14, s60")
    A("v_mov_b32 v2, s14")
    A("s_mov_b64 exec, 1")
    A("buffer_store_dword v2, v6, s[40:43], s62 offen")
    A("s_mov_b64 exec, -1")
    spin_lds(F_KI, 4, 6, 7, sleep=8)
    A("s_mov_b32 exec_hi, 0")
    A("s_mov_b32 s63, 5"); A("s_mov_b32 s54, 0")
    A("L_pi:")
    A(f"buffer_load_dword v3, v4, s[40:43], s61 offen {PF}")
    A("s_waitcnt vmcnt(0)")
    A("v_cmp_ne_u32 vcc, v2, v3")
    A("s_cbranch_vccnz L_pifail")
    A("L_pidone:")
    A("v_mov_b32 v2, s54"); A("v_mov_b32 v7, 1")
    A(f"ds_write_b32 v6, v2 offset:{L_MODE}")
    A(f"ds_write_b32 v6, v7 offset:{F_MODE}")
    A("s_mov_b64 exec, -1")
    stamp(2)
    A("v_lshlrev_b32 v5, 4, v0")
    A("v_lshrrev_b32 v4, 5, v0"); A("v_lshlrev_b32 v4, 2, v4")
    spin_lds(F_P, 4, 6, 7, sleep=4)
    A(f"ds_read_b128 v[8:11], v5 offset:{L_P}")
    A(f"ds_read_b32 v16, v4 offset:{L_MAX}")
    A("s_waitcnt lgkmcnt(0)")
    for k in range(4): A(f"v_lshlrev_b32 v{12+k}, 16, v{8+k}")
    for k in range(4): A(f"v_and_b32 v{8+k}, 0xffff0000, v{8+k}")
    for k in range(4): A(f"v_add_f32 v{8+k}, v{8+k}, v{12+k}")
    A("v_add_f32 v8, v8, v9"); A("v_add_f32 v10, v10, v11"); A("v_add_f32 v17, v8, v10")
    allred_swap("v_add_f32", 17, 13, 16)
    allred16("v_add_f32", 17, ["row_ror:8", "row_ror:4", "row_ror:2", "row_ror:1"])
    tag(16, 1); tag(17, 1)
    A("v_mov_b32 v18, v16"); A("v_mov_b32 v19, v17")
    A("v_permlane32_swap_b32 v16, v18"); A("v_permlane32_swap_b32 v17, v19")
    A("s_lshl_b32 s61, s4, 9"); A(f"s_add_u32 s61, s61, {ST}")
    A("s_add_u32 s61, s61, s54")
    A("s_lshl_b32 s14, s5, 4"); A("s_add_u32 s14, s14, s61")
    A("s_mov_b64 exec, 1")
    A("s_cmp_lg_u32 s54, 0"); A("s_cbranch_scc1 L_sfar")
    A("buffer_store_dwordx4 v[16:19], v6, s[40:43], s14 offen")
    A("s_branch L_sdone")
    A("L_sfar:")
    A("buffer_store_dwordx4 v[16:19], v6, s[40:43], s14 offen sc1")
    A("L_sdone:")
    A("s_mov_b64 exec, -1")
    A("s_cmp_ge_u32 s5, 28"); A("s_cbranch_scc1 L_end")
    A("v_and_b32 v5, 31, v0"); A("v_lshlrev_b32 v5, 4, v5"); A("v_lshl_add_u32 v5, v4, 1, v5")
    A("v_and_b32 v2, 3, v0"); A("v_lshlrev_b32 v2, 4, v2"); A("v_bfe_u32 v3, v0, 2, 2"); A("v_lshl_add_u32 v2, v3, 2, v2")
    A("v_lshrrev_b32 v3, 4, v0"); A("v_lshl_add_u32 v2, v3, 6, v2")
    if "latestat" in opt: spin_lds(F_V24, 4, 6, 7, sleep=2)
    else: A("s_waitcnt vmcnt(0)")
    lp = lab("ps"); lr = lab("rs")
    A(f"{lp}:")
    A(f"buffer_load_dwordx2 v[8:9], v5, s[40:43], s61 offen {PF}")
    A("s_waitcnt vmcnt(0)")
    tagcheck([8, 9], 1, 12, 13, lr)
    A("v_and_b32 v8, 0xffff0000, v8")
    A("v_mov_b32 v12, v8")
    allred16("v_max_f32", 12, ["row_ror:8", "row_ror:4", "row_ror:2", "row_ror:1"])
    A("v_sub_f32 v8, v8, v12"); A("v_mul_f32 v8, s59, v8"); A("v_exp_f32 v8, v8")
    A("v_mul_f32 v9, v9, v8")
    allred16("v_add_f32", 9, ["row_ror:8", "row_ror:4", "row_ror:2", "row_ror:1"])
    A("v_rcp_f32 v10, v9")
    A("v_fma_f32 v11, -v9, v10, 1.0"); A("v_fma_f32 v10, v11, v10, v10")
    A("v_mul_f32 v8, v8, v10")
    A(f"ds_write_b32 v2, v8 offset:{L_W}")
    A("v_mov_b32 v7, 1")
    A("s_mov_b64 exec, 1")
    A(f"ds_write_b32 v6, v7 offset:{F_X}")
    A("s_waitcnt lgkmcnt(0)")
    stamp(1)
    flush([(1, 14), (2, 15)], cond_sub0=False)
    A("s_endpgm")
    A(f"{lr}:")
    A(f"s_sleep {getopt('sslp', 8)}")
    bail(lp)
    A("L_pifail:")
    A("s_sub_u32 s15, s15, 1"); A("s_cbranch_scc1 L_end")
    A("s_sleep 8")
    A("s_sub_u32 s63, s63, 1")
    A("s_cmp_gt_i32 s63, 0"); A("s_cbranch_scc1 L_pi")
    A("s_or_b32 s14, s60, 0x80"); A("v_mov_b32 v8, s14")
    A("s_lshl_b32 s62, s4, 5")
    A("s_cmp_lg_u32 s63, 0"); A("s_cbranch_scc1 L_piread")
    A("s_add_u32 s14, s62, s5")
    A("s_mov_b32 exec_lo, 1")
    A("buffer_store_byte v8, v6, s[44:47], s14 offen sc1")
    A("s_mov_b32 exec_lo, -1")
    A("L_piread:")
    A("buffer_load_ubyte v3, v0, s[44:47], s62 offen sc1")
    A("s_waitcnt vmcnt(0)")
    A("v_cmp_eq_u32 vcc, 0, v3")
    A("s_cbranch_vccnz L_pi")
    A("v_cmp_ne_u32 vcc, v8, v3")
    A("s_cmp_lg_u64 vcc, 0"); A(f"s_cselect_b32 s54, {FAR}, 0")
    A("s_branch L_pidone")
    A("L_end:")
    A("s_endpgm")
    txt = A.finish()
    chain = [0] + [n for _, n in sorted(pads)]
    for a, b in zip(chain, chain[1:] + [None]):
        txt = txt.replace(f"@NEXT{a}@", f"L_pad{b}" if b else "L_end")
    return txt

HEADER = open("cdna_kernels/%s.s.ref" % NAME).read().split("; Override launch")[0]
def full(stamps=False, opt=()):
    body = gen(stamps, opt)
    return HEADER + f"""; @launch grid=(256,1,1) block=(768,1,1) lds={LDS_SIZE}
.amdgcn_target "amdgcn-amd-amdhsa--gfx950"
.text
.p2align 12
.fill 832, 4, 0xbf810000
.globl {NAME}_kernel
.p2align 8
.type {NAME}_kernel,@function
{NAME}_kernel:
{body}
.section .rodata,"a"
.p2align 6
.amdhsa_kernel {NAME}_kernel
  .amdhsa_next_free_vgpr 168
  .amdhsa_next_free_sgpr 100
  .amdhsa_accum_offset 168
  .amdhsa_group_segment_fixed_size 0
  .amdhsa_kernarg_size 96
  .amdhsa_user_sgpr_count 2
  .amdhsa_user_sgpr_kernarg_segment_ptr 1
  .amdhsa_system_sgpr_workgroup_id_x 1
.end_amdhsa_kernel
"""
if __name__ == "__main__":
    out = sys.argv[1] if len(sys.argv) > 1 else "cdna_kernels/%s.s" % NAME
    open(out, "w").write(full(stamps=(len(sys.argv) > 2 and sys.argv[2] == "stamps"), opt=sys.argv[3:]))
```

```python
import sys
from asmgen import Asm
NAME = "parallel_sum__sliding_block_cached__glu_gated_geglu__decode"

IDS = 0x1000; AFLG = 0x1800; ACC = 0x2000; QP = 0x10000; FPB = 0x30000; HB = 0x68000; ST = 0x70000; OP = 0x80000
FAR = 0x100000
WS_SIZE = 0x200000
F_Q, F_P, F_M, F_X, F_V, F_VI, F_KI, F_MODE, F_V24, F_TK = 0x00, 0x04, 0x08, 0x0c, 0x20, 0x24, 0x28, 0x2c, 0x30, 0x34
L_MAX, L_TAG, L_MODE = 0x10, 0x18, 0x1c
L_W = 0xc00
L_ZERO = 0x100
L_Q, L_P, L_Y = 0x400, 0x800, 0x1000
LDS_SIZE = 0x1800
CEXP = 0x3db8aa3b
SPIN = 0x20000

def gen(stamps=False, opt=()):
    A = Asm()
    uid = [0]
    pads = []
    def getopt(name, default):
        for o in opt:
            if o.startswith(name + "="): return int(o.split("=")[1])
        return default
    def lab(p):
        uid[0] += 1
        return f"L_{p}{uid[0]}"
    def pad(prio=5):
        n = len(pads) + 1
        pads.append((prio, n))
        A(f"L_pad{n}:")
        A(f"s_cbranch_execz @NEXT{n}@")
    def stamp(k):
        if stamps: A(f"s_memrealtime s[{64+2*k}:{65+2*k}]")
    def flush(slots, cond_sub0=True, persub=()):
        if not stamps or "dbg" in opt: return
        A("s_waitcnt lgkmcnt(0)")
        A("s_mov_b64 exec, -1")
        A("v_mov_b32 v1, 0"); A("v_mov_b32 v2, 0"); A("v_mov_b32 v3, 0")
        A("s_lshl_b32 s14, s2, 9")
        A("s_add_u32 s62, s38, s14"); A("s_addc_u32 s63, s39, 0")
        A("s_add_u32 s62, s62, 0x20000000"); A("s_addc_u32 s63, s63, 0")
        n = 0
        for k, slot in persub:
            A("s_lshl_b32 s14, s8, 3"); A(f"s_add_u32 s14, s14, {slot*8}")
            A(f"v_writelane_b32 v1, s14, {n}"); A(f"v_writelane_b32 v2, s{64+2*k}, {n}"); A(f"v_writelane_b32 v3, s{65+2*k}, {n}")
            n += 1
        np_ = n
        for k, slot in slots:
            A(f"s_movk_i32 s14, {slot*8}")
            A(f"v_writelane_b32 v1, s14, {n}"); A(f"v_writelane_b32 v2, s{64+2*k}, {n}"); A(f"v_writelane_b32 v3, s{65+2*k}, {n}")
            n += 1
        A("s_mov_b32 exec_hi, 0")
        if cond_sub0:
            A("s_cmp_eq_u32 s8, 0"); A(f"s_cselect_b32 exec_lo, {(1<<n)-1}, {(1<<np_)-1}")
            if np_ == 0: A("s_cbranch_execz L_end")
        else:
            A(f"s_mov_b32 exec_lo, {(1<<n)-1}")
        A("global_store_dwordx2 v1, v[2:3], s[62:63]")
    def srd(s, lo, hi, size, off=None):
        if off is None:
            A(f"s_mov_b32 s{s}, s{lo}"); A(f"s_mov_b32 s{s+1}, s{hi}")
        else:
            A(f"s_add_u32 s{s}, s{lo}, {off}"); A(f"s_addc_u32 s{s+1}, s{hi}, 0")
        A(f"s_mov_b32 s{s+2}, {size}"); A(f"s_mov_b32 s{s+3}, 0x20000")
    def spin_lds(flag, n, vz, vt, sleep=1):
        l = lab("sp"); d = lab("sd")
        A(f"{l}:")
        A(f"ds_read_b32 v{vt}, v{vz} offset:{flag}")
        A("s_waitcnt lgkmcnt(0)")
        A(f"v_readfirstlane_b32 s14, v{vt}")
        A(f"s_cmp_ge_u32 s14, {n}")
        A(f"s_cbranch_scc1 {d}")
        if sleep: A(f"s_sleep {sleep}")
        A("s_sub_u32 s15, s15, 1")
        A(f"s_cbranch_scc0 {l}")
        A("s_endpgm")
        A(f"{d}:")
    def tagcheck(regs, vT, c0, c1, lretry):
        A(f"v_xor_b32 v{c0}, v{regs[0]}, v{vT}")
        A(f"v_xor_b32 v{c1}, v{regs[1]}, v{vT}")
        for k, r in enumerate(regs[2:]):
            c = c0 if k % 2 == 0 else c1
            A(f"v_bitop3_b32 v{c}, v{c}, v{r}, v{vT} bitop3:0xf6")
        A(f"v_bitop3_b32 v{c0}, v{c0}, v{c1}, s58 bitop3:0x54")
        A(f"v_cmp_ne_u32 vcc, 0, v{c0}")
        A(f"s_cbranch_vccnz {lretry}")
    def bail(l):
        A("s_sub_u32 s15, s15, 1")
        A(f"s_cbranch_scc0 {l}")
        A("s_endpgm")
    def tag(r, vT, src=None):
        A(f"v_and_or_b32 v{r}, v{r if src is None else src}, s58, v{vT}")
    def mktag(vT):
        A("s_add_u32 s12, s13, 1"); A("s_and_b32 s12, s12, 0xff")
        A(f"v_mov_b32 v{vT}, s12")
    def rnd(r):
        A(f"v_cvt_pk_bf16_f32 v{r}, v{r}, v{r}"); A(f"v_and_b32 v{r}, 0xffff0000, v{r}")
    def allred16(op, r, steps):
        for st in steps: A(f"{op}_dpp v{r}, v{r}, v{r} {st} row_mask:0xf bank_mask:0xf")
    def allred_swap(op, r, t, which):
        A(f"v_mov_b32 v{t}, v{r}")
        A(f"v_permlane{which}_swap_b32 v{t}, v{r}")
        A(f"{op} v{r}, v{t}, v{r}")
    def ldsinc(flag, vz, vone):
        A("s_mov_b64 exec, 1")
        A(f"ds_add_u32 v{vz}, v{vone} offset:{flag}")
        A("s_mov_b64 exec, -1")
    def common(epoch=True):
        srd(40, 38, 39, WS_SIZE, 0x3fc00000 if "wsend" in opt else None)
        if epoch: A("s_load_dword s13, s[40:41], 0")
        A(f"s_mov_b32 s15, {SPIN}")
        A("s_mov_b32 s56, 0x05040100"); A("s_mov_b32 s57, 0x07060302"); A("s_mov_b32 s58, 0xffffff00")
        A(f"s_mov_b32 s59, {CEXP}")
    def kvoff():
        A("s_lshr_b32 s6, s5, 4")
        A("s_lshl_b32 s60, s6, 3"); A("s_add_u32 s60, s60, s4"); A("s_lshl_b32 s60, s60, 7")
        A("s_and_b32 s14, s5, 15"); A("s_add_u32 s60, s60, s14"); A("s_add_u32 s60, s60, 112"); A("s_lshl_b32 s60, s60, 17")
        if "mul2" in opt:
            A("s_lshr_b32 s9, s5, 1"); A("s_lshl3_add_u32 s9, s9, s4"); A("s_mul_i32 s9, s9, 0x9E3779B1"); A("s_lshr_b32 s9, s9, 27")
        elif "gi2" in opt:
            A("s_lshl_b32 s9, s4, 2"); A("s_lshr_b32 s14, s5, 1"); A("s_xor_b32 s9, s9, s14"); A("s_and_b32 s14, s5, 16"); A("s_xor_b32 s9, s9, s14")
        else:
            A("s_lshl_b32 s9, s4, 2"); A("s_xor_b32 s9, s9, s5")
    def quad16(o, z0, z1, vT):
        tag(o, vT, z0); tag(o+1, vT, z1); tag(o+2, vT, z0); tag(o+3, vT, z1)
        A(f"v_permlane16_swap_b32 v{o}, v{o+2}"); A(f"v_permlane16_swap_b32 v{o+1}, v{o+3}")

    if "delay" in opt: A("s_memrealtime s[96:97]")
    stamp(0)
    A("s_load_dwordx16 s[16:31], s[0:1], 0")
    A("s_load_dwordx8 s[32:39], s[0:1], 64")
    A("v_lshrrev_b32 v1, 6, v0")
    A("s_cmp_ge_u32 s2, 256"); A("s_cbranch_scc1 L_end")
    A("v_readfirstlane_b32 s3, v1")
    A("v_and_b32 v0, 63, v0")
    A("s_and_b32 s4, s2, 7")
    A("s_lshr_b32 s5, s2, 3")
    A("s_and_b32 s8, s3, 3")
    A("s_cmp_ge_u32 s3, 2"); A("s_cbranch_scc1 L_KV")

    A("s_setprio 3")
    A("v_and_b32 v3, 7, v0"); A("v_lshlrev_b32 v3, 4, v3")
    A("s_cmp_eq_u32 s3, 1"); A("s_cbranch_scc1 L_A1pre")
    A("s_lshr_b32 s61, s5, 3")
    A("s_mul_i32 s14, s61, 112")
    A("v_lshrrev_b32 v2, 3, v0"); A("v_mul_u32_u24 v2, 14, v2"); A("v_add_u32 v2, s14, v2"); A("v_lshl_add_u32 v2, v2, 13, v3")
    A("s_and_b32 s62, s5, 7"); A("s_lshl_b32 s60, s4, 3"); A("s_add_u32 s60, s62, s60")
    A("s_movk_i32 s62, 8192")
    A("v_and_b32 v4, 1, v0"); A("v_lshrrev_b32 v5, 4, v0"); A("v_lshl_add_u32 v4, v5, 1, v4")
    A("s_branch L_S1")
    A("L_A1z:")
    A("s_cmp_lg_u32 s5, 0"); A("s_cbranch_scc1 L_end")
    A("s_barrier")
    A("s_branch L_ZERO")
    A("L_A1pre:")
    A("s_cmp_eq_u32 s4, 7"); A("s_cbranch_scc1 L_A1z")
    A("s_lshr_b32 s61, s5, 2")
    A("s_mul_i32 s14, s61, 56")
    A("s_movk_i32 s62, 3584")
    A("v_lshrrev_b32 v4, 4, v0")
    A("v_mul_u32_u24 v2, 14, v4"); A("v_add_u32 v2, s14, v2"); A("v_mad_u32_u24 v2, v2, s62, v3")
    A("s_and_b32 s60, s5, 3"); A("s_xor_b32 s60, s60, 2"); A("s_lshl2_add_u32 s60, s4, s60")
    A("L_S1:")
    A("s_lshl_b32 s63, s60, 7"); A("v_add_u32 v2, s63, v2"); A("v_mov_b32 v3, 0")
    A("s_mov_b32 s63, 0")
    A("v_mul_u32_u24 v4, 28, v4"); A("s_lshl_b32 s14, s14, 1"); A("v_add_u32 v4, s14, v4")
    A("v_bfe_u32 v5, v0, 1, 1"); A("v_mul_u32_u24 v5, 896, v5"); A("v_add_u32 v4, v4, v5")
    A("v_lshrrev_b32 v6, 2, v0"); A("v_and_b32 v7, 1, v0"); A("v_lshl_add_u32 v6, v6, 1, v7")
    A("v_lshl_add_u32 v5, v6, 5, v5")
    A("v_cmp_gt_u32 vcc, 56, v0"); A("v_mov_b32 v7, 0x10000"); A("v_cndmask_b32 v5, v7, v5, vcc")
    A("s_movk_i32 s46, 1792"); A("s_mov_b32 s47, 0x20000")
    A("s_cmp_eq_u32 s3, 1")
    A("s_waitcnt lgkmcnt(0)")
    A("s_mov_b64 s[44:45], s[16:17]")
    XL = getopt("xat", 0)
    def xloads():
        A("buffer_load_dwordx4 v[8:11], v5, s[44:47], 0 offen")
        A("buffer_load_dwordx4 v[12:15], v5, s[44:47], 0 offen offset:16")
        A("buffer_load_dwordx4 v[16:19], v4, s[44:47], 0 offen")
        A("buffer_load_dwordx3 v[20:22], v4, s[44:47], 0 offen offset:16")
    A("s_cselect_b64 s[52:53], s[28:29], s[22:23]")
    A("s_cselect_b64 s[54:55], s[30:31], s[22:23]")
    A("v_lshl_add_u64 v[6:7], v[2:3], 0, s[54:55]")
    A("v_lshl_add_u64 v[2:3], v[2:3], 0, s[52:53]")
    if XL == 0: xloads()
    A("v_mov_b32_dpp v2, v6 quad_perm:[0,1,2,3] row_mask:0xf bank_mask:0xc")
    A("v_mov_b32_dpp v3, v7 quad_perm:[0,1,2,3] row_mask:0xf bank_mask:0xc")
    WD = 32
    for j in range(14):
        if "nos1" in opt and j > 0: continue
        A(f"global_load_dwordx4 v[{WD+4*j}:{WD+4*j+3}], v[2:3], off nt")
        if j < 13: A("v_lshl_add_u64 v[2:3], v[2:3], 0, s[62:63]")
        if j + 1 == XL: xloads()
    stamp(4)
    A("s_barrier")
    A("s_branch L_S2")

    A("L_KV:")
    A("s_cmp_lt_u32 s3, 4"); A("s_cbranch_scc1 L_A23")
    kvoff()
    A("s_cmp_lt_u32 s3, 8"); A("s_cbranch_scc1 L_K")
    A("s_barrier")
    A("s_branch L_V")
    A("L_A23:")
    A("s_getpc_b64 s[60:61]")
    A("L_pc:")
    A(f"s_sub_u32 s60, s60, L_pc-{NAME}_kernel"); A("s_subb_u32 s61, s61, 0")
    if "pf4" in opt:
        A("s_and_b32 s14, s3, 1"); A("s_lshl1_add_u32 s14, s5, s14"); A("s_lshl_b32 s14, s14, 8")
        A("v_lshlrev_b32 v1, 7, v0"); A("v_add_u32 v1, s14, v1")
        A(f"v_min_u32 v1, L_end-{NAME}_kernel, v1")
        A("s_mov_b64 exec, 3")
        A("global_load_dword v8, v1, s[60:61]")
        A("s_mov_b64 exec, -1")
    else:
        A("s_and_b32 s14, s3, 1"); A("s_lshl_b32 s14, s14, 13")
        A("v_lshlrev_b32 v1, 7, v0"); A("v_add_u32 v1, s14, v1")
        A(f"v_min_u32 v1, L_end-{NAME}_kernel, v1")
        A("global_load_dword v8, v1, s[60:61]")
    A("s_cmp_eq_u32 s3, 2"); A("s_cbranch_scc1 L_A2")
    A("v_lshlrev_b32 v1, 4, v0")
    for r in range(2, 6): A(f"v_mov_b32 v{r}, 0")
    A("ds_write_b128 v1, v[2:5]")
    A("v_mov_b32 v6, 0xff800000"); A("v_mov_b32 v7, v6")
    A(f"ds_write_b64 v2, v[6:7] offset:{L_MAX}")
    A("s_waitcnt lgkmcnt(0)")
    A("s_barrier")
    A("s_branch L_A3")
    A("L_A2:")
    A("s_barrier")
    A("s_mov_b64 exec, 0")
    A("s_branch @NEXT0@")

    A("L_K:")
    A("s_setprio 2")
    K15 = "k15" in opt
    if K15:
        A("v_and_b32 v2, 1, v0"); A("v_lshlrev_b32 v1, 9, v2"); A("v_and_b32 v2, 2, v0"); A("v_lshl_add_u32 v1, v2, 15, v1")
    else:
        A("v_and_b32 v2, 3, v0"); A("v_lshlrev_b32 v1, 9, v2")
    A("v_lshrrev_b32 v2, 2, v0"); A("v_lshl_add_u32 v1, v2, 4, v1")
    A(f"s_lshl_b32 s14, s8, {14 if K15 else 15}"); A("v_add_u32 v1, s14, v1")
    A("s_lshr_b32 s61, s9, 1"); A("s_lshl_b32 s14, s8, 2"); A("s_xor_b32 s61, s61, s14")
    A(f"s_lshl_b32 s62, s61, {10 if K15 else 11}")
    A("s_mov_b32 s46, 0x20000"); A("s_mov_b32 s47, 0x20000")
    A("s_waitcnt lgkmcnt(0)")
    A("s_add_u32 s44, s18, s60"); A("s_addc_u32 s45, s19, 0")
    A("s_barrier")
    KD = 32
    QAT = getopt("qat", 12)
    PF = "sc1" if "pollnont" in opt else "sc1 nt"
    def qpoll(va=3):
        A(f"buffer_load_dwordx4 v[16:19], v{va}, s[40:43], s52 offen {PF}")
        A(f"buffer_load_dwordx4 v[20:23], v{va}, s[40:43], s53 offen {PF}")
    for t in range(17):
        if t == 6:
            common()
            A("v_and_b32 v3, 31, v0"); A("v_lshlrev_b32 v3, 4, v3"); A("v_lshrrev_b32 v2, 5, v0"); A("v_lshl_add_u32 v3, v2, 11, v3")
            A("s_lshl_b32 s52, s4, 14"); A("s_lshl_b32 s14, s6, 13"); A("s_add_u32 s52, s52, s14")
            A("s_lshl_b32 s14, s8, 9"); A("s_add_u32 s52, s52, s14"); A(f"s_add_u32 s52, s52, {QP}")
            A("s_add_u32 s53, s52, 4096")
            A("v_mov_b32 v5, 0"); A("v_mov_b32 v167, 1")
        if t == 10: ldsinc(F_KI, 5, 167)
        if t == QAT and "noq" not in opt:
            qpoll()
        if t == 16: break
        if t == 0: s = "s62"
        else:
            A(f"s_xor_b32 s14, s62, {t*(1024 if K15 else 2048)}"); s = "s14"
        r = KD + 8*t
        A(f"buffer_load_dwordx4 v[{r}:{r+3}], v1, s[44:47], {s} offen nt")
        A(f"buffer_load_dwordx4 v[{r+4}:{r+7}], v1, s[44:47], {s} offen offset:256 nt")
    stamp(1)
    A("v_and_b32 v2, 1, v0"); A("v_lshlrev_b32 v2, 9, v2")
    A("v_lshrrev_b32 v6, 2, v0"); A("v_lshl_add_u32 v2, v6, 4, v2")
    A(f"s_lshl_b32 s14, s61, {1 if K15 else 2}"); A(f"s_lshl_b32 s62, s8, {5 if K15 else 6}"); A("s_or_b32 s14, s14, s62")
    A("s_lshr_b32 s62, s9, 3"); A("s_lshl_b32 s62, s62, 6"); A("s_xor_b32 s14, s14, s62")
    A("s_and_b32 s62, s9, 7"); A("s_xor_b32 s14, s14, s62")
    if K15:
        A("v_and_b32 v4, 1, v0"); A("v_lshl_add_u32 v4, v6, 1, v4"); A("v_and_b32 v9, 2, v0"); A("v_lshl_add_u32 v4, v9, 6, v4")
        A("v_xor_b32 v4, s14, v4")
    else: A("v_xor_b32 v4, s14, v0")
    A("v_lshlrev_b32 v4, 1, v4")
    A("v_and_b32 v1, 7, v0"); A("v_lshlrev_b32 v1, 4, v1"); A("v_and_b32 v9, 8, v0"); A("v_or_b32 v1, v1, v9")
    A("v_bfe_u32 v9, v0, 4, 1"); A("v_lshl_add_u32 v1, v9, 7, v1")
    A("v_lshrrev_b32 v9, 5, v0"); A("v_lshl_add_u32 v1, v9, 2, v1")
    A("s_lshl_b32 s14, s8, 8"); A("v_add_u32 v1, s14, v1")
    A("s_waitcnt lgkmcnt(0)")
    mktag(7)
    pad()
    A(f"s_waitcnt vmcnt({2*(16-QAT)})")
    lq = lab("cq"); lrq = lab("rq")
    A(f"{lq}:")
    if "noq" not in opt and "noqst" not in opt: tagcheck(list(range(16, 24)), 7, 8, 9, lrq)
    stamp(7)
    for k in range(4): A(f"v_add_f32 v{16+k}, v{16+k}, v{20+k}")
    A("v_permlane32_swap_b32 v16, v18"); A("v_permlane32_swap_b32 v17, v19")
    A("v_add_f32 v16, v16, v18"); A("v_add_f32 v17, v17, v19")
    A("v_cvt_pk_bf16_f32 v16, v16, v17")
    A(f"ds_write_b32 v1, v16 offset:{L_Q}")
    ldsinc(F_Q, 5, 167)
    spin_lds(F_Q, 4, 5, 6)
    A(f"ds_read_b128 v[8:11], v2 offset:{L_Q}")
    A(f"ds_read_b128 v[12:15], v2 offset:{L_Q+256}")
    A("s_waitcnt lgkmcnt(0)")
    def acc(t):
        B = t // 4
        return (16 if B == 0 else KD + 32*(B-1)) + 4*(t % 4)
    for B in range(4):
        if 4*B+4 > QAT: A(f"s_waitcnt vmcnt({32-8*(B+1)})")
        for step in range(4):
            for tt in range(4):
                t = 4*B + tt
                a = acc(t); kd = KD + 8*t + 2*step; q = 8 + 2*step
                c = "0" if step == 0 else f"v[{a}:{a+3}]"
                A(f"v_mfma_f32_4x4x4_16b_bf16 v[{a}:{a+3}], v[{q}:{q+1}], v[{kd}:{kd+1}], {c}")
    pad()
    val = {(t, h): acc(t) + h for t in range(16) for h in range(2)}
    for t in range(8):
        for h in range(2): A(f"v_permlane32_swap_b32 v{val[t,h]}, v{val[t+8,h]}")
    for t in range(8):
        for h in range(2): A(f"v_add_f32 v{val[t,h]}, v{val[t,h]}, v{val[t+8,h]}")
    for t in range(4):
        for h in range(2): A(f"v_permlane16_swap_b32 v{val[t,h]}, v{val[t+4,h]}")
    for t in range(4):
        for h in range(2): A(f"v_add_f32 v{val[t,h]}, v{val[t,h]}, v{val[t+4,h]}")
    for t in range(2):
        for h in range(2):
            o = 160 + 2*t + h
            A(f"v_add_f32_dpp v{o}, v{val[t,h]}, v{val[t,h]} row_ror:8 row_mask:0xf bank_mask:0x3")
    for t in range(2):
        for h in range(2):
            o = 160 + 2*t + h
            A(f"v_add_f32_dpp v{o}, v{val[t+2,h]}, v{val[t+2,h]} row_ror:8 row_mask:0xf bank_mask:0xc")
    for h in range(2): A(f"v_add_f32_dpp v{164+h}, v{160+h}, v{160+h} row_shl:4 row_mask:0xf bank_mask:0x5")
    for h in range(2): A(f"v_add_f32_dpp v{164+h}, v{162+h}, v{162+h} row_shr:4 row_mask:0xf bank_mask:0xa")
    A("v_cvt_pk_bf16_f32 v166, v164, v165")
    A("v_lshlrev_b32 v164, 16, v166"); A("v_and_b32 v165, 0xffff0000, v166")
    stamp(2)
    A("v_mov_b32 v16, v164"); A("v_mov_b32 v17, v165")
    A("v_permlane32_swap_b32 v16, v17"); A("v_max_f32 v16, v16, v17")
    allred_swap("v_max_f32", 16, 17, 16)
    allred16("v_max_f32", 16, ["row_ror:8", "row_ror:4", "row_ror:2", "row_ror:1"])
    A("v_lshrrev_b32 v18, 5, v0"); A("v_lshlrev_b32 v18, 2, v18")
    A("s_mov_b32 exec_lo, 1"); A("s_mov_b32 exec_hi, 1")
    A(f"ds_max_f32 v18, v16 offset:{L_MAX}")
    A("s_mov_b32 exec_hi, 0")
    A(f"ds_add_u32 v5, v167 offset:{F_M}")
    A("s_mov_b64 exec, -1")
    spin_lds(F_M, 4, 5, 6)
    A(f"ds_read_b64 v[20:21], v5 offset:{L_MAX}")
    A("s_waitcnt lgkmcnt(0)")
    A("v_sub_f32 v22, v164, v20"); A("v_sub_f32 v23, v165, v21")
    A("v_mul_f32 v22, s59, v22"); A("v_mul_f32 v23, s59, v23")
    A("v_exp_f32 v22, v22"); A("v_exp_f32 v23, v23")
    A("v_cvt_pk_bf16_f32 v24, v22, v23")
    A(f"ds_write_b16 v4, v24 offset:{L_P}")
    A(f"ds_write_b16_d16_hi v4, v24 offset:{L_P+512}")
    ldsinc(F_P, 5, 167)
    stamp(3)
    A("s_cmp_ge_u32 s5, 28"); A("s_cbranch_scc1 L_Kx")
    pad()
    A("v_lshrrev_b32 v2, 3, v0"); A("v_and_b32 v3, 7, v0"); A("v_lshlrev_b32 v3, 4, v3")
    A("v_mul_u32_u24 v13, 7168, v2"); A("v_add_u32 v13, v13, v3")
    for r in range(48, 56): A(f"v_mov_b32 v{r}, 0")
    BO = 64; PO = 96; AV = 112
    for d in range(8): A(f"v_mov_b32 v{BO+4*d+3}, 0")
    for r in range(AV, AV+16): A(f"v_mov_b32 v{r}, 0")
    A("v_and_b32 v2, 1, v0"); A("v_lshrrev_b32 v3, 4, v0"); A("v_lshl_add_u32 v2, v3, 1, v2")
    A("v_bfe_u32 v3, v0, 1, 1")
    A("v_bfe_u32 v6, v0, 2, 2")
    LIN = "olin" in opt
    if LIN: A("v_lshlrev_b32 v1, 4, v0")
    else:
        A("v_lshlrev_b32 v1, 4, v2"); A("v_lshl_add_u32 v1, v3, 13, v1"); A("v_lshl_add_u32 v1, v6, 9, v1")
    A("v_lshlrev_b32 v12, 4, v6"); A("v_lshl_add_u32 v12, v3, 6, v12")
    A("v_lshlrev_b32 v4, 3, v2"); A("v_lshl_add_u32 v4, v3, 6, v4")
    A("v_mov_b32 v28, v7"); A("v_mov_b32 v29, v7")
    A("v_and_b32 v2, 15, v0"); A("v_lshlrev_b32 v2, 5, v2"); A("v_lshrrev_b32 v3, 4, v0"); A("v_lshl_add_u32 v2, v3, 3, v2")
    A("s_lshl_b32 s14, s8, 9"); A("v_add_u32 v2, s14, v2")
    A("s_mul_i32 s10, s5, 37"); A("s_lshr_b32 s10, s10, 8")
    A("s_mul_i32 s11, s10, 7"); A("s_sub_u32 s11, s5, s11")
    A("s_lshl_b32 s14, s10, 6"); A("s_and_b32 s14, s14, 128"); A("v_add_u32 v12, s14, v12")
    A("s_lshl2_add_u32 s10, s4, s10")
    A("s_lshl_b32 s62, s11, 7")
    A("v_lshrrev_b32 v3, 2, v0"); A("v_sub_u32 v3, v0, v3")
    A("v_lshlrev_b32 v15, 2, v3"); A("s_lshl_b32 s14, s8, 7"); A("v_add_u32 v15, s14, v15")
    A("s_lshr_b32 s14, s8, 1"); A("s_mul_i32 s14, s14, 896"); A("s_add_u32 s14, s14, s62")
    A("s_and_b32 s60, s8, 1"); A("s_lshl_b32 s60, s60, 6"); A("s_add_u32 s14, s14, s60")
    A("v_lshl_add_u32 v14, v3, 1, s14")
    A("v_lshlrev_b32 v30, 2, v0")
    A("v_mov_b32 v31, 0"); A("v_mov_b32 v6, 1.0")
    A("s_mov_b32 exec_lo, 0x88888888"); A("s_mov_b32 exec_hi, 0x88888888"); A("v_mov_b32 v31, 1.0"); A("s_mov_b64 exec, -1")
    srd(44, 16, 17, 1792)
    A("buffer_load_ushort v56, v14, s[44:47], 0 offen")
    A(f"s_movk_i32 s14, {AFLG}")
    A("buffer_load_dword v57, v5, s[40:43], s14 offen sc1")
    A("s_lshl2_add_u32 s60, s11, s8"); A("s_lshl_b32 s60, s60, 8"); A(f"s_add_u32 s60, s60, {ACC}")
    srd(44, 24, 25, 4096*896); srd(48, 32, 33, 1792*896)
    A("s_lshr_b32 s14, s8, 1"); A("s_lshl1_add_u32 s52, s10, s14")
    A("s_and_b32 s14, s8, 1"); A("s_lshl4_add_u32 s52, s52, s14"); A("s_mul_i32 s52, s52, 3584"); A("s_add_u32 s52, s52, s62")
    A("s_lshl_b32 s53, s10, 5"); A("s_add_u32 s53, s53, s8"); A("s_mul_i32 s53, s53, 1792"); A("s_add_u32 s53, s53, s62")
    A("s_lshl_b32 s61, s10, 14"); A(f"s_lshl_b32 s14, s8, {12 if LIN else 7}"); A("s_add_u32 s61, s61, s14"); A(f"s_add_u32 s61, s61, {OP}")
    A("s_add_u32 s63, s61, 4096")
    A("s_lshl2_add_u32 s55, s10, s8"); A("s_lshl_b32 s55, s55, 7"); A(f"s_add_u32 s55, s55, {HB}")
    spin_lds(F_MODE, 1, 5, 6, sleep=2)
    A(f"ds_read_b32 v6, v5 offset:{L_MODE}")
    A("s_add_u32 s54, s13, 1")
    A("s_waitcnt vmcnt(0) lgkmcnt(0)")
    A("v_add_u32 v1, v1, v6"); A("v_add_u32 v4, v4, v6")
    A("v_lshlrev_b32 v56, 16, v56")
    A("L_cz:")
    A("v_cmp_ne_u32 vcc, s54, v57")
    A("s_cbranch_vccnz L_rz")
    spin_lds(F_VI, 4, 5, 6, sleep=1)
    lh = lab("ph"); lrh = lab("rh")
    AF = "sc1" if "anont" in opt else PF
    def pollh():
        A(f"buffer_load_dwordx2 v[28:29], v4, s[40:43], s55 offen {PF}")
    def polla(u):
        if LIN: A(f"buffer_load_dwordx4 v[{PO+4*u}:{PO+4*u+3}], v1, s[40:43], s61 offen offset:{1024*u} {AF}")
        else: A(f"buffer_load_dwordx4 v[{PO+4*u}:{PO+4*u+3}], v1, s[40:43], s{61 if u < 2 else 63} offen offset:{2048*(u%2)} {AF}")
    A("s_cmp_eq_u32 s4, 7"); A("s_cbranch_scc1 L_noh")
    pollh()
    for j in range(2): A(f"buffer_load_dwordx4 v[{48+4*j}:{51+4*j}], v13, s[48:51], s53 offen offset:{896*j} nt")
    A("L_noh:")
    for j in range(4): A(f"buffer_load_dwordx4 v[{32+4*j}:{35+4*j}], v13, s[44:47], s52 offen offset:{896*j} nt")
    srd(44, 34, 35, 1792)
    A("s_mov_b32 s52, 0x77777777"); A("s_mov_b32 s53, 0x377")
    stamp(8)
    pad()
    A("s_waitcnt vmcnt(6)")
    A(f"{lh}:")
    tagcheck([28, 29], 7, 8, 9, lrh)
    A("v_perm_b32 v28, v29, v28, s57")
    for rg in range(4): A(f"v_mov_b32_dpp v{AV+4*rg+2}, v28 quad_perm:[0,1,2,3] row_mask:0xf bank_mask:{1<<rg}")
    spin_lds(F_X, 1, 5, 6)
    A(f"ds_read_b128 v[24:27], v12 offset:{L_W}")
    A(f"s_waitcnt vmcnt({getopt('wog', 1)})")
    spin_lds(F_V, 4, 5, 6, sleep=getopt("vsl", 0))
    A("s_setprio 3")
    stamp(11)
    for u in range(4): polla(u)
    A("s_waitcnt vmcnt(4)")
    stamp(9)
    for c in range(4):
        for e in range(2):
            d = 2*c + e
            for q, (lo, hi) in enumerate([(32, 36), (40, 44), (48, 52)]):
                A(f"v_perm_b32 v{BO+4*d+q}, v{hi+c}, v{lo+c}, s{56+e}")
    pad()
    if stamps:
        A("s_waitcnt vmcnt(0)"); stamp(10)
    SO = 128
    A("L_ck:")
    A("s_waitcnt vmcnt(0)")
    A(f"v_xor_b32 v8, v{PO}, v7")
    for u in range(1, 4): A(f"v_bitop3_b32 v8, v8, v{PO+4*u}, v7 bitop3:0xf6")
    A("v_cmp_ne_u32_sdwa vcc, v8, v5 src0_sel:BYTE_0 src1_sel:DWORD")
    for k in range(2): A(f"v_pk_mul_f32 v[{SO+2*k}:{SO+2*k+1}], v[{PO+2*k}:{PO+2*k+1}], v[24:25] op_sel_hi:[1,0]")
    A("s_cbranch_vccnz L_ra")
    stamp(4)
    for u in range(1, 4):
        w = 24 + (u & 2)
        sel = "op_sel:[0,1,0] op_sel_hi:[1,1,1]" if u & 1 else "op_sel_hi:[1,0,1]"
        for k in range(2): A(f"v_pk_fma_f32 v[{SO+2*k}:{SO+2*k+1}], v[{PO+4*u+2*k}:{PO+4*u+2*k+1}], v[{w}:{w+1}], v[{SO+2*k}:{SO+2*k+1}] {sel}")
    rest = [PO + 4*u + k for u in range(4) for k in range(1, 4)]
    def chk(n):
        for _ in range(n):
            r = rest.pop(0)
            A(f"v_bitop3_b32 v10, v10, v{r}, v7 bitop3:0xf6" if len(rest) < 11 else f"v_xor_b32 v10, v{r}, v7")
    chk(1)
    for st in ("row_ror:4", "row_ror:8"):
        for k in range(4): A(f"v_add_f32_dpp v{SO+k}, v{SO+k}, v{SO+k} {st} row_mask:0xf bank_mask:0xf")
    A(f"v_cvt_pk_bf16_f32 v8, v{SO}, v{SO+1}"); A(f"v_cvt_pk_bf16_f32 v9, v{SO+2}, v{SO+3}")
    chk(1)
    def amov(rg):
        for k in range(2): A(f"v_mov_b32_dpp v{AV+4*rg+k}, v{8+k} quad_perm:[0,1,2,3] row_mask:0xf bank_mask:{1<<rg}")
    amov(0); amov(1)
    for rg in range(4):
        for e in range(2):
            d = 2*rg + e; a = 16 + 4*e
            c = "0" if rg == 0 else f"v[{a}:{a+3}]"
            A(f"v_mfma_f32_16x16x32_bf16 v[{a}:{a+3}], v[{AV+4*rg}:{AV+4*rg+3}], v[{BO+4*d}:{BO+4*d+3}], {c}")
            if rg >= 2 or e == 0: chk(1)
        if rg < 2: amov(rg + 2)
    chk(len(rest))
    A("v_cmp_ne_u32_sdwa vcc, v10, v5 src0_sel:BYTE_0 src1_sel:DWORD")
    A("s_cbranch_vccnz L_ra")
    for e in range(2):
        A(f"v_add_f32_dpp v{10+e}, v{16+4*e+1}, v{16+4*e} row_ror:8 row_mask:0xf bank_mask:0x3")
    for e in range(2):
        A(f"v_add_f32_dpp v{10+e}, v{16+4*e+2}, v{16+4*e+3} row_ror:8 row_mask:0xf bank_mask:0xc")
    A(f"ds_write_b64 v2, v[10:11] offset:{L_Y}")
    A("s_waitcnt lgkmcnt(0)")
    A("s_barrier")
    A(f"ds_read2st64_b32 v[16:17], v15 offset0:{L_Y//256} offset1:{L_Y//256+2}")
    A(f"ds_read2st64_b32 v[18:19], v15 offset0:{L_Y//256+4} offset1:{L_Y//256+6}")
    A("s_mov_b32 exec_hi, 0xfff")
    A("s_waitcnt lgkmcnt(0)")
    A("v_pk_add_f32 v[16:17], v[16:17], v[18:19]")
    A("v_add_f32 v16, v16, v17")
    A("v_cndmask_b32 v17, v31, v16, s[52:53]")
    stamp(5)
    A("buffer_atomic_add_f32 v17, v30, s[40:43], s60 offen sc0 sc1")
    A("v_add_f32 v16, v16, v56")
    A("v_mov_b32 v19, 0x41f80000")
    A("s_waitcnt vmcnt(0)")
    A("v_mov_b32_dpp v18, v17 quad_perm:[3,3,3,3] row_mask:0xf bank_mask:0xf")
    A("v_add_f32 v16, v16, v17")
    A("v_cmp_eq_f32 vcc, v18, v19")
    A("v_cvt_pk_bf16_f32 v16, v16, v16")
    if "delay" in opt:
        A("L_dly:"); A("s_memrealtime s[98:99]"); A("s_waitcnt lgkmcnt(0)"); A("s_sub_u32 s98, s98, s96"); A("s_cmp_lt_u32 s98, 4000"); A("s_cbranch_scc1 L_dly")
    A("s_and_b64 exec, vcc, s[52:53]")
    A("s_cbranch_execz L_Ky")
    A("buffer_store_short v16, v14, s[44:47], 0 offen")
    A(f"s_cmp_lg_u32 s60, {ACC}"); A("s_cbranch_scc1 L_Ky")
    A("s_and_b64 exec, exec, 1")
    A("s_cbranch_execz L_Ky")
    A("v_mov_b32 v6, s54")
    A("buffer_store_dword v6, v5, s[40:43], 0 offen")
    A("L_Ky:")
    stamp(6)
    if "dbg" in opt:
        A("s_cmp_lg_u32 s8, 0"); A("s_cbranch_scc1 L_Kx")
        A("s_mov_b64 exec, -1")
        A("ds_read_b32 v3, v5 offset:0x40")
        A("s_waitcnt lgkmcnt(0)")
        srd(44, 36, 37, 256)
        A("s_not_b32 s14, s64")
        A("v_writelane_b32 v3, s14, 1")
        for n, k in enumerate([0, 1, 7, 3, 9, 4, 5, 6]): A(f"v_writelane_b32 v3, s{64+2*k}, {n+2}")
        A("s_mov_b64 exec, 0x3ff")
        A("buffer_atomic_umax v3, v30, s[44:47], 0 offen sc1")
    flush([(1, 3), (2, 4), (3, 5), (4, 9), (5, 10), (6, 12), (7, 2), (8, 23), (9, 24), (10, 25), (11, 26)], persub=[(1, 44), (2, 48), (4, 52), (6, 56)])
    A("L_Kx:")
    A("s_endpgm")
    A("L_ra:")
    A("s_mov_b64 exec, vcc")
    for u in range(4): polla(u)
    A("s_mov_b64 exec, -1")
    bail("L_ck")
    A(f"{lrh}:")
    pollh()
    A("s_waitcnt vmcnt(0)")
    bail(lh)
    A(f"{lrq}:")
    A(f"ds_read_b32 v6, v5 offset:{L_MODE}")
    A("s_waitcnt lgkmcnt(0)")
    A("v_add_u32 v6, v6, v3")
    qpoll(6)
    A("s_waitcnt vmcnt(0)")
    bail(lq)
    A("L_rz:")
    A("s_sleep 8")
    A(f"s_movk_i32 s14, {AFLG}")
    A("buffer_load_dword v57, v5, s[40:43], s14 offen sc1")
    A("s_waitcnt vmcnt(0)")
    bail("L_cz")
    A("L_ZERO:")
    A("s_waitcnt lgkmcnt(0)")
    common()
    A("v_lshlrev_b32 v1, 4, v0")
    for r in range(4, 8): A(f"v_mov_b32 v{r}, 0")
    for k in range(7):
        A(f"s_movk_i32 s14, {ACC + 1024*k}")
        A("buffer_store_dwordx4 v[4:7], v1, s[40:43], s14 offen sc1")
    A("s_waitcnt vmcnt(0) lgkmcnt(0)")
    A("s_add_u32 s54, s13, 1"); A("v_mov_b32 v2, s54")
    A(f"s_movk_i32 s14, {AFLG}")
    A("s_mov_b64 exec, 1")
    A("buffer_store_dword v2, v4, s[40:43], s14 offen sc1")
    A("s_endpgm")

    A("L_V:")
    A("s_setprio 1")
    A("v_lshrrev_b32 v2, 3, v0"); A("v_lshlrev_b32 v1, 12, v2")
    A("v_and_b32 v2, 7, v0"); A("v_lshl_add_u32 v1, v2, 4, v1")
    A("s_lshl_b32 s14, s8, 7"); A("v_add_u32 v1, s14, v1")
    A("s_and_b32 s62, s9, 7"); A("s_lshl_b32 s62, s62, 9"); A("s_lshr_b32 s14, s9, 3"); A("s_lshl_b32 s14, s14, 15"); A("s_or_b32 s62, s62, s14")
    A("s_waitcnt lgkmcnt(0)")
    srd(44, 20, 21, 131072, "s60")
    common()
    A("v_and_b32 v6, 1, v0"); A("v_lshrrev_b32 v7, 4, v0"); A("v_lshl_add_u32 v6, v7, 1, v6"); A("v_lshlrev_b32 v6, 4, v6")
    A("v_bfe_u32 v7, v0, 1, 1"); A("v_lshl_add_u32 v6, v7, 9, v6"); A(f"v_add_u32 v6, {L_P}, v6")
    for rg in range(4): A(f"v_mov_b32 v{2+rg}, {L_ZERO}")
    for rg in range(4): A(f"v_mov_b32_dpp v{2+rg}, v6 quad_perm:[0,1,2,3] row_mask:0xf bank_mask:{1<<rg}")
    A("v_mov_b32 v6, 0"); A("v_mov_b32 v16, 1")
    def oaddr(va, vt):
        A(f"v_bfe_u32 v{vt}, v0, 3, 1")
        if LIN:
            A(f"v_and_b32 v{va}, 1, v0"); A(f"v_lshlrev_b32 v{va}, 4, v{va}"); A(f"v_lshl_add_u32 v{va}, v{vt}, 15, v{va}")
            A(f"v_bfe_u32 v{vt}, v0, 1, 2"); A(f"v_lshl_add_u32 v{va}, v{vt}, 8, v{va}")
            A(f"v_lshrrev_b32 v{vt}, 5, v0"); A(f"v_lshl_add_u32 v{va}, v{vt}, 12, v{va}")
        else:
            A(f"v_and_b32 v{va}, 7, v0"); A(f"v_lshlrev_b32 v{va}, 4, v{va}"); A(f"v_lshl_add_u32 v{va}, v{vt}, 15, v{va}")
            A(f"v_lshrrev_b32 v{vt}, 5, v0"); A(f"v_lshl_add_u32 v{va}, v{vt}, 7, v{va}")
    if LIN:
        A("s_lshl_b32 s61, s4, 16"); A("s_lshl_b32 s14, s8, 13"); A("s_add_u32 s61, s61, s14")
        A("s_bfe_u32 s14, s5, 0x20002"); A("s_lshl_b32 s14, s14, 10"); A("s_add_u32 s61, s61, s14")
        A("s_and_b32 s14, s5, 3"); A("s_lshl_b32 s14, s14, 6"); A("s_add_u32 s61, s61, s14")
        A("s_lshl_b32 s14, s6, 5"); A("s_add_u32 s61, s61, s14"); A(f"s_add_u32 s61, s61, {OP}")
    else:
        A("s_lshl_b32 s61, s4, 16"); A("s_lshr_b32 s14, s8, 1"); A("s_lshl_b32 s14, s14, 14"); A("s_add_u32 s61, s61, s14")
        A("s_lshl_b32 s14, s5, 9"); A("s_add_u32 s61, s61, s14")
        A("s_and_b32 s14, s8, 1"); A("s_lshl_b32 s14, s14, 8"); A("s_add_u32 s61, s61, s14"); A(f"s_add_u32 s61, s61, {OP}")
    A(f"s_add_u32 s63, s61, {FAR}")
    A("s_mov_b32 s52, 0xffff"); A("s_mov_b32 s53, 0xffff")
    if "prewarm" in opt:
        oaddr(17, 18)
        A("s_waitcnt lgkmcnt(0)")
        for r in range(20, 24): A(f"v_mov_b32 v{r}, s13")
        A("s_mov_b64 exec, s[52:53]")
        A("buffer_store_dwordx4 v[20:23], v17, s[40:43], s61 offen")
        A("s_mov_b64 exec, -1")
    VD = 40
    for t in range(32):
        A(f"s_xor_b32 s14, s62, {(t>>3)*32768 + (t&7)*512}")
        r = VD + 4*t
        A(f"buffer_load_dwordx4 v[{r}:{r+3}], v1, s[44:47], s14 offen nt")
        if t == getopt("tkat", 22): ldsinc(F_V24, 6, 16)
    ldsinc(F_VI, 6, 16)
    stamp(1)
    pad()
    spin_lds(F_P, 4, 6, 7)
    A("s_setprio 3")
    def rdA(g4, base):
        for rg in range(4): A(f"ds_read_b128 v[{base+4*rg}:{base+4*rg+3}], v{2+rg} offset:{128*g4}")
    Abase = {0: 24, 1: VD, 2: VD+16, 3: 24}
    rdA(0, 24)
    for g4 in range(3):
        ab = Abase[g4]; D = VD + 32*g4
        if g4 == 2: pad()
        A(f"s_waitcnt vmcnt({24-8*g4}) lgkmcnt(0)")
        for c in range(4):
            for e in range(2):
                for q in range(4):
                    A(f"v_perm_b32 v{16+4*e+q}, v{D+8*q+4+c}, v{D+8*q+c}, s{56+e}")
            for e in range(2):
                a = 8 + 4*e
                cc = "0" if (g4 == 0 and c == 0) else f"v[{a}:{a+3}]"
                A(f"v_mfma_f32_16x16x32_bf16 v[{a}:{a+3}], v[{ab+4*c}:{ab+4*c+3}], v[{16+4*e}:{19+4*e}], {cc}")
        if g4 == 0:
            rdA(1, VD); rdA(2, VD+16); rdA(3, 24)
    mktag(3)
    spin_lds(F_MODE, 1, 6, 7)
    A(f"ds_read_b32 v7, v6 offset:{L_MODE}")
    A("v_mov_b32 v2, 1")
    oaddr(1, 4)
    A("s_waitcnt lgkmcnt(0)")
    A("v_readfirstlane_b32 s54, v7")
    TT = VD + 32
    D = VD + 96
    pad()
    def vperm(q, c):
        for e in range(2): A(f"v_perm_b32 v{TT+4*(2*c+e)+q}, v{D+8*q+4+c}, v{D+8*q+c}, s{56+e}")
    for q in range(3):
        A(f"s_waitcnt vmcnt({6-2*q})")
        for c in range(4): vperm(q, c)
    A("s_waitcnt vmcnt(0)")
    stamp(2)
    vperm(3, 0); vperm(3, 1)
    for c in range(4):
        for e in range(2):
            a = 8 + 4*e; d = 2*c + e
            A(f"v_mfma_f32_16x16x32_bf16 v[{a}:{a+3}], v[{24+4*c}:{27+4*c}], v[{TT+4*d}:{TT+4*d+3}], v[{a}:{a+3}]")
        if c < 2: vperm(3, c + 2)
    for e in range(2): A(f"v_add_f32_dpp v{4+e}, v{8+4*e+1}, v{8+4*e} row_ror:8 row_mask:0xf bank_mask:0x3")
    for e in range(2): A(f"v_add_f32_dpp v{4+e}, v{8+4*e+2}, v{8+4*e+3} row_ror:8 row_mask:0xf bank_mask:0xc")
    quad16(16, 4, 5, 3)
    A("s_mov_b64 exec, s[52:53]")
    A("buffer_store_dwordx4 v[16:19], v1, s[40:43], s61 offen")
    A("s_cmp_eq_u32 s54, 0"); A("s_cbranch_scc1 L_onear")
    A("buffer_store_dwordx4 v[16:19], v1, s[40:43], s63 offen sc1")
    A("L_onear:")
    A("s_mov_b64 exec, 1")
    A(f"ds_add_u32 v6, v2 offset:{F_V}")
    stamp(3)
    if "dbg" in opt:
        A("s_waitcnt lgkmcnt(0)"); A("v_mov_b32 v2, s68"); A("ds_max_u32 v6, v2 offset:0x40"); A("s_waitcnt lgkmcnt(0)")
    elif stamps:
        A("s_waitcnt vmcnt(0)"); stamp(4)
        A("s_barrier"); A("s_sleep 30")
    flush([(1, 6), (2, 7), (3, 8)], persub=[(1, 36), (2, 40), (4, 60)])
    A("s_endpgm")

    A("L_S2:")
    common()
    A(f"s_waitcnt vmcnt({16-XL})")
    X = 96
    for k in range(8):
        A(f"v_lshlrev_b32 v{X+2*k}, 16, v{8+k}"); A(f"v_and_b32 v{X+2*k+1}, 0xffff0000, v{8+k}")
    for k in range(8): A(f"v_add_f32 v{8+k}, v{X+2*k}, v{X+2*k+1}")
    for k in range(4): A(f"v_add_f32 v{8+k}, v{8+k}, v{12+k}")
    A("v_add_f32 v8, v8, v10"); A("v_add_f32 v9, v9, v11"); A("v_add_f32 v8, v8, v9")
    def red_b(r, t):
        allred16("v_add_f32", r, ["quad_perm:[1,0,3,2]", "row_ror:4", "row_ror:8"])
        allred_swap("v_add_f32", r, t, 16); allred_swap("v_add_f32", r, t, 32)
    red_b(8, 9)
    A("v_mul_f32 v8, 0x3b124925, v8")
    for k in range(16): A(f"v_sub_f32 v{X+k}, v{X+k}, v8")
    A(f"v_mul_f32 v10, v{X}, v{X}"); A(f"v_mul_f32 v11, v{X+1}, v{X+1}")
    for k in range(2, 16): A(f"v_fmac_f32 v{10+k%2}, v{X+k}, v{X+k}")
    A("v_add_f32 v10, v10, v11")
    A("v_cndmask_b32 v10, 0, v10, vcc")
    red_b(10, 9)
    A("v_mul_f32 v10, 0x3b124925, v10")
    rnd(8); rnd(10)
    A("v_add_f32 v10, 0x3727c5ac, v10"); rnd(10)
    A("v_sqrt_f32 v10, v10"); rnd(10)
    A("v_rcp_f32 v11, v10")
    A("v_fma_f32 v12, -v10, v11, 1.0"); A("v_fma_f32 v11, v12, v11, v11")
    pad(0)
    A(f"s_waitcnt vmcnt({14-XL})")
    for k in range(7):
        A(f"v_lshlrev_b32 v{X+2*k}, 16, v{16+k}"); A(f"v_and_b32 v{X+2*k+1}, 0xffff0000, v{16+k}")
    for k in range(14): A(f"v_sub_f32 v{X+k}, v{X+k}, v8")
    for k in range(7): A(f"v_cvt_pk_bf16_f32 v{16+k}, v{X+2*k}, v{X+2*k+1}")
    for k in range(7):
        A(f"v_lshlrev_b32 v{X+2*k}, 16, v{16+k}"); A(f"v_and_b32 v{X+2*k+1}, 0xffff0000, v{16+k}")
    for k in range(14): A(f"v_mul_f32 v{X+k}, v{X+k}, v11")
    for k in range(7): A(f"v_cvt_pk_bf16_f32 v{16+k}, v{X+2*k}, v{X+2*k+1}")
    A("v_mov_b32 v23, 0")
    TB = 88
    A("v_mov_b32 v95, 0"); A("v_mov_b32 v31, 0")
    AC = 112
    A("s_waitcnt vmcnt(0) lgkmcnt(0)")
    stamp(8)
    mktag(1)
    for d in range(8):
        c = d >> 1; e = d & 1; T = TB if e == 0 else 24
        for q in range(7): A(f"v_perm_b32 v{T+q}, v{WD+8*q+4+c}, v{WD+8*q+c}, s{56+e}")
        a = AC + 4*d
        A(f"v_mfma_f32_16x16x32_bf16 v[{a}:{a+3}], v[16:19], v[{T}:{T+3}], 0")
        A(f"v_mfma_f32_16x16x32_bf16 v[{a}:{a+3}], v[20:23], v[{T+4}:{T+7}], v[{a}:{a+3}]")
    pad(1)
    A("s_cmp_eq_u32 s3, 1"); A("s_cbranch_scc1 L_A1post")
    A("v_and_b32 v5, 7, v0"); A("v_lshlrev_b32 v5, 4, v5"); A("v_lshrrev_b32 v6, 5, v0"); A("v_lshl_add_u32 v5, v6, 7, v5")
    A("v_bfe_u32 v6, v0, 3, 1"); A("v_lshl_add_u32 v5, v6, 13, v5")
    for rg in range(4):
        for half in range(2):
            for e in range(2):
                a = AC + 4*(2*rg+e)
                if half == 0: A(f"v_add_f32_dpp v{8+e}, v{a+1}, v{a} row_ror:8 row_mask:{1<<rg} bank_mask:0x3")
                else: A(f"v_add_f32_dpp v{8+e}, v{a+2}, v{a+3} row_ror:8 row_mask:{1<<rg} bank_mask:0xc")
    quad16(12, 8, 9, 1)
    A("s_lshl_b32 s14, s4, 14"); A("s_lshl_b32 s62, s61, 11"); A("s_add_u32 s14, s14, s62")
    A("s_and_b32 s62, s5, 7"); A("s_lshl_b32 s62, s62, 8"); A("s_add_u32 s14, s14, s62"); A(f"s_add_u32 s62, s14, {QP}")
    A("s_mov_b32 exec_lo, 0xffff"); A("s_mov_b32 exec_hi, 0xffff")
    if "noqst" not in opt: A("buffer_store_dwordx4 v[12:15], v5, s[40:43], s62 offen" + (" nt" if "stnt" in opt else ""))
    stamp(1)
    def farstore(regs, va, lskip):
        A("v_mov_b32 v6, 0")
        spin_lds(F_MODE, 1, 6, 7, sleep=8)
        A(f"ds_read_b32 v7, v6 offset:{L_MODE}")
        A("s_waitcnt lgkmcnt(0)")
        A("v_readfirstlane_b32 s54, v7")
        A("s_cmp_eq_u32 s54, 0"); A(f"s_cbranch_scc1 {lskip}")
        A("s_add_u32 s62, s62, s54")
        A(f"buffer_store_dwordx4 {regs}, v{va}, s[40:43], s62 offen sc1")
        A(f"{lskip}:")
    farstore("v[12:15]", 5, "L_qnear")
    ow = getopt("owarm", 0)
    if ow:
        if ow == 2: spin_lds(F_V24, 4, 6, 7, sleep=4)
        if ow == 3: spin_lds(F_P, 4, 6, 7, sleep=4)
        A("s_mov_b32 exec_hi, 0")
        A("v_lshlrev_b32 v5, 7, v0")
        A("s_lshl_b32 s14, s4, 5"); A("s_add_u32 s14, s14, s5"); A("s_lshl_b32 s14, s14, 11"); A(f"s_add_u32 s14, s14, {OP}")
        A("buffer_load_dword v8, v5, s[40:43], s14 offen sc1 nt")
        if "owarm1" not in opt:
            A("s_waitcnt vmcnt(0)")
            A("buffer_load_dword v8, v5, s[40:43], s14 offen sc1")
    stamp(2)
    flush([(0, 0), (1, 1), (8, 20), (4, 28), (2, 16)])
    A("s_endpgm")
    A("L_A1post:")
    A("v_lshlrev_b32 v5, 4, v0")
    A("s_lshl3_add_u32 s62, s60, s61"); A("s_lshl_b32 s62, s62, 10"); A(f"s_add_u32 s62, s62, {FPB}")
    A("s_nop 4")
    for rg in range(4):
        for b in range(2):
            for e in range(2):
                a = AC + 4*(2*rg+e) + 2*b
                A(f"v_mov_b32_dpp v{8+2*b+e}, v{a} quad_perm:[0,1,2,3] row_mask:{1<<rg} bank_mask:0xf")
    for k in range(4): tag(8+k, 1)
    if "nofst" not in opt: A("buffer_store_dwordx4 v[8:11], v5, s[40:43], s62 offen" + (" nt" if "stnt" in opt else ""))
    farstore("v[8:11]", 5, "L_fnear")
    A("s_cmp_ge_u32 s5, 16"); A("s_cbranch_scc1 L_end")
    A("v_and_b32 v5, 15, v0"); A("v_lshlrev_b32 v5, 4, v5"); A("v_lshrrev_b32 v3, 4, v0"); A("v_lshl_add_u32 v5, v3, 10, v5")
    A("s_lshr_b32 s14, s5, 2"); A("s_lshl2_add_u32 s60, s4, s14"); A("s_lshl_b32 s60, s60, 13")
    A("s_and_b32 s14, s5, 3"); A("s_lshl_b32 s14, s14, 8"); A("s_add_u32 s60, s60, s14"); A(f"s_add_u32 s60, s60, {FPB}")
    A("s_add_u32 s60, s60, s54"); A("s_add_u32 s61, s60, 4096")
    A("v_and_b32 v4, 7, v0"); A("v_lshlrev_b32 v4, 3, v4"); A("v_lshrrev_b32 v3, 5, v0"); A("v_lshl_add_u32 v4, v3, 6, v4")
    A("s_lshl4_add_u32 s62, s4, s5"); A("s_lshl_b32 s62, s62, 7"); A(f"s_add_u32 s62, s62, {HB}")
    lp = lab("pf"); lr = lab("rf")
    A(f"{lp}:")
    A(f"buffer_load_dwordx4 v[{WD}:{WD+3}], v5, s[40:43], s60 offen {PF}")
    A(f"buffer_load_dwordx4 v[{WD+4}:{WD+7}], v5, s[40:43], s61 offen {PF}")
    A("s_waitcnt vmcnt(0)")
    if "nofst" not in opt: tagcheck(list(range(WD, WD+8)), 1, 8, 9, lr)
    for k in range(4): A(f"v_add_f32 v{WD+k}, v{WD+k}, v{WD+4+k}")
    A(f"v_permlane32_swap_b32 v{WD}, v{WD+2}"); A(f"v_permlane32_swap_b32 v{WD+1}, v{WD+3}")
    for k in range(2): A(f"v_add_f32 v{WD+k}, v{WD+k}, v{WD+2+k}")
    for k in range(2): allred_swap("v_add_f32", WD+k, WD+2+k, 16)
    for k in range(2): rnd(WD+k)
    for k in range(2): A(f"v_mov_b32_dpp v{WD+4+k}, v{WD+k} row_ror:8 row_mask:0xf bank_mask:0xf")
    for k in range(2): A(f"v_mul_f32 v{8+k}, v{WD+k}, v{WD+k}")
    A("s_mov_b32 s14, 0x3d372713")
    for k in range(2): A(f"v_fma_f32 v{8+k}, v{8+k}, s14, 1.0")
    for k in range(2): A(f"v_mul_f32 v{8+k}, v{8+k}, v{WD+k}")
    for k in range(2): A(f"v_mul_f32 v{8+k}, 0xc0135761, v{8+k}")
    for k in range(2): A(f"v_exp_f32 v{8+k}, v{8+k}")
    for k in range(2): A(f"v_add_f32 v{8+k}, 1.0, v{8+k}")
    for k in range(2): A(f"v_rcp_f32 v{8+k}, v{8+k}")
    for k in range(2): A(f"v_mul_f32 v{8+k}, v{8+k}, v{WD+k}")
    for k in range(2): rnd(8+k)
    for k in range(2): A(f"v_mul_f32 v{8+k}, v{8+k}, v{WD+4+k}")
    for k in range(2): rnd(8+k)
    for k in range(2): A(f"v_or_b32 v{8+k}, v{8+k}, v1")
    A("s_mov_b32 exec_lo, 0xff"); A("s_mov_b32 exec_hi, 0xff")
    A("s_cmp_lg_u32 s54, 0"); A("s_cbranch_scc1 L_hfar")
    A("buffer_store_dwordx2 v[8:9], v4, s[40:43], s62 offen")
    stamp(1)
    flush([(1, 13)], cond_sub0=False)
    A("s_endpgm")
    A("L_hfar:")
    A("s_add_u32 s62, s62, s54")
    A("buffer_store_dwordx2 v[8:9], v4, s[40:43], s62 offen sc1")
    A("s_endpgm")
    A(f"{lr}:")
    A("s_sleep 8")
    bail(lp)

    A("L_A3:")
    A("s_setprio 3")
    common()
    srd(44, 36, 37, 256)
    A("s_getreg_b32 s60, hwreg(HW_REG_XCC_ID, 0, 4)")
    if "forcefar" in opt: A("s_and_b32 s60, s5, 1")
    A("s_lshl_b32 s61, s4, 7"); A(f"s_add_u32 s61, s61, {IDS}")
    A("s_lshl2_add_u32 s62, s5, s61")
    A("v_mov_b32 v6, 0"); A("v_lshlrev_b32 v4, 2, v0")
    A("s_waitcnt lgkmcnt(0)")
    mktag(1)
    A("s_add_u32 s14, s13, 1"); A("s_lshl4_add_u32 s14, s14, s60")
    A("v_mov_b32 v2, s14")
    A("s_mov_b64 exec, 1")
    A("buffer_store_dword v2, v6, s[40:43], s62 offen")
    A("s_mov_b64 exec, -1")
    spin_lds(F_KI, 4, 6, 7, sleep=8)
    A("s_mov_b32 exec_hi, 0")
    A("s_mov_b32 s63, 5"); A("s_mov_b32 s54, 0")
    A("L_pi:")
    A(f"buffer_load_dword v3, v4, s[40:43], s61 offen {PF}")
    A("s_waitcnt vmcnt(0)")
    A("v_cmp_ne_u32 vcc, v2, v3")
    A("s_cbranch_vccnz L_pifail")
    A("L_pidone:")
    A("v_mov_b32 v2, s54"); A("v_mov_b32 v7, 1")
    A(f"ds_write_b32 v6, v2 offset:{L_MODE}")
    A(f"ds_write_b32 v6, v7 offset:{F_MODE}")
    A("s_mov_b64 exec, -1")
    stamp(2)
    A("v_lshlrev_b32 v5, 4, v0")
    A("v_lshrrev_b32 v4, 5, v0"); A("v_lshlrev_b32 v4, 2, v4")
    spin_lds(F_P, 4, 6, 7, sleep=4)
    A(f"ds_read_b128 v[8:11], v5 offset:{L_P}")
    A(f"ds_read_b32 v16, v4 offset:{L_MAX}")
    A("s_waitcnt lgkmcnt(0)")
    for k in range(4): A(f"v_lshlrev_b32 v{12+k}, 16, v{8+k}")
    for k in range(4): A(f"v_and_b32 v{8+k}, 0xffff0000, v{8+k}")
    for k in range(4): A(f"v_add_f32 v{8+k}, v{8+k}, v{12+k}")
    A("v_add_f32 v8, v8, v9"); A("v_add_f32 v10, v10, v11"); A("v_add_f32 v17, v8, v10")
    allred_swap("v_add_f32", 17, 13, 16)
    allred16("v_add_f32", 17, ["row_ror:8", "row_ror:4", "row_ror:2", "row_ror:1"])
    tag(16, 1); tag(17, 1)
    A("v_mov_b32 v18, v16"); A("v_mov_b32 v19, v17")
    A("v_permlane32_swap_b32 v16, v18"); A("v_permlane32_swap_b32 v17, v19")
    A("s_lshl_b32 s61, s4, 9"); A(f"s_add_u32 s61, s61, {ST}")
    A("s_add_u32 s61, s61, s54")
    A("s_lshl_b32 s14, s5, 4"); A("s_add_u32 s14, s14, s61")
    A("s_mov_b64 exec, 1")
    A("s_cmp_lg_u32 s54, 0"); A("s_cbranch_scc1 L_sfar")
    A("buffer_store_dwordx4 v[16:19], v6, s[40:43], s14 offen")
    A("s_branch L_sdone")
    A("L_sfar:")
    A("buffer_store_dwordx4 v[16:19], v6, s[40:43], s14 offen sc1")
    A("L_sdone:")
    A("s_mov_b64 exec, -1")
    A("s_cmp_ge_u32 s5, 28"); A("s_cbranch_scc1 L_end")
    A("v_and_b32 v5, 31, v0"); A("v_lshlrev_b32 v5, 4, v5"); A("v_lshl_add_u32 v5, v4, 1, v5")
    A("v_and_b32 v2, 3, v0"); A("v_lshlrev_b32 v2, 4, v2"); A("v_bfe_u32 v3, v0, 2, 2"); A("v_lshl_add_u32 v2, v3, 2, v2")
    A("v_lshrrev_b32 v3, 4, v0"); A("v_lshl_add_u32 v2, v3, 6, v2")
    if "latestat" in opt: spin_lds(F_V24, 4, 6, 7, sleep=2)
    else: A("s_waitcnt vmcnt(0)")
    lp = lab("ps"); lr = lab("rs")
    A(f"{lp}:")
    A(f"buffer_load_dwordx2 v[8:9], v5, s[40:43], s61 offen {PF}")
    A("s_waitcnt vmcnt(0)")
    tagcheck([8, 9], 1, 12, 13, lr)
    A("v_and_b32 v8, 0xffff0000, v8")
    A("v_mov_b32 v12, v8")
    allred16("v_max_f32", 12, ["row_ror:8", "row_ror:4", "row_ror:2", "row_ror:1"])
    A("v_sub_f32 v8, v8, v12"); A("v_mul_f32 v8, s59, v8"); A("v_exp_f32 v8, v8")
    A("v_mul_f32 v9, v9, v8")
    allred16("v_add_f32", 9, ["row_ror:8", "row_ror:4", "row_ror:2", "row_ror:1"])
    A("v_rcp_f32 v10, v9")
    A("v_fma_f32 v11, -v9, v10, 1.0"); A("v_fma_f32 v10, v11, v10, v10")
    A("v_mul_f32 v8, v8, v10")
    A(f"ds_write_b32 v2, v8 offset:{L_W}")
    A("v_mov_b32 v7, 1")
    A("s_mov_b64 exec, 1")
    A(f"ds_write_b32 v6, v7 offset:{F_X}")
    A("s_waitcnt lgkmcnt(0)")
    stamp(1)
    flush([(1, 14), (2, 15)], cond_sub0=False)
    A("s_endpgm")
    A(f"{lr}:")
    A(f"s_sleep {getopt('sslp', 8)}")
    bail(lp)
    A("L_pifail:")
    A("s_sub_u32 s15, s15, 1"); A("s_cbranch_scc1 L_end")
    A("s_sleep 8")
    A("s_sub_u32 s63, s63, 1")
    A("s_cmp_gt_i32 s63, 0"); A("s_cbranch_scc1 L_pi")
    A("s_or_b32 s14, s60, 0x80"); A("v_mov_b32 v8, s14")
    A("s_lshl_b32 s62, s4, 5")
    A("s_cmp_lg_u32 s63, 0"); A("s_cbranch_scc1 L_piread")
    A("s_add_u32 s14, s62, s5")
    A("s_mov_b32 exec_lo, 1")
    A("buffer_store_byte v8, v6, s[44:47], s14 offen sc1")
    A("s_mov_b32 exec_lo, -1")
    A("L_piread:")
    A("buffer_load_ubyte v3, v0, s[44:47], s62 offen sc1")
    A("s_waitcnt vmcnt(0)")
    A("v_cmp_eq_u32 vcc, 0, v3")
    A("s_cbranch_vccnz L_pi")
    A("v_cmp_ne_u32 vcc, v8, v3")
    A("s_cmp_lg_u64 vcc, 0"); A(f"s_cselect_b32 s54, {FAR}, 0")
    A("s_branch L_pidone")
    A("L_end:")
    A("s_endpgm")
    txt = A.finish()
    chain = [0] + [n for _, n in sorted(pads)]
    for a, b in zip(chain, chain[1:] + [None]):
        txt = txt.replace(f"@NEXT{a}@", f"L_pad{b}" if b else "L_end")
    return txt

HEADER = open("cdna_kernels/%s.s.ref" % NAME).read().split("; Override launch")[0]
def full(stamps=False, opt=()):
    body = gen(stamps, opt)
    return HEADER + f"""; @launch grid=(256,1,1) block=(768,1,1) lds={LDS_SIZE}
.amdgcn_target "amdgcn-amd-amdhsa--gfx950"
.text
.p2align 12
.fill 832, 4, 0xbf810000
.globl {NAME}_kernel
.p2align 8
.type {NAME}_kernel,@function
{NAME}_kernel:
{body}
.section .rodata,"a"
.p2align 6
.amdhsa_kernel {NAME}_kernel
  .amdhsa_next_free_vgpr 168
  .amdhsa_next_free_sgpr 100
  .amdhsa_accum_offset 168
  .amdhsa_group_segment_fixed_size 0
  .amdhsa_kernarg_size 96
  .amdhsa_user_sgpr_count 2
  .amdhsa_user_sgpr_kernarg_segment_ptr 1
  .amdhsa_system_sgpr_workgroup_id_x 1
.end_amdhsa_kernel
"""
if __name__ == "__main__":
    out = sys.argv[1] if len(sys.argv) > 1 else "cdna_kernels/%s.s" % NAME
    open(out, "w").write(full(stamps=(len(sys.argv) > 2 and sys.argv[2] == "stamps"), opt=sys.argv[3:]))
```

```python
import sys
from asmgen import Asm
NAME = "parallel_sum__sliding_block_cached__glu_gated_geglu__decode"

IDS = 0x1000; AFLG = 0x1800; ACC = 0x4000; QP = 0x10000; FPB = 0x30000; HB = 0x68000; ST = 0x70000; OP = 0x80000
FAR = 0x100000
WS_SIZE = 0x200000
F_Q, F_P, F_M, F_X, F_V, F_VI, F_KI, F_MODE = 0x00, 0x04, 0x08, 0x0c, 0x20, 0x24, 0x28, 0x2c
L_MAX, L_MODE = 0x10, 0x1c
L_ZERO = 0x100
L_Q, L_P, L_W, L_Y = 0x400, 0x800, 0xc00, 0x1000
LDS_SIZE = 0x1800
CEXP = 0x3db8aa3b
SPIN = 0x20000
TS = 88
PF = "sc1 nt"

def gen(stamps=False, opt=()):
    A = Asm()
    uid = [0]
    pads = []
    def getopt(name, default):
        for o in opt:
            if o.startswith(name + "="): return int(o.split("=")[1])
        return default
    def lab(p):
        uid[0] += 1
        return f"L_{p}{uid[0]}"
    def pad(prio=5):
        n = len(pads) + 1
        pads.append((prio, n))
        A(f"L_pad{n}:")
        A(f"s_cbranch_execz @NEXT{n}@")
    def stamp(k):
        if stamps: A(f"s_memrealtime s[{64+2*k}:{65+2*k}]")
    def flush(slots, cond_sub0=True, persub=()):
        if not stamps: return
        A("s_waitcnt lgkmcnt(0)")
        A("s_mov_b64 exec, -1")
        A("v_mov_b32 v1, 0"); A("v_mov_b32 v2, 0"); A("v_mov_b32 v3, 0")
        A("s_lshl_b32 s14, s2, 9")
        A("s_add_u32 s62, s38, s14"); A("s_addc_u32 s63, s39, 0")
        A("s_add_u32 s62, s62, 0x20000000"); A("s_addc_u32 s63, s63, 0")
        n = 0
        for k, slot in persub:
            A("s_lshl_b32 s14, s8, 3"); A(f"s_add_u32 s14, s14, {slot*8}")
            A(f"v_writelane_b32 v1, s14, {n}"); A(f"v_writelane_b32 v2, s{64+2*k}, {n}"); A(f"v_writelane_b32 v3, s{65+2*k}, {n}")
            n += 1
        np_ = n
        for k, slot in slots:
            A(f"s_movk_i32 s14, {slot*8}")
            A(f"v_writelane_b32 v1, s14, {n}"); A(f"v_writelane_b32 v2, s{64+2*k}, {n}"); A(f"v_writelane_b32 v3, s{65+2*k}, {n}")
            n += 1
        A("s_mov_b32 exec_hi, 0")
        if cond_sub0:
            A("s_cmp_eq_u32 s8, 0"); A(f"s_cselect_b32 exec_lo, {(1<<n)-1}, {(1<<np_)-1}")
            if np_ == 0: A("s_cbranch_execz L_end")
        else:
            A(f"s_mov_b32 exec_lo, {(1<<n)-1}")
        A("global_store_dwordx2 v1, v[2:3], s[62:63]")
    def srd(s, lo, hi, size, off=None):
        if off is None:
            A(f"s_mov_b32 s{s}, s{lo}"); A(f"s_mov_b32 s{s+1}, s{hi}")
        else:
            A(f"s_add_u32 s{s}, s{lo}, {off}"); A(f"s_addc_u32 s{s+1}, s{hi}, 0")
        A(f"s_mov_b32 s{s+2}, {size}"); A(f"s_mov_b32 s{s+3}, 0x20000")
    def spin_lds(flag, n, vz, vt, sleep=1):
        l = lab("sp"); d = lab("sd")
        A(f"{l}:")
        A(f"ds_read_b32 v{vt}, v{vz} offset:{flag}")
        A("s_waitcnt lgkmcnt(0)")
        A(f"v_readfirstlane_b32 s14, v{vt}")
        A(f"s_cmp_ge_u32 s14, {n}")
        A(f"s_cbranch_scc1 {d}")
        if sleep: A(f"s_sleep {sleep}")
        A("s_sub_u32 s15, s15, 1")
        A(f"s_cbranch_scc0 {l}")
        A("s_endpgm")
        A(f"{d}:")
    def tagcheck(regs, c0, lretry, tags=None):
        if tags is None: tags = [f"s{TS + k % 4}" for k in range(len(regs))]
        for r, t in zip(regs, tags): A(f"v_xor_b32 v{r}, {t}, v{r}")
        A(f"v_or_b32 v{c0}, v{regs[0]}, v{regs[1]}")
        for k in range(2, len(regs), 2): A(f"v_or3_b32 v{c0}, v{c0}, v{regs[k]}, v{regs[k+1]}")
        A(f"v_and_b32 v{c0}, 0xff, v{c0}")
        A(f"v_cmp_ne_u32 vcc, 0, v{c0}")
        A(f"s_cbranch_vccnz {lretry}")
    def bail(l):
        A("s_sub_u32 s15, s15, 1")
        A(f"s_cbranch_scc0 {l}")
        A("s_endpgm")
    def mktag():
        A("s_add_u32 s12, s13, 1")
        A("s_mul_i32 s92, s12, 0x01030507")
        for k in range(4): A(f"s_bfe_u32 s{TS+k}, s92, {0x80000 + 8*k}")
        A("s_lshr_b32 s93, s92, 8"); A("s_and_b32 s94, s92, 0xffff"); A("s_lshr_b32 s95, s92, 16")
    def lanetags(va, vb, bit):
        A(f"v_bfe_u32 v{vb}, v0, {bit}, 1"); A(f"v_lshlrev_b32 v{vb}, 4, v{vb}")
        A(f"v_bfe_u32 v{va}, s92, v{vb}, 8"); A(f"v_bfe_u32 v{vb}, s93, v{vb}, 8")
    def rnd(r):
        A(f"v_cvt_pk_bf16_f32 v{r}, v{r}, v{r}"); A(f"v_and_b32 v{r}, 0xffff0000, v{r}")
    def allred16(op, r, steps):
        for st in steps: A(f"{op}_dpp v{r}, v{r}, v{r} {st} row_mask:0xf bank_mask:0xf")
    def allred_swap(op, r, t, which):
        A(f"v_mov_b32 v{t}, v{r}")
        A(f"v_permlane{which}_swap_b32 v{t}, v{r}")
        A(f"{op} v{r}, v{t}, v{r}")
    def ldsinc(flag, vz, vone):
        A("s_mov_b64 exec, 1")
        A(f"ds_add_u32 v{vz}, v{vone} offset:{flag}")
        A("s_mov_b64 exec, -1")
    def common():
        srd(40, 38, 39, WS_SIZE)
        A("s_load_dword s13, s[40:41], 0")
        A(f"s_mov_b32 s15, {SPIN}")
        A("s_mov_b32 s56, 0x05040100"); A("s_mov_b32 s57, 0x07060302"); A("s_mov_b32 s58, 0xffffff00")
        A(f"s_mov_b32 s59, {CEXP}")
    def quad16(o, z0, z1, va, vb):
        A(f"v_and_or_b32 v{o}, v{z0}, s58, v{va}"); A(f"v_and_or_b32 v{o+1}, v{z1}, s58, v{vb}")
        A(f"v_permlane16_swap_b32 v{o}, v{o+2}"); A(f"v_permlane16_swap_b32 v{o+1}, v{o+3}")

    stamp(0)
    A("s_load_dwordx16 s[16:31], s[0:1], 0")
    A("s_load_dwordx8 s[32:39], s[0:1], 64")
    A("v_lshrrev_b32 v1, 6, v0")
    A("s_cmp_ge_u32 s2, 256"); A("s_cbranch_scc1 L_end")
    A("v_readfirstlane_b32 s3, v1")
    A("v_and_b32 v0, 63, v0")
    A("s_and_b32 s4, s2, 7")
    A("s_lshr_b32 s5, s2, 3")
    A("s_and_b32 s8, s3, 3")
    A("s_cmp_ge_u32 s3, 2"); A("s_cbranch_scc1 L_KV")

    A("s_setprio 3")
    A("v_and_b32 v3, 7, v0"); A("v_lshlrev_b32 v3, 4, v3")
    A("s_cmp_eq_u32 s3, 1"); A("s_cbranch_scc1 L_A1pre")
    A("s_lshr_b32 s61, s5, 3")
    A("s_mul_i32 s14, s61, 112")
    A("v_lshrrev_b32 v2, 3, v0"); A("v_mul_u32_u24 v2, 14, v2"); A("v_add_u32 v2, s14, v2"); A("v_lshl_add_u32 v2, v2, 13, v3")
    A("s_and_b32 s62, s5, 7"); A("s_lshl3_add_u32 s60, s4, s62")
    A("s_movk_i32 s62, 8192")
    A("v_and_b32 v4, 1, v0"); A("v_lshrrev_b32 v5, 4, v0"); A("v_lshl_add_u32 v4, v5, 1, v4")
    A("s_branch L_S1")
    A("L_A1z:")
    A("s_cmp_lg_u32 s5, 0"); A("s_cbranch_scc1 L_end")
    A("v_lshlrev_b32 v1, 4, v0")
    for r in range(4, 8): A(f"v_mov_b32 v{r}, 0")
    A(f"s_movk_i32 s14, {ACC}")
    A("s_waitcnt lgkmcnt(0)")
    srd(40, 38, 39, WS_SIZE)
    A("L_zl:")
    A("buffer_store_dwordx4 v[4:7], v1, s[40:43], s14 offen sc1")
    A("s_addk_i32 s14, 1024")
    A(f"s_cmpk_lt_u32 s14, {ACC + 14*1024}")
    A("s_cbranch_scc1 L_zl")
    A("s_barrier")
    A("s_branch L_ZERO")
    A("L_A1pre:")
    A("s_cmp_eq_u32 s4, 7"); A("s_cbranch_scc1 L_A1z")
    A("s_lshr_b32 s61, s5, 2")
    A("s_mul_i32 s14, s61, 56")
    A("s_movk_i32 s62, 3584")
    A("v_lshrrev_b32 v4, 4, v0")
    A("v_mul_u32_u24 v2, 14, v4"); A("v_add_u32 v2, s14, v2"); A("v_mad_u32_u24 v2, v2, s62, v3")
    A("s_and_b32 s60, s5, 3"); A("s_xor_b32 s60, s60, 2"); A("s_lshl2_add_u32 s60, s4, s60")
    A("L_S1:")
    A("s_lshl_b32 s63, s60, 7"); A("v_add_u32 v2, s63, v2"); A("v_mov_b32 v3, 0")
    A("s_mov_b32 s63, 0")
    A("v_mul_u32_u24 v4, 28, v4"); A("s_lshl_b32 s14, s14, 1"); A("v_add_u32 v4, s14, v4")
    A("v_bfe_u32 v5, v0, 1, 1"); A("v_mul_u32_u24 v5, 896, v5"); A("v_add_u32 v4, v4, v5")
    A("v_lshrrev_b32 v6, 2, v0"); A("v_and_b32 v7, 1, v0"); A("v_lshl_add_u32 v6, v6, 1, v7")
    A("v_lshl_add_u32 v5, v6, 5, v5")
    A("v_cmp_gt_u32 vcc, 56, v0"); A("v_mov_b32 v7, 0x10000"); A("v_cndmask_b32 v5, v7, v5, vcc")
    A("s_movk_i32 s46, 1792"); A("s_mov_b32 s47, 0x20000")
    A("s_cmp_eq_u32 s3, 1")
    A("s_waitcnt lgkmcnt(0)")
    A("s_mov_b64 s[44:45], s[16:17]")
    A("s_cselect_b64 s[52:53], s[28:29], s[22:23]")
    A("s_cselect_b64 s[54:55], s[30:31], s[22:23]")
    A("v_lshl_add_u64 v[6:7], v[2:3], 0, s[54:55]")
    A("v_lshl_add_u64 v[2:3], v[2:3], 0, s[52:53]")
    A("buffer_load_dwordx4 v[8:11], v5, s[44:47], 0 offen")
    A("buffer_load_dwordx4 v[12:15], v5, s[44:47], 0 offen offset:16")
    A("buffer_load_dwordx4 v[16:19], v4, s[44:47], 0 offen")
    A("buffer_load_dwordx3 v[20:22], v4, s[44:47], 0 offen offset:16")
    A("v_mov_b32_dpp v2, v6 quad_perm:[0,1,2,3] row_mask:0xf bank_mask:0xc")
    A("v_mov_b32_dpp v3, v7 quad_perm:[0,1,2,3] row_mask:0xf bank_mask:0xc")
    WD = 32
    for j in range(14):
        A(f"global_load_dwordx4 v[{WD+4*j}:{WD+4*j+3}], v[2:3], off nt")
        if j < 13: A("v_lshl_add_u64 v[2:3], v[2:3], 0, s[62:63]")
    stamp(4)
    A("s_barrier")
    A("s_branch L_S2")

    A("L_KV:")
    A("s_cmp_lt_u32 s3, 4"); A("s_cbranch_scc1 L_A23")
    A("s_lshr_b32 s6, s5, 4")
    A("s_lshl3_add_u32 s60, s6, s4"); A("s_lshl_b32 s60, s60, 7")
    A("s_and_b32 s14, s5, 15"); A("s_add_u32 s60, s60, s14"); A("s_add_u32 s60, s60, 112"); A("s_lshl_b32 s60, s60, 17")
    A("s_lshl_b32 s9, s4, 2"); A("s_xor_b32 s9, s9, s5")
    A("s_cmp_lt_u32 s3, 8"); A("s_cbranch_scc1 L_K")
    A("s_barrier")
    A("s_branch L_V")
    A("L_A23:")
    A("s_getpc_b64 s[60:61]")
    A("L_pc:")
    A(f"s_sub_u32 s60, s60, L_pc-{NAME}_kernel"); A("s_subb_u32 s61, s61, 0")
    A("s_and_b32 s14, s3, 1"); A("s_lshl_b32 s14, s14, 13")
    A("v_lshlrev_b32 v1, 7, v0"); A("v_add_u32 v1, s14, v1")
    A(f"v_min_u32 v1, L_end-{NAME}_kernel, v1")
    A("global_load_dword v8, v1, s[60:61]")
    A("s_cmp_eq_u32 s3, 2"); A("s_cbranch_scc1 L_A2")
    A("v_lshlrev_b32 v1, 4, v0")
    for r in range(2, 6): A(f"v_mov_b32 v{r}, 0")
    A("ds_write_b128 v1, v[2:5]")
    A("v_mov_b32 v6, 0xff800000"); A("v_mov_b32 v7, v6")
    A(f"ds_write_b64 v2, v[6:7] offset:{L_MAX}")
    A("s_waitcnt lgkmcnt(0)")
    A("s_barrier")
    A("s_branch L_A3")
    A("L_A2:")
    A("s_barrier")
    A("s_mov_b64 exec, 0")
    A("s_branch @NEXT0@")

    A("L_K:")
    A("s_setprio 2")
    A("v_and_b32 v2, 3, v0"); A("v_lshlrev_b32 v1, 9, v2")
    A("v_lshrrev_b32 v2, 2, v0"); A("v_lshl_add_u32 v1, v2, 4, v1")
    A("s_lshl_b32 s14, s8, 15"); A("v_add_u32 v1, s14, v1")
    A("s_lshr_b32 s61, s9, 1"); A("s_lshl_b32 s14, s8, 2"); A("s_xor_b32 s61, s61, s14")
    A("s_lshl_b32 s62, s61, 11")
    A("s_mov_b32 s46, 0x20000"); A("s_mov_b32 s47, 0x20000")
    A("s_waitcnt lgkmcnt(0)")
    A("s_add_u32 s44, s18, s60"); A("s_addc_u32 s45, s19, 0")
    A("s_barrier")
    KD = 32
    QAT = getopt("qat", 12)
    def qpoll(va=3):
        A(f"buffer_load_dwordx4 v[16:19], v{va}, s[40:43], s52 offen {PF}")
        A(f"buffer_load_dwordx4 v[20:23], v{va}, s[40:43], s53 offen {PF}")
    for t in range(17):
        if t == 6:
            common()
            A("v_and_b32 v3, 31, v0"); A("v_lshlrev_b32 v3, 4, v3"); A("v_lshrrev_b32 v2, 5, v0"); A("v_lshl_add_u32 v3, v2, 11, v3")
            A("s_lshl_b32 s52, s4, 14"); A("s_lshl_b32 s14, s6, 13"); A("s_add_u32 s52, s52, s14")
            A("s_lshl_b32 s14, s8, 9"); A("s_add_u32 s52, s52, s14"); A(f"s_add_u32 s52, s52, {QP}")
            A("s_add_u32 s53, s52, 4096")
            A("v_mov_b32 v5, 0"); A("v_mov_b32 v167, 1")
        if t == 10: ldsinc(F_KI, 5, 167)
        if t == QAT: qpoll()
        if t == 16: break
        if t == 0: s = "s62"
        else:
            A(f"s_xor_b32 s14, s62, {t*2048}"); s = "s14"
        r = KD + 8*t
        A(f"buffer_load_dwordx4 v[{r}:{r+3}], v1, s[44:47], {s} offen nt")
        A(f"buffer_load_dwordx4 v[{r+4}:{r+7}], v1, s[44:47], {s} offen offset:256 nt")
    stamp(1)
    A("v_and_b32 v2, 1, v0"); A("v_lshlrev_b32 v2, 9, v2")
    A("v_lshrrev_b32 v6, 2, v0"); A("v_lshl_add_u32 v2, v6, 4, v2")
    A("s_lshl_b32 s14, s61, 2"); A("s_lshl_b32 s62, s8, 6"); A("s_or_b32 s14, s14, s62")
    A("s_lshr_b32 s62, s9, 3"); A("s_lshl_b32 s62, s62, 6"); A("s_xor_b32 s14, s14, s62")
    A("s_and_b32 s62, s9, 7"); A("s_xor_b32 s14, s14, s62")
    A("v_xor_b32 v4, s14, v0"); A("v_lshlrev_b32 v4, 1, v4")
    A("v_and_b32 v1, 7, v0"); A("v_lshlrev_b32 v1, 4, v1"); A("v_and_b32 v9, 8, v0"); A("v_or_b32 v1, v1, v9")
    A("v_bfe_u32 v9, v0, 4, 1"); A("v_lshl_add_u32 v1, v9, 7, v1")
    A("v_lshrrev_b32 v9, 5, v0"); A("v_lshl_add_u32 v1, v9, 2, v1")
    A("s_lshl_b32 s14, s8, 8"); A("v_add_u32 v1, s14, v1")
    A("s_waitcnt lgkmcnt(0)")
    mktag()
    pad()
    A(f"s_waitcnt vmcnt({2*(16-QAT)})")
    A("L_cq:")
    tagcheck(list(range(16, 24)), 8, "L_rq")
    stamp(7)
    for k in range(4): A(f"v_add_f32 v{16+k}, v{16+k}, v{20+k}")
    A("v_permlane32_swap_b32 v16, v18"); A("v_permlane32_swap_b32 v17, v19")
    A("v_add_f32 v16, v16, v18"); A("v_add_f32 v17, v17, v19")
    A("v_cvt_pk_bf16_f32 v16, v16, v17")
    A(f"ds_write_b32 v1, v16 offset:{L_Q}")
    ldsinc(F_Q, 5, 167)
    spin_lds(F_Q, 4, 5, 6)
    A(f"ds_read_b128 v[8:11], v2 offset:{L_Q}")
    A(f"ds_read_b128 v[12:15], v2 offset:{L_Q+256}")
    A("s_waitcnt lgkmcnt(0)")
    def acc(t):
        B = t // 4
        return (16 if B == 0 else KD + 32*(B-1)) + 4*(t % 4)
    for B in range(4):
        if 4*B+4 > QAT: A(f"s_waitcnt vmcnt({32-8*(B+1)})")
        for step in range(4):
            for tt in range(4):
                t = 4*B + tt
                a = acc(t); kd = KD + 8*t + 2*step; q = 8 + 2*step
                c = "0" if step == 0 else f"v[{a}:{a+3}]"
                A(f"v_mfma_f32_4x4x4_16b_bf16 v[{a}:{a+3}], v[{q}:{q+1}], v[{kd}:{kd+1}], {c}")
    pad()
    val = {(t, h): acc(t) + h for t in range(16) for h in range(2)}
    for t in range(8):
        for h in range(2): A(f"v_permlane32_swap_b32 v{val[t,h]}, v{val[t+8,h]}")
    for t in range(8):
        for h in range(2): A(f"v_add_f32 v{val[t,h]}, v{val[t,h]}, v{val[t+8,h]}")
    for t in range(4):
        for h in range(2): A(f"v_permlane16_swap_b32 v{val[t,h]}, v{val[t+4,h]}")
    for t in range(4):
        for h in range(2): A(f"v_add_f32 v{val[t,h]}, v{val[t,h]}, v{val[t+4,h]}")
    for t in range(2):
        for h in range(2):
            A(f"v_add_f32_dpp v{160+2*t+h}, v{val[t,h]}, v{val[t,h]} row_ror:8 row_mask:0xf bank_mask:0x3")
    for t in range(2):
        for h in range(2):
            A(f"v_add_f32_dpp v{160+2*t+h}, v{val[t+2,h]}, v{val[t+2,h]} row_ror:8 row_mask:0xf bank_mask:0xc")
    for h in range(2): A(f"v_add_f32_dpp v{164+h}, v{160+h}, v{160+h} row_shl:4 row_mask:0xf bank_mask:0x5")
    for h in range(2): A(f"v_add_f32_dpp v{164+h}, v{162+h}, v{162+h} row_shr:4 row_mask:0xf bank_mask:0xa")
    A("v_cvt_pk_bf16_f32 v166, v164, v165")
    A("v_lshlrev_b32 v164, 16, v166"); A("v_and_b32 v165, 0xffff0000, v166")
    stamp(2)
    A("v_mov_b32 v16, v164"); A("v_mov_b32 v17, v165")
    A("v_permlane32_swap_b32 v16, v17"); A("v_max_f32 v16, v16, v17")
    allred_swap("v_max_f32", 16, 17, 16)
    allred16("v_max_f32", 16, ["row_ror:8", "row_ror:4", "row_ror:2", "row_ror:1"])
    A("v_lshrrev_b32 v18, 5, v0"); A("v_lshlrev_b32 v18, 2, v18")
    A("s_mov_b32 exec_lo, 1"); A("s_mov_b32 exec_hi, 1")
    A(f"ds_max_f32 v18, v16 offset:{L_MAX}")
    A("s_mov_b32 exec_hi, 0")
    A(f"ds_add_u32 v5, v167 offset:{F_M}")
    A("s_mov_b64 exec, -1")
    spin_lds(F_M, 4, 5, 6)
    A(f"ds_read_b64 v[20:21], v5 offset:{L_MAX}")
    A("s_waitcnt lgkmcnt(0)")
    A("v_sub_f32 v22, v164, v20"); A("v_sub_f32 v23, v165, v21")
    A("v_mul_f32 v22, s59, v22"); A("v_mul_f32 v23, s59, v23")
    A("v_exp_f32 v22, v22"); A("v_exp_f32 v23, v23")
    A("v_cvt_pk_bf16_f32 v24, v22, v23")
    A(f"ds_write_b16 v4, v24 offset:{L_P}")
    A(f"ds_write_b16_d16_hi v4, v24 offset:{L_P+512}")
    ldsinc(F_P, 5, 167)
    stamp(3)
    F64 = "f32acc" not in opt
    A("s_cmp_ge_u32 s5, 28"); A("s_cbranch_scc1 L_Kx")
    pad()
    A("v_lshrrev_b32 v2, 3, v0"); A("v_and_b32 v3, 7, v0"); A("v_lshlrev_b32 v3, 4, v3")
    A("v_mul_u32_u24 v13, 7168, v2"); A("v_add_u32 v13, v13, v3")
    for r in range(48, 56): A(f"v_mov_b32 v{r}, 0")
    BO = 64; PO = 96; AV = 112; SO = 128
    for d in range(8): A(f"v_mov_b32 v{BO+4*d+3}, 0")
    for r in range(AV, AV+16): A(f"v_mov_b32 v{r}, 0")
    A("v_and_b32 v2, 1, v0"); A("v_lshrrev_b32 v3, 4, v0"); A("v_lshl_add_u32 v2, v3, 1, v2")
    A("v_bfe_u32 v3, v0, 1, 1")
    A("v_bfe_u32 v6, v0, 2, 2")
    A("v_lshlrev_b32 v1, 4, v0")
    A("v_lshlrev_b32 v12, 4, v6"); A("v_lshl_add_u32 v12, v3, 6, v12")
    A("v_lshlrev_b32 v4, 3, v2"); A("v_lshl_add_u32 v4, v3, 6, v4")
    A("v_mov_b32 v28, s94"); A("v_mov_b32 v29, s95")
    A("v_and_b32 v2, 15, v0"); A("v_lshlrev_b32 v2, 5, v2"); A("v_lshrrev_b32 v3, 4, v0"); A("v_lshl_add_u32 v2, v3, 3, v2")
    A("s_lshl_b32 s14, s8, 9"); A("v_add_u32 v2, s14, v2")
    A("s_mul_i32 s10, s5, 37"); A("s_lshr_b32 s10, s10, 8")
    A("s_mul_i32 s11, s10, 7"); A("s_sub_u32 s11, s5, s11")
    A("s_lshl_b32 s14, s10, 6"); A("s_and_b32 s14, s14, 128"); A("v_add_u32 v12, s14, v12")
    A("s_lshl2_add_u32 s10, s4, s10")
    A("s_lshl_b32 s62, s11, 7")
    if F64: A("v_lshrrev_b32 v3, 1, v0")
    else:
        A("v_lshrrev_b32 v3, 2, v0"); A("v_sub_u32 v3, v0, v3")
    A("v_lshlrev_b32 v15, 2, v3"); A("s_lshl_b32 s14, s8, 7"); A("v_add_u32 v15, s14, v15")
    A("s_lshr_b32 s14, s8, 1"); A("s_mul_i32 s14, s14, 896"); A("s_add_u32 s14, s14, s62")
    A("s_and_b32 s60, s8, 1"); A("s_lshl_b32 s60, s60, 6"); A("s_add_u32 s14, s14, s60")
    A("v_lshl_add_u32 v14, v3, 1, s14")
    A(f"v_lshlrev_b32 v30, {3 if F64 else 2}, v0")
    if not F64:
        A("v_mov_b32 v31, 0")
        A("s_mov_b32 exec_lo, 0x88888888"); A("s_mov_b32 exec_hi, 0x88888888"); A("v_mov_b32 v31, 1.0"); A("s_mov_b64 exec, -1")
    srd(44, 16, 17, 1792)
    A("buffer_load_ushort v56, v14, s[44:47], 0 offen")
    A(f"s_movk_i32 s14, {AFLG}")
    A("buffer_load_dword v57, v5, s[40:43], s14 offen sc1")
    A("s_lshl2_add_u32 s60, s11, s8"); A(f"s_lshl_b32 s60, s60, {9 if F64 else 8}"); A(f"s_add_u32 s60, s60, {ACC}")
    srd(44, 24, 25, 4096*896); srd(48, 32, 33, 1792*896)
    A("s_lshr_b32 s14, s8, 1"); A("s_lshl1_add_u32 s52, s10, s14")
    A("s_and_b32 s14, s8, 1"); A("s_lshl4_add_u32 s52, s52, s14"); A("s_mul_i32 s52, s52, 3584"); A("s_add_u32 s52, s52, s62")
    A("s_lshl_b32 s53, s10, 5"); A("s_add_u32 s53, s53, s8"); A("s_mul_i32 s53, s53, 1792"); A("s_add_u32 s53, s53, s62")
    A("s_lshl2_add_u32 s55, s10, s8"); A("s_lshl_b32 s61, s55, 12"); A(f"s_add_u32 s61, s61, {OP}")
    A("s_lshl_b32 s55, s55, 7"); A(f"s_add_u32 s55, s55, {HB}")
    spin_lds(F_MODE, 1, 5, 6, sleep=2)
    A(f"ds_read_b32 v6, v5 offset:{L_MODE}")
    A("s_waitcnt vmcnt(0) lgkmcnt(0)")
    A("v_add_u32 v1, v1, v6"); A("v_add_u32 v4, v4, v6")
    A("v_lshlrev_b32 v56, 16, v56")
    if F64: A("v_cvt_f64_f32 v[58:59], v56")
    A("L_cz:")
    A("v_cmp_ne_u32 vcc, s12, v57")
    A("s_cbranch_vccnz L_rz")
    spin_lds(F_VI, 4, 5, 6, sleep=1)
    def pollh():
        A(f"buffer_load_dwordx2 v[28:29], v4, s[40:43], s55 offen {PF}")
    def polla(u):
        A(f"buffer_load_dwordx4 v[{PO+4*u}:{PO+4*u+3}], v1, s[40:43], s61 offen offset:{1024*u} {PF}")
    A("s_cmp_eq_u32 s4, 7"); A("s_cbranch_scc1 L_noh")
    pollh()
    for j in range(2): A(f"buffer_load_dwordx4 v[{48+4*j}:{51+4*j}], v13, s[48:51], s53 offen offset:{896*j} nt")
    A("L_noh:")
    for j in range(4): A(f"buffer_load_dwordx4 v[{32+4*j}:{35+4*j}], v13, s[44:47], s52 offen offset:{896*j} nt")
    srd(44, 34, 35, 1792)
    if F64:
        A("s_mov_b32 s52, 0x55555555"); A("s_mov_b32 s53, 0x55555555"); A("s_mov_b32 s54, 0x403f0000")
    else:
        A("s_mov_b32 s52, 0x77777777"); A("s_mov_b32 s53, 0x377"); A("s_mov_b32 s54, 0x41f80000")
    stamp(8)
    pad()
    A("s_waitcnt vmcnt(6)")
    A("L_ch:")
    A("v_xor_b32 v8, s94, v28"); A("v_bitop3_b32 v8, v8, v29, s95 bitop3:0xf6")
    A("v_cmp_ne_u32_sdwa vcc, v8, v5 src0_sel:WORD_0 src1_sel:DWORD")
    A("s_cbranch_vccnz L_rh")
    A("v_perm_b32 v28, v29, v28, s57")
    for rg in range(4): A(f"v_mov_b32_dpp v{AV+4*rg+2}, v28 quad_perm:[0,1,2,3] row_mask:0xf bank_mask:{1<<rg}")
    spin_lds(F_X, 1, 5, 6)
    A(f"ds_read_b128 v[24:27], v12 offset:{L_W}")
    A(f"s_waitcnt vmcnt({getopt('wog', 3)})")
    spin_lds(F_V, 4, 5, 6, sleep=0)
    A("s_setprio 3")
    stamp(11)
    for u in range(4): polla(u)
    A("s_waitcnt vmcnt(4)")
    stamp(9)
    for c in range(4):
        for e in range(2):
            d = 2*c + e
            for q, (lo, hi) in enumerate([(32, 36), (40, 44), (48, 52)]):
                A(f"v_perm_b32 v{BO+4*d+q}, v{hi+c}, v{lo+c}, s{56+e}")
    pad()
    A("L_ck:")
    A("s_waitcnt vmcnt(0)")
    CL = 132
    def strip(u, ks):
        for k in ks: A(f"v_xor_b32 v{CL+4*u+k}, s{TS+k}, v{PO+4*u+k}")
    for u in range(4): strip(u, [0])
    A(f"v_or3_b32 v8, v{CL}, v{CL+4}, v{CL+8}")
    A(f"v_or_b32 v8, v8, v{CL+12}")
    A("v_cmp_ne_u32_sdwa vcc, v8, v5 src0_sel:BYTE_0 src1_sel:DWORD")
    strip(0, [1, 2, 3])
    A("s_cbranch_vccnz L_ra")
    stamp(4)
    for k in range(2): A(f"v_pk_mul_f32 v[{SO+2*k}:{SO+2*k+1}], v[{CL+2*k}:{CL+2*k+1}], v[24:25] op_sel_hi:[1,0]")
    for u in range(1, 4):
        strip(u, [1, 2, 3])
        w = 24 + (u & 2)
        sel = "op_sel:[0,1,0] op_sel_hi:[1,1,1]" if u & 1 else "op_sel_hi:[1,0,1]"
        for k in range(2): A(f"v_pk_fma_f32 v[{SO+2*k}:{SO+2*k+1}], v[{CL+4*u+2*k}:{CL+4*u+2*k+1}], v[{w}:{w+1}], v[{SO+2*k}:{SO+2*k+1}] {sel}")
    rest = [CL + 4*u + k for u in range(4) for k in range(1, 4)]
    def chk(n):
        for _ in range(n):
            if not rest: return
            if len(rest) == 12:
                A(f"v_or_b32 v10, v{rest.pop(0)}, v{rest.pop(0)}")
            else:
                A(f"v_or3_b32 v10, v10, v{rest.pop(0)}, v{rest.pop(0)}")
    chk(1)
    for st in ("row_ror:4", "row_ror:8"):
        for k in range(4): A(f"v_add_f32_dpp v{SO+k}, v{SO+k}, v{SO+k} {st} row_mask:0xf bank_mask:0xf")
    A(f"v_cvt_pk_bf16_f32 v8, v{SO}, v{SO+1}"); A(f"v_cvt_pk_bf16_f32 v9, v{SO+2}, v{SO+3}")
    chk(1)
    def amov(rg):
        for k in range(2): A(f"v_mov_b32_dpp v{AV+4*rg+k}, v{8+k} quad_perm:[0,1,2,3] row_mask:0xf bank_mask:{1<<rg}")
    amov(0); amov(1)
    for rg in range(4):
        for e in range(2):
            d = 2*rg + e; a = 16 + 4*e
            c = "0" if rg == 0 else f"v[{a}:{a+3}]"
            A(f"v_mfma_f32_16x16x32_bf16 v[{a}:{a+3}], v[{AV+4*rg}:{AV+4*rg+3}], v[{BO+4*d}:{BO+4*d+3}], {c}")
            if rg == 3: chk(1)
        if rg < 2: amov(rg + 2)
    chk(len(rest))
    A("v_cmp_ne_u32_sdwa vcc, v10, v5 src0_sel:BYTE_0 src1_sel:DWORD")
    A("s_cbranch_vccnz L_ra")
    for e in range(2):
        A(f"v_add_f32_dpp v{10+e}, v{16+4*e+1}, v{16+4*e} row_ror:8 row_mask:0xf bank_mask:0x3")
    for e in range(2):
        A(f"v_add_f32_dpp v{10+e}, v{16+4*e+2}, v{16+4*e+3} row_ror:8 row_mask:0xf bank_mask:0xc")
    A(f"ds_write_b64 v2, v[10:11] offset:{L_Y}")
    A("s_waitcnt lgkmcnt(0)")
    A("s_barrier")
    A(f"ds_read2st64_b32 v[16:17], v15 offset0:{L_Y//256} offset1:{L_Y//256+2}")
    A(f"ds_read2st64_b32 v[18:19], v15 offset0:{L_Y//256+4} offset1:{L_Y//256+6}")
    if not F64: A("s_mov_b32 exec_hi, 0xfff")
    A("s_waitcnt lgkmcnt(0)")
    A("v_pk_add_f32 v[16:17], v[16:17], v[18:19]")
    A("v_add_f32 v16, v16, v17")
    if F64:
        A("v_cndmask_b32 v16, 1.0, v16, s[52:53]")
        A("v_cvt_f64_f32 v[18:19], v16")
        stamp(5)
        A("v_add_f64 v[58:59], v[58:59], v[18:19]")
        A("buffer_atomic_add_f64 v[18:19], v30, s[40:43], s60 offen sc0 sc1")
        A("s_waitcnt vmcnt(0)")
        A("v_add_f64 v[58:59], v[58:59], v[18:19]")
        A("v_mov_b32_dpp v20, v19 quad_perm:[1,1,3,3] row_mask:0xf bank_mask:0xf")
        A("v_cvt_f32_f64 v16, v[58:59]")
        A("v_cmp_eq_u32 vcc, s54, v20")
    else:
        A("v_cndmask_b32 v17, v31, v16, s[52:53]")
        stamp(5)
        A("buffer_atomic_add_f32 v17, v30, s[40:43], s60 offen sc0 sc1")
        A("v_add_f32 v16, v16, v56")
        A("s_waitcnt vmcnt(0)")
        A("v_mov_b32_dpp v18, v17 quad_perm:[3,3,3,3] row_mask:0xf bank_mask:0xf")
        A("v_add_f32 v16, v16, v17")
        A("v_cmp_eq_u32 vcc, s54, v18")
    A("v_cvt_pk_bf16_f32 v16, v16, v16")
    A("s_and_b64 exec, vcc, s[52:53]")
    A("s_cbranch_execz L_Ky")
    A("buffer_store_short v16, v14, s[44:47], 0 offen")
    A(f"s_cmp_lg_u32 s60, {ACC}"); A("s_cbranch_scc1 L_Ky")
    A("s_and_b64 exec, exec, 1")
    A("s_cbranch_execz L_Ky")
    A("v_mov_b32 v6, s12")
    A("buffer_store_dword v6, v5, s[40:43], 0 offen")
    A("L_Ky:")
    stamp(6)
    flush([(1, 3), (2, 4), (3, 5), (4, 9), (5, 10), (6, 12), (7, 2), (8, 23), (9, 24), (11, 26)], persub=[(1, 44), (2, 48), (4, 52), (6, 56)])
    A("L_Kx:")
    A("s_endpgm")
    A("L_ra:")
    A("s_mov_b64 exec, vcc")
    for u in range(4): polla(u)
    A("s_mov_b64 exec, -1")
    bail("L_ck")
    A("L_rh:")
    pollh()
    A("s_waitcnt vmcnt(0)")
    bail("L_ch")
    A("L_rq:")
    A(f"ds_read_b32 v6, v5 offset:{L_MODE}")
    A("s_waitcnt lgkmcnt(0)")
    A("v_add_u32 v6, v6, v3")
    qpoll(6)
    A("s_waitcnt vmcnt(0)")
    bail("L_cq")
    A("L_rz:")
    A("s_sleep 8")
    A(f"s_movk_i32 s14, {AFLG}")
    A("buffer_load_dword v57, v5, s[40:43], s14 offen sc1")
    A("s_waitcnt vmcnt(0)")
    bail("L_cz")
    A("L_ZERO:")
    A("s_load_dword s13, s[40:41], 0")
    A("s_waitcnt vmcnt(0) lgkmcnt(0)")
    A("s_add_u32 s12, s13, 1"); A("v_mov_b32 v2, s12")
    A(f"s_movk_i32 s14, {AFLG}")
    A("s_mov_b64 exec, 1")
    A("buffer_store_dword v2, v4, s[40:43], s14 offen sc1")
    A("s_endpgm")

    A("L_V:")
    A("s_setprio 1")
    A("v_lshrrev_b32 v2, 3, v0"); A("v_lshlrev_b32 v1, 12, v2")
    A("v_and_b32 v2, 7, v0"); A("v_lshl_add_u32 v1, v2, 4, v1")
    A("s_lshl_b32 s14, s8, 7"); A("v_add_u32 v1, s14, v1")
    A("s_and_b32 s62, s9, 7"); A("s_lshl_b32 s62, s62, 9"); A("s_lshr_b32 s14, s9, 3"); A("s_lshl_b32 s14, s14, 15"); A("s_or_b32 s62, s62, s14")
    A("s_waitcnt lgkmcnt(0)")
    srd(44, 20, 21, 131072, "s60")
    common()
    A("v_and_b32 v6, 1, v0"); A("v_lshrrev_b32 v7, 4, v0"); A("v_lshl_add_u32 v6, v7, 1, v6"); A("v_lshlrev_b32 v6, 4, v6")
    A("v_bfe_u32 v7, v0, 1, 1"); A("v_lshl_add_u32 v6, v7, 9, v6"); A(f"v_add_u32 v6, {L_P}, v6")
    for rg in range(4): A(f"v_mov_b32 v{2+rg}, {L_ZERO}")
    for rg in range(4): A(f"v_mov_b32_dpp v{2+rg}, v6 quad_perm:[0,1,2,3] row_mask:0xf bank_mask:{1<<rg}")
    A("v_mov_b32 v6, 0"); A("v_mov_b32 v16, 1")
    A("s_lshl_b32 s61, s4, 16"); A("s_lshl_b32 s14, s8, 13"); A("s_add_u32 s61, s61, s14")
    A("s_bfe_u32 s14, s5, 0x20002"); A("s_lshl_b32 s14, s14, 10"); A("s_add_u32 s61, s61, s14")
    A("s_and_b32 s14, s5, 3"); A("s_lshl_b32 s14, s14, 6"); A("s_add_u32 s61, s61, s14")
    A("s_lshl_b32 s14, s6, 5"); A("s_add_u32 s61, s61, s14"); A(f"s_add_u32 s61, s61, {OP}")
    A(f"s_add_u32 s63, s61, {FAR}")
    A("s_mov_b32 s52, 0xffff"); A("s_mov_b32 s53, 0xffff")
    VD = 40
    for t in range(32):
        A(f"s_xor_b32 s14, s62, {(t>>3)*32768 + (t&7)*512}")
        r = VD + 4*t
        A(f"buffer_load_dwordx4 v[{r}:{r+3}], v1, s[44:47], s14 offen nt")
    ldsinc(F_VI, 6, 16)
    stamp(1)
    pad()
    spin_lds(F_P, 4, 6, 7)
    A("s_setprio 3")
    def rdA(g4, base):
        for rg in range(4): A(f"ds_read_b128 v[{base+4*rg}:{base+4*rg+3}], v{2+rg} offset:{128*g4}")
    Abase = {0: 24, 1: VD, 2: VD+16, 3: 24}
    rdA(0, 24)
    for g4 in range(3):
        ab = Abase[g4]; D = VD + 32*g4
        if g4 == 2: pad()
        A(f"s_waitcnt vmcnt({24-8*g4}) lgkmcnt(0)")
        for c in range(4):
            for e in range(2):
                for q in range(4):
                    A(f"v_perm_b32 v{16+4*e+q}, v{D+8*q+4+c}, v{D+8*q+c}, s{56+e}")
            for e in range(2):
                a = 8 + 4*e
                cc = "0" if (g4 == 0 and c == 0) else f"v[{a}:{a+3}]"
                A(f"v_mfma_f32_16x16x32_bf16 v[{a}:{a+3}], v[{ab+4*c}:{ab+4*c+3}], v[{16+4*e}:{19+4*e}], {cc}")
        if g4 == 0:
            rdA(1, VD); rdA(2, VD+16); rdA(3, 24)
    mktag()
    spin_lds(F_MODE, 1, 6, 7)
    A(f"ds_read_b32 v7, v6 offset:{L_MODE}")
    A("v_mov_b32 v2, 1")
    A("v_bfe_u32 v4, v0, 3, 1")
    A("v_and_b32 v1, 1, v0"); A("v_lshlrev_b32 v1, 4, v1"); A("v_lshl_add_u32 v1, v4, 15, v1")
    A("v_bfe_u32 v4, v0, 1, 2"); A("v_lshl_add_u32 v1, v4, 8, v1")
    A("v_lshrrev_b32 v4, 5, v0"); A("v_lshl_add_u32 v1, v4, 12, v1")
    lanetags(VD, VD+1, 4)
    A("s_waitcnt lgkmcnt(0)")
    A("v_readfirstlane_b32 s54, v7")
    TT = VD + 32
    D = VD + 96
    pad()
    def vperm(q, c):
        for e in range(2): A(f"v_perm_b32 v{TT+4*(2*c+e)+q}, v{D+8*q+4+c}, v{D+8*q+c}, s{56+e}")
    for q in range(3):
        A(f"s_waitcnt vmcnt({6-2*q})")
        for c in range(4): vperm(q, c)
    A("s_waitcnt vmcnt(0)")
    stamp(2)
    vperm(3, 0); vperm(3, 1)
    for c in range(4):
        for e in range(2):
            a = 8 + 4*e; d = 2*c + e
            A(f"v_mfma_f32_16x16x32_bf16 v[{a}:{a+3}], v[{24+4*c}:{27+4*c}], v[{TT+4*d}:{TT+4*d+3}], v[{a}:{a+3}]")
        if c < 2: vperm(3, c + 2)
    for e in range(2): A(f"v_add_f32_dpp v{4+e}, v{8+4*e+1}, v{8+4*e} row_ror:8 row_mask:0xf bank_mask:0x3")
    for e in range(2): A(f"v_add_f32_dpp v{4+e}, v{8+4*e+2}, v{8+4*e+3} row_ror:8 row_mask:0xf bank_mask:0xc")
    quad16(16, 4, 5, VD, VD+1)
    A("s_mov_b64 exec, s[52:53]")
    A("buffer_store_dwordx4 v[16:19], v1, s[40:43], s61 offen")
    A("s_cmp_eq_u32 s54, 0"); A("s_cbranch_scc1 L_onear")
    A("buffer_store_dwordx4 v[16:19], v1, s[40:43], s63 offen sc1")
    A("L_onear:")
    A("s_mov_b64 exec, 1")
    A(f"ds_add_u32 v6, v2 offset:{F_V}")
    stamp(3)
    if stamps:
        A("s_waitcnt vmcnt(0)"); stamp(4)
        A("s_barrier"); A("s_sleep 30")
    flush([(1, 6), (2, 7), (3, 8)], persub=[(1, 36), (2, 40), (4, 60)])
    A("s_endpgm")

    A("L_S2:")
    common()
    A("s_waitcnt vmcnt(16)")
    X = 96
    for k in range(8):
        A(f"v_lshlrev_b32 v{X+2*k}, 16, v{8+k}"); A(f"v_and_b32 v{X+2*k+1}, 0xffff0000, v{8+k}")
    for k in range(8): A(f"v_add_f32 v{8+k}, v{X+2*k}, v{X+2*k+1}")
    for k in range(4): A(f"v_add_f32 v{8+k}, v{8+k}, v{12+k}")
    A("v_add_f32 v8, v8, v10"); A("v_add_f32 v9, v9, v11"); A("v_add_f32 v8, v8, v9")
    def red_b(r, t):
        allred16("v_add_f32", r, ["quad_perm:[1,0,3,2]", "row_ror:4", "row_ror:8"])
        allred_swap("v_add_f32", r, t, 16); allred_swap("v_add_f32", r, t, 32)
    red_b(8, 9)
    A("v_mul_f32 v8, 0x3b124925, v8")
    for k in range(16): A(f"v_sub_f32 v{X+k}, v{X+k}, v8")
    A(f"v_mul_f32 v10, v{X}, v{X}"); A(f"v_mul_f32 v11, v{X+1}, v{X+1}")
    for k in range(2, 16): A(f"v_fmac_f32 v{10+k%2}, v{X+k}, v{X+k}")
    A("v_add_f32 v10, v10, v11")
    A("v_cndmask_b32 v10, 0, v10, vcc")
    red_b(10, 9)
    A("v_mul_f32 v10, 0x3b124925, v10")
    rnd(8); rnd(10)
    A("v_add_f32 v10, 0x3727c5ac, v10"); rnd(10)
    A("v_sqrt_f32 v10, v10"); rnd(10)
    A("v_rcp_f32 v11, v10")
    A("v_fma_f32 v12, -v10, v11, 1.0"); A("v_fma_f32 v11, v12, v11, v11")
    pad(0)
    A("s_waitcnt vmcnt(14)")
    for k in range(7):
        A(f"v_lshlrev_b32 v{X+2*k}, 16, v{16+k}"); A(f"v_and_b32 v{X+2*k+1}, 0xffff0000, v{16+k}")
    for k in range(14): A(f"v_sub_f32 v{X+k}, v{X+k}, v8")
    for k in range(7): A(f"v_cvt_pk_bf16_f32 v{16+k}, v{X+2*k}, v{X+2*k+1}")
    for k in range(7):
        A(f"v_lshlrev_b32 v{X+2*k}, 16, v{16+k}"); A(f"v_and_b32 v{X+2*k+1}, 0xffff0000, v{16+k}")
    for k in range(14): A(f"v_mul_f32 v{X+k}, v{X+k}, v11")
    for k in range(7): A(f"v_cvt_pk_bf16_f32 v{16+k}, v{X+2*k}, v{X+2*k+1}")
    A("v_mov_b32 v23, 0")
    TB = 88
    A("v_mov_b32 v95, 0"); A("v_mov_b32 v31, 0")
    AC = 112
    A("s_waitcnt vmcnt(0) lgkmcnt(0)")
    stamp(8)
    mktag()
    for d in range(8):
        c = d >> 1; e = d & 1; T = TB if e == 0 else 24
        for q in range(7): A(f"v_perm_b32 v{T+q}, v{WD+8*q+4+c}, v{WD+8*q+c}, s{56+e}")
        a = AC + 4*d
        A(f"v_mfma_f32_16x16x32_bf16 v[{a}:{a+3}], v[16:19], v[{T}:{T+3}], 0")
        A(f"v_mfma_f32_16x16x32_bf16 v[{a}:{a+3}], v[20:23], v[{T+4}:{T+7}], v[{a}:{a+3}]")
    pad(1)
    A("s_cmp_eq_u32 s3, 1"); A("s_cbranch_scc1 L_A1post")
    A("v_and_b32 v5, 7, v0"); A("v_lshlrev_b32 v5, 4, v5"); A("v_lshrrev_b32 v6, 5, v0"); A("v_lshl_add_u32 v5, v6, 7, v5")
    A("v_bfe_u32 v6, v0, 3, 1"); A("v_lshl_add_u32 v5, v6, 13, v5")
    lanetags(1, 2, 4)
    for rg in range(4):
        for half in range(2):
            for e in range(2):
                a = AC + 4*(2*rg+e)
                if half == 0: A(f"v_add_f32_dpp v{8+e}, v{a+1}, v{a} row_ror:8 row_mask:{1<<rg} bank_mask:0x3")
                else: A(f"v_add_f32_dpp v{8+e}, v{a+2}, v{a+3} row_ror:8 row_mask:{1<<rg} bank_mask:0xc")
    quad16(12, 8, 9, 1, 2)
    A("s_lshl_b32 s14, s4, 14"); A("s_lshl_b32 s62, s61, 11"); A("s_add_u32 s14, s14, s62")
    A("s_and_b32 s62, s5, 7"); A("s_lshl_b32 s62, s62, 8"); A("s_add_u32 s14, s14, s62"); A(f"s_add_u32 s62, s14, {QP}")
    A("s_mov_b32 exec_lo, 0xffff"); A("s_mov_b32 exec_hi, 0xffff")
    A("buffer_store_dwordx4 v[12:15], v5, s[40:43], s62 offen")
    stamp(1)
    def farstore(regs, va, lskip):
        A("v_mov_b32 v6, 0")
        spin_lds(F_MODE, 1, 6, 7, sleep=8)
        A(f"ds_read_b32 v7, v6 offset:{L_MODE}")
        A("s_waitcnt lgkmcnt(0)")
        A("v_readfirstlane_b32 s54, v7")
        A("s_cmp_eq_u32 s54, 0"); A(f"s_cbranch_scc1 {lskip}")
        A("s_add_u32 s62, s62, s54")
        A(f"buffer_store_dwordx4 {regs}, v{va}, s[40:43], s62 offen sc1")
        A(f"{lskip}:")
    farstore("v[12:15]", 5, "L_qnear")
    flush([(0, 0), (1, 1), (8, 20), (4, 28)])
    A("s_endpgm")
    A("L_A1post:")
    A("v_lshlrev_b32 v5, 4, v0"); A("v_mov_b32 v1, 0xff")
    A("s_lshl3_add_u32 s62, s60, s61"); A("s_lshl_b32 s62, s62, 10"); A(f"s_add_u32 s62, s62, {FPB}")
    A("s_nop 4")
    for rg in range(4):
        for b in range(2):
            for e in range(2):
                a = AC + 4*(2*rg+e) + 2*b
                A(f"v_mov_b32_dpp v{8+2*b+e}, v{a} quad_perm:[0,1,2,3] row_mask:{1<<rg} bank_mask:0xf")
    for k in range(4): A(f"v_bfi_b32 v{8+k}, v1, s{TS+k}, v{8+k}")
    A("buffer_store_dwordx4 v[8:11], v5, s[40:43], s62 offen")
    farstore("v[8:11]", 5, "L_fnear")
    A("s_cmp_ge_u32 s5, 16"); A("s_cbranch_scc1 L_end")
    A("v_and_b32 v5, 15, v0"); A("v_lshlrev_b32 v5, 4, v5"); A("v_lshrrev_b32 v3, 4, v0"); A("v_lshl_add_u32 v5, v3, 10, v5")
    A("s_lshr_b32 s14, s5, 2"); A("s_lshl2_add_u32 s60, s4, s14"); A("s_lshl_b32 s60, s60, 13")
    A("s_and_b32 s14, s5, 3"); A("s_lshl_b32 s14, s14, 8"); A("s_add_u32 s60, s60, s14"); A(f"s_add_u32 s60, s60, {FPB}")
    A("s_add_u32 s60, s60, s54"); A("s_add_u32 s61, s60, 4096")
    A("v_and_b32 v4, 7, v0"); A("v_lshlrev_b32 v4, 3, v4"); A("v_lshrrev_b32 v3, 5, v0"); A("v_lshl_add_u32 v4, v3, 6, v4")
    A("s_lshl4_add_u32 s62, s4, s5"); A("s_lshl_b32 s62, s62, 7"); A(f"s_add_u32 s62, s62, {HB}")
    A("L_pf:")
    A(f"buffer_load_dwordx4 v[{WD}:{WD+3}], v5, s[40:43], s60 offen {PF}")
    A(f"buffer_load_dwordx4 v[{WD+4}:{WD+7}], v5, s[40:43], s61 offen {PF}")
    A("s_waitcnt vmcnt(0)")
    tagcheck(list(range(WD, WD+8)), 8, "L_rf")
    for k in range(4): A(f"v_add_f32 v{WD+k}, v{WD+k}, v{WD+4+k}")
    A(f"v_permlane32_swap_b32 v{WD}, v{WD+2}"); A(f"v_permlane32_swap_b32 v{WD+1}, v{WD+3}")
    for k in range(2): A(f"v_add_f32 v{WD+k}, v{WD+k}, v{WD+2+k}")
    for k in range(2): allred_swap("v_add_f32", WD+k, WD+2+k, 16)
    for k in range(2): rnd(WD+k)
    for k in range(2): A(f"v_mov_b32_dpp v{WD+4+k}, v{WD+k} row_ror:8 row_mask:0xf bank_mask:0xf")
    for k in range(2): A(f"v_mul_f32 v{8+k}, v{WD+k}, v{WD+k}")
    A("s_mov_b32 s14, 0x3d372713")
    for k in range(2): A(f"v_fma_f32 v{8+k}, v{8+k}, s14, 1.0")
    for k in range(2): A(f"v_mul_f32 v{8+k}, v{8+k}, v{WD+k}")
    for k in range(2): A(f"v_mul_f32 v{8+k}, 0xc0135761, v{8+k}")
    for k in range(2): A(f"v_exp_f32 v{8+k}, v{8+k}")
    for k in range(2): A(f"v_add_f32 v{8+k}, 1.0, v{8+k}")
    for k in range(2): A(f"v_rcp_f32 v{8+k}, v{8+k}")
    for k in range(2): A(f"v_mul_f32 v{8+k}, v{8+k}, v{WD+k}")
    for k in range(2): rnd(8+k)
    for k in range(2): A(f"v_mul_f32 v{8+k}, v{8+k}, v{WD+4+k}")
    for k in range(2): rnd(8+k)
    A("v_or_b32 v8, s94, v8"); A("v_or_b32 v9, s95, v9")
    A("s_mov_b32 exec_lo, 0xff"); A("s_mov_b32 exec_hi, 0xff")
    A("s_cmp_lg_u32 s54, 0"); A("s_cbranch_scc1 L_hfar")
    A("buffer_store_dwordx2 v[8:9], v4, s[40:43], s62 offen")
    stamp(1)
    flush([(1, 13)], cond_sub0=False)
    A("s_endpgm")
    A("L_hfar:")
    A("s_add_u32 s62, s62, s54")
    A("buffer_store_dwordx2 v[8:9], v4, s[40:43], s62 offen sc1")
    A("s_endpgm")
    A("L_rf:")
    A("s_sleep 8")
    bail("L_pf")

    A("L_A3:")
    A("s_setprio 3")
    common()
    srd(44, 36, 37, 256)
    A("s_getreg_b32 s60, hwreg(HW_REG_XCC_ID, 0, 4)")
    if "forcefar" in opt: A("s_and_b32 s60, s5, 1")
    A("s_lshl_b32 s61, s4, 7"); A(f"s_add_u32 s61, s61, {IDS}")
    A("s_lshl2_add_u32 s62, s5, s61")
    A("v_mov_b32 v6, 0"); A("v_lshlrev_b32 v4, 2, v0")
    A("s_waitcnt lgkmcnt(0)")
    mktag()
    A("s_lshl4_add_u32 s14, s12, s60")
    A("v_mov_b32 v2, s14")
    A("s_mov_b64 exec, 1")
    A("buffer_store_dword v2, v6, s[40:43], s62 offen")
    A("s_mov_b64 exec, -1")
    lanetags(20, 21, 5)
    spin_lds(F_KI, 4, 6, 7, sleep=8)
    A("s_mov_b32 exec_hi, 0")
    A("s_mov_b32 s63, 5"); A("s_mov_b32 s54, 0")
    A("L_pi:")
    A(f"buffer_load_dword v3, v4, s[40:43], s61 offen {PF}")
    A("s_waitcnt vmcnt(0)")
    A("v_cmp_ne_u32 vcc, v2, v3")
    A("s_cbranch_vccnz L_pifail")
    A("L_pidone:")
    A("v_mov_b32 v2, s54"); A("v_mov_b32 v7, 1")
    A(f"ds_write_b32 v6, v2 offset:{L_MODE}")
    A(f"ds_write_b32 v6, v7 offset:{F_MODE}")
    A("s_mov_b64 exec, -1")
    stamp(2)
    A("v_lshlrev_b32 v5, 4, v0")
    A("v_lshrrev_b32 v4, 5, v0"); A("v_lshlrev_b32 v4, 2, v4")
    spin_lds(F_P, 4, 6, 7, sleep=4)
    A(f"ds_read_b128 v[8:11], v5 offset:{L_P}")
    A(f"ds_read_b32 v16, v4 offset:{L_MAX}")
    A("s_waitcnt lgkmcnt(0)")
    for k in range(4): A(f"v_lshlrev_b32 v{12+k}, 16, v{8+k}")
    for k in range(4): A(f"v_and_b32 v{8+k}, 0xffff0000, v{8+k}")
    for k in range(4): A(f"v_add_f32 v{8+k}, v{8+k}, v{12+k}")
    A("v_add_f32 v8, v8, v9"); A("v_add_f32 v10, v10, v11"); A("v_add_f32 v17, v8, v10")
    allred_swap("v_add_f32", 17, 13, 16)
    allred16("v_add_f32", 17, ["row_ror:8", "row_ror:4", "row_ror:2", "row_ror:1"])
    A("v_and_or_b32 v16, v16, s58, v20"); A("v_and_or_b32 v17, v17, s58, v21")
    A("v_permlane32_swap_b32 v16, v18"); A("v_permlane32_swap_b32 v17, v19")
    A("s_lshl_b32 s61, s4, 9"); A(f"s_add_u32 s61, s61, {ST}")
    A("s_add_u32 s61, s61, s54")
    A("s_lshl4_add_u32 s14, s5, s61")
    A("s_mov_b64 exec, 1")
    A("s_cmp_lg_u32 s54, 0"); A("s_cbranch_scc1 L_sfar")
    A("buffer_store_dwordx4 v[16:19], v6, s[40:43], s14 offen")
    A("s_branch L_sdone")
    A("L_sfar:")
    A("buffer_store_dwordx4 v[16:19], v6, s[40:43], s14 offen sc1")
    A("L_sdone:")
    A("s_mov_b64 exec, -1")
    A("s_cmp_ge_u32 s5, 28"); A("s_cbranch_scc1 L_end")
    A("v_and_b32 v5, 31, v0"); A("v_lshlrev_b32 v5, 4, v5"); A("v_lshl_add_u32 v5, v4, 1, v5")
    A("v_and_b32 v2, 3, v0"); A("v_lshlrev_b32 v2, 4, v2"); A("v_bfe_u32 v3, v0, 2, 2"); A("v_lshl_add_u32 v2, v3, 2, v2")
    A("v_lshrrev_b32 v3, 4, v0"); A("v_lshl_add_u32 v2, v3, 6, v2")
    A("s_waitcnt vmcnt(0)")
    A("L_ps:")
    A(f"buffer_load_dwordx2 v[8:9], v5, s[40:43], s61 offen {PF}")
    A("s_waitcnt vmcnt(0)")
    tagcheck([8, 9], 12, "L_rs", tags=["v20", "v21"])
    A("v_mov_b32 v12, v8")
    allred16("v_max_f32", 12, ["row_ror:8", "row_ror:4", "row_ror:2", "row_ror:1"])
    A("v_sub_f32 v8, v8, v12"); A("v_mul_f32 v8, s59, v8"); A("v_exp_f32 v8, v8")
    A("v_mul_f32 v9, v9, v8")
    allred16("v_add_f32", 9, ["row_ror:8", "row_ror:4", "row_ror:2", "row_ror:1"])
    A("v_rcp_f32 v10, v9")
    A("v_fma_f32 v11, -v9, v10, 1.0"); A("v_fma_f32 v10, v11, v10, v10")
    A("v_mul_f32 v8, v8, v10")
    A(f"ds_write_b32 v2, v8 offset:{L_W}")
    A("v_mov_b32 v7, 1")
    A("s_mov_b64 exec, 1")
    A(f"ds_write_b32 v6, v7 offset:{F_X}")
    A("s_waitcnt lgkmcnt(0)")
    stamp(1)
    flush([(1, 14), (2, 15)], cond_sub0=False)
    A("s_endpgm")
    A("L_rs:")
    A(f"s_sleep {getopt('sslp', 8)}")
    bail("L_ps")
    A("L_pifail:")
    A("s_sub_u32 s15, s15, 1"); A("s_cbranch_scc1 L_end")
    A("s_sleep 8")
    A("s_sub_u32 s63, s63, 1")
    A("s_cmp_gt_i32 s63, 0"); A("s_cbranch_scc1 L_pi")
    A("s_or_b32 s14, s60, 0x80"); A("v_mov_b32 v8, s14")
    A("s_lshl_b32 s62, s4, 5")
    A("s_cmp_lg_u32 s63, 0"); A("s_cbranch_scc1 L_piread")
    A("s_add_u32 s14, s62, s5")
    A("s_mov_b32 exec_lo, 1")
    A("buffer_store_byte v8, v6, s[44:47], s14 offen sc1")
    A("s_mov_b32 exec_lo, -1")
    A("L_piread:")
    A("buffer_load_ubyte v3, v0, s[44:47], s62 offen sc1")
    A("s_waitcnt vmcnt(0)")
    A("v_cmp_eq_u32 vcc, 0, v3")
    A("s_cbranch_vccnz L_pi")
    A("v_cmp_ne_u32 vcc, v8, v3")
    A("s_cmp_lg_u64 vcc, 0"); A(f"s_cselect_b32 s54, {FAR}, 0")
    A("s_branch L_pidone")
    A("L_end:")
    A("s_endpgm")
    txt = A.finish()
    chain = [0] + [n for _, n in sorted(pads)]
    for a, b in zip(chain, chain[1:] + [None]):
        txt = txt.replace(f"@NEXT{a}@", f"L_pad{b}" if b else "L_end")
    return txt

HEADER = open("cdna_kernels/%s.s.ref" % NAME).read().split("; Override launch")[0]
def full(stamps=False, opt=()):
    body = gen(stamps, opt)
    return HEADER + f"""; @launch grid=(256,1,1) block=(768,1,1) lds={LDS_SIZE}
.amdgcn_target "amdgcn-amd-amdhsa--gfx950"
.text
.p2align 12
.fill 832, 4, 0xbf810000
.globl {NAME}_kernel
.p2align 8
.type {NAME}_kernel,@function
{NAME}_kernel:
{body}
.section .rodata,"a"
.p2align 6
.amdhsa_kernel {NAME}_kernel
  .amdhsa_next_free_vgpr 168
  .amdhsa_next_free_sgpr 96
  .amdhsa_accum_offset 168
  .amdhsa_group_segment_fixed_size 0
  .amdhsa_kernarg_size 96
  .amdhsa_user_sgpr_count 2
  .amdhsa_user_sgpr_kernarg_segment_ptr 1
  .amdhsa_system_sgpr_workgroup_id_x 1
.end_amdhsa_kernel
"""
if __name__ == "__main__":
    out = sys.argv[1] if len(sys.argv) > 1 else "cdna_kernels/%s.s" % NAME
    open(out, "w").write(full(stamps=(len(sys.argv) > 2 and sys.argv[2] == "stamps"), opt=sys.argv[3:]))
```
